```python
import torch

def _softmax(x, axis=-1):
    return torch.softmax(x, dim=axis)
def _gelu(x):
    return torch.nn.functional.gelu(x, approximate="tanh")
def _silu(x):
    return torch.nn.functional.silu(x)
def _sigmoid(x):
    return torch.sigmoid(x)
def _layernorm(x, axis=-1, eps=1e-5):
    m = x.mean(dim=axis, keepdim=True)
    v = x.var(dim=axis, keepdim=True, unbiased=False)
    return (x - m) / torch.sqrt(v + eps)
def _scatter_add(tgt, idx, src, axis=0):
    return tgt.clone().index_add_(axis, idx, src)
def _segment_sum(src, seg, n):
    out = torch.zeros((n,) + src.shape[1:], dtype=src.dtype)
    return out.index_add_(0, seg, src)
def _pad(x, pw):
    flat = tuple(v for pair in reversed(pw) for v in pair)
    return torch.nn.functional.pad(x, flat)

kernel_name = 'sequential_preLN__ssm_conv_h3__glu_gated_swiglu__prompt'

def setup_inputs():

    _w = (lambda a: (lambda t: t.to(torch.bfloat16) if t.is_floating_point() else t)(torch.as_tensor(a)))
    def _A_setup():
        B, S, D = 1, 2048, 1024
        ks = 4
        return {
            "q": _w((lambda *s: torch.randn(*s, dtype=torch.bfloat16) * 0.05)(B, S, D)),
            "k": _w((lambda *s: torch.randn(*s, dtype=torch.bfloat16) * 0.2)(B, S, D)),
            "v": _w((lambda *s: torch.randn(*s, dtype=torch.bfloat16) * 0.2)(B, S, D)),
            "shift_k": _w((lambda *s: torch.randn(*s, dtype=torch.bfloat16) * 0.2)(D, ks) * 0.5),
            "ssm_k": _w((lambda *s: torch.randn(*s, dtype=torch.bfloat16) * 0.4)(D, S) * (1.0 / S ** 0.5)),
            "ssm_D": _w((lambda *s: torch.randn(*s, dtype=torch.bfloat16) * 0.2)(D)),
        }
    _A_in = _A_setup()

    def _B_setup():
        B, S, D, F = 1, 2048, 1024, 3584
        return {
            "x": _w((lambda *s: torch.randn(*s, dtype=torch.bfloat16) * 0.05)(B, S, D)),
            "w1": _w((lambda *s: torch.randn(*s, dtype=torch.bfloat16) * 0.2)(D, F) * (2.0 / D) ** 0.5),
            "w3": _w((lambda *s: torch.randn(*s, dtype=torch.bfloat16) * 0.2)(D, F) * (2.0 / D) ** 0.5),
            "w2": _w((lambda *s: torch.randn(*s, dtype=torch.bfloat16) * 0.2)(F, D) * (2.0 / F) ** 0.5),
        }
    _B_in = _B_setup()

    return {
        "A_q": _A_in["q"],
        "A_k": _A_in["k"],
        "A_v": _A_in["v"],
        "A_shift_k": _A_in["shift_k"],
        "A_ssm_k": _A_in["ssm_k"],
        "A_ssm_D": _A_in["ssm_D"],
        "B_x": _B_in["x"],
        "B_w1": _B_in["w1"],
        "B_w3": _B_in["w3"],
        "B_w2": _B_in["w2"],
    }

def reference(A_q, A_k, A_v, A_shift_k, A_ssm_k, A_ssm_D, B_x, B_w1, B_w3, B_w2):
    def _A_ref(q, k, v, shift_k, ssm_k, ssm_D):
        B, S, D = q.shape
        ks = shift_k.shape[-1]
        k_pad = _pad(k, ((0, 0), (ks - 1, 0), (0, 0)))
        k_shift = torch.zeros_like(k)
        for t in range(ks):
            k_shift = k_shift + k_pad[:, t:t + S, :] * shift_k[:, ks - 1 - t][None, None, :]
        kv = k_shift * v
        L = 2 * S
        kv_pad = _pad(kv, ((0, 0), (0, S), (0, 0)))
        kf_pad = _pad(ssm_k, ((0, 0), (0, S)))
        kv_f = (lambda x, axes=(-2,-1): torch.fft.rfft2(x.float(), dim=axes))(kv_pad[:, None, :, :], axes=(1, 2))
        kf_f = (lambda x, axes=(-2,-1): torch.fft.rfft2(x.float(), dim=axes))(kf_pad[:, None, :], axes=(1, 2))
        kf_f = (lambda x, *d: x.permute(*d))(kf_f, 1, 2, 0)
        y_f = kv_f * kf_f[None, :, :, :]
        y = (lambda x, s, axes=(-2,-1): torch.fft.irfft2(x, s=s, dim=axes).to(torch.bfloat16))(y_f, (1, L), axes=(1, 2))[:, 0, :S, :]
        y = y + kv * ssm_D[None, None, :]
        return q * y

    def _B_ref(x, w1, w3, w2):
        gate = torch.einsum("bsd,df->bsf", x, w1)
        up = torch.einsum("bsd,df->bsf", x, w3)
        h = _silu(gate) * up
        out = torch.einsum("bsf,fd->bsd", h, w2)
        return out

    x = A_q
    h = x + _A_ref(_layernorm(x, axis=-1), A_k, A_v, A_shift_k, A_ssm_k, A_ssm_D)
    h2 = h + _B_ref(_layernorm(h, axis=-1), B_w1, B_w3, B_w2)
    return h2
```

```python
HEADER = '.amdgcn_target "amdgcn-amd-amdhsa--gfx950"\n.text\n'
def kstart(name):
    return f".globl {name}\n.p2align 8\n.type {name},@function\n{name}:\n"
def kdesc(name, vgpr, sgpr=102, accum=None, wgy=False):
    if accum is None: accum = min(256, (vgpr + 3)//4*4)
    s = f".amdhsa_kernel {name}\n  .amdhsa_next_free_vgpr {vgpr}\n  .amdhsa_next_free_sgpr {sgpr}\n  .amdhsa_accum_offset {accum}\n"
    s += "  .amdhsa_group_segment_fixed_size 0\n  .amdhsa_kernarg_size 104\n  .amdhsa_user_sgpr_count 2\n  .amdhsa_user_sgpr_kernarg_segment_ptr 1\n  .amdhsa_system_sgpr_workgroup_id_x 1\n"
    if wgy: s += "  .amdhsa_system_sgpr_workgroup_id_y 1\n"
    s += "  .amdhsa_float_denorm_mode_32 3\n  .amdhsa_float_denorm_mode_16_64 3\n"
    s += ".end_amdhsa_kernel\n"
    return s
RODATA = '.section .rodata,"a"\n.p2align 6\n'
KA = dict(q=0,k=8,v=16,shift=24,ssmk=32,ssmd=40,bx=48,w1=56,w3=64,w2=72,out=80,dbg=88,ws=96)
def srd(d, b, nbytes):
    return f"s_mov_b32 s{d}, s{b}\ns_and_b32 s{d+1}, s{b+1}, 0xffff\ns_mov_b32 s{d+2}, {nbytes}\ns_mov_b32 s{d+3}, 0x00020000\n"
```

```python
from ag import *
WS_HF   = 0x0000000
WS_HHF  = 0x0400000
WS_KVT  = 0x1200000
WS_XT   = 0x1600000
WS_ST1  = 0x1A00000
WS_ST2  = 0x1A10000
WS_CS   = 0x1A20000
WS_CSP  = 0x1A30000
WS_TM   = 0x1B00000
WS_SIZE = 268435456

class Em:
    def __init__(self):
        self.lines = []
        self.vm = []
    def __call__(self, s):
        for l in s.strip("\n").split("\n"):
            l = l.strip()
            if l: self.lines.append(l)
    def vmem(self, s, tag):
        self(s); self.vm.append(tag)
    def need(self, tags):
        last = -1
        for i, t in enumerate(self.vm):
            if t in tags: last = i
        if last < 0: return 63
        return min(63, len(self.vm) - 1 - last)
    def mark(self): return len(self.lines)
    def text(self, a=0, b=None): return "\n".join(self.lines[a:b]) + "\n"

def timing_store(e, srd, pts, sbase=60, region=0):
    e("s_waitcnt vmcnt(0) lgkmcnt(0)")
    e(f"s_lshl_b32 s41, s2, 2\ns_add_u32 s41, s41, {WS_TM + region*0x10000}\nv_mov_b32 v7, s41")
    for i in range(1, pts):
        e(f"s_sub_u32 s42, s{sbase+4*i}, s{sbase}\nv_mov_b32 v4, s42\nbuffer_store_dword v4, v7, {srd}, 0 offen\nv_add_u32 v7, 1024, v7")
    for i in range(1, pts):
        e(f"s_sub_u32 s42, s{sbase+4*i+2}, s{sbase+2}\nv_mov_b32 v4, s42\nbuffer_store_dword v4, v7, {srd}, 0 offen\nv_add_u32 v7, 1024, v7")
    e(f"v_mov_b32 v4, s{sbase+2}\nbuffer_store_dword v4, v7, {srd}, 0 offen")
def stamp(e, i, sbase=60):
    e(f"s_memtime s[{sbase+4*i}:{sbase+4*i+1}]\ns_memrealtime s[{sbase+4*i+2}:{sbase+4*i+3}]")
```

```python
from common import *
ROWB = 7168
MATB = 14336
STB  = 2 * MATB
R = 4
CS_LDS = R * STB
LDS_G1 = CS_LDS + 1024
P = 3
RB = 4
NSTEP = 32
ACC0 = 32
def acc(tt, t): b = ACC0 + (t * 4 + tt) * 4; return f"v[{b}:{b+3}]"
def accb(tt, t): return ACC0 + (t * 4 + tt) * 4
def afr(buf, t, j=None):
    b = buf * 56 + t * 4
    return f"a[{b}:{b+3}]" if j is None else f"a[{b+2*j}:{b+2*j+1}]"
BF0 = 112
def bfr(slot, tt): b = BF0 + slot * 16 + tt * 4; return f"a[{b}:{b+3}]"

def gen(name="g1_kernel", timing=False, nomfma=False, noload=False, st_flags="", order="tu"):
    e = Em()
    e(f"""
    s_cmp_ge_u32 s2, 256
    s_cbranch_scc1 L_g1_end
    s_load_dwordx4 s[44:47], s[0:1], {KA['dbg']}
    s_load_dwordx4 s[28:31], s[0:1], {KA['w1']}
    """)
    if timing: stamp(e, 0)
    e(f"""
    v_lshrrev_b32 v1, 6, v0
    v_and_b32 v0, 63, v0
    s_and_b32 s32, s2, 7
    v_readfirstlane_b32 s3, v1
    s_lshr_b32 s33, s2, 3
    s_and_b32 s34, s32, 1
    s_lshl_b32 s34, s34, 2
    s_and_b32 s35, s33, 3
    s_add_u32 s34, s34, s35
    s_lshr_b32 s35, s32, 1
    s_lshl_b32 s35, s35, 3
    s_lshr_b32 s36, s33, 2
    s_add_u32 s35, s35, s36
    s_lshl_b32 s36, s34, 3
    s_lshl_b32 s37, s3, 1
    s_add_u32 s36, s36, s37
    s_lshl_b32 s37, s36, 16
    """)
    e(f"""
    v_lshrrev_b32 v13, 5, v0
    v_lshlrev_b32 v2, 10, v13
    v_bfe_u32 v14, v0, 4, 1
    v_lshlrev_b32 v14, 9, v14
    v_and_b32 v15, 15, v0
    v_lshlrev_b32 v15, 4, v15
    v_add3_u32 v2, v2, v14, v15
    v_add_u32 v2, s37, v2
    v_add_u32 v3, 0x10000, v2
    s_and_b32 s38, s3, 1
    s_mul_i32 s38, s38, {32*ROWB}
    s_mul_i32 s39, s35, 224
    s_add_u32 s38, s38, s39
    """)
    for i in range(7):
        e(f"""
        v_add_u32 v11, {64*i}, v0
        v_mul_u32_u24 v12, 4682, v11
        v_lshrrev_b32 v12, 16, v12
        v_mul_u32_u24 v13, 14, v12
        v_sub_u32 v13, v11, v13
        v_mul_u32_u24 v12, {ROWB}, v12
        v_lshlrev_b32 v13, 4, v13
        v_add3_u32 v{4+i}, v12, v13, s38
        """)
        if i % 4: e(f"v_subrev_u32 v{4+i}, {1024*(i%4)}, v{4+i}")
    e(f"""
    v_lshrrev_b32 v13, 5, v0
    v_lshlrev_b32 v13, 4, v13
    v_bfe_u32 v14, v0, 2, 3
    v_add_u32 v13, v13, v14
    v_mul_u32_u24 v13, 224, v13
    v_and_b32 v14, 3, v0
    v_lshlrev_b32 v14, 3, v14
    v_add_u32 v11, v13, v14
    v_add_u32 v12, {2*STB}, v11
    s_lshr_b32 s40, s3, 1
    s_mul_i32 s40, s40, {MATB}
    s_and_b32 s41, s3, 1
    s_mul_i32 s41, s41, 7168
    s_add_u32 s40, s40, s41
    s_waitcnt lgkmcnt(0)
    s_mov_b32 s24, s46
    s_mov_b32 s25, s47
    s_mov_b32 s4, s24
    s_and_b32 s5, s25, 0xffff
    s_mov_b32 s6, 0x400000
    s_mov_b32 s7, 0x00020000
    s_cmp_ge_u32 s3, 2
    s_cselect_b32 s8, s30, s28
    s_cselect_b32 s9, s31, s29
    s_and_b32 s9, s9, 0xffff
    s_mov_b32 s10, {1024*ROWB}
    s_mov_b32 s11, 0x00020000
    s_add_u32 s12, s24, {WS_HHF}
    s_addc_u32 s13, s25, 0
    s_and_b32 s13, s13, 0xffff
    s_mov_b32 s14, {2048*3584*2}
    s_mov_b32 s15, 0x00020000
    s_mov_b32 s16, s24
    s_and_b32 s17, s25, 0xffff
    s_mov_b32 s18, {WS_SIZE}
    s_mov_b32 s19, 0x00020000
    """)
    def dma(i, slot, soff, tag):
        if i % 4 == 0:
            e(f"s_add_u32 m0, s40, {slot*STB + (i//4)*4096}")
            e("s_nop 0")
        e.vmem(f"buffer_load_dwordx4 v{4+i}, s[8:11], {soff} offen offset:{1024*(i%4)} lds", tag)
    def tok1(step, tt, soff, imm):
        e.vmem(f"buffer_load_dwordx4 {bfr(step % RB, tt)}, v{2+(tt>>1)}, s[4:7], {soff} offen offset:{imm + 256*(tt&1)}", ("T", step))
    def trread(step, t, j):
        st = step // 2; kp = step % 2; slot = st % R
        base = "v11" if slot < 2 else "v12"
        off = (slot % 2) * STB + (t & 1) * MATB + (32 * kp + 8 * j) * 224 + 32 * (t >> 1)
        e(f"ds_read_b64_tr_b16 {afr(step % 2, t, j)}, {base} offset:{off}")
    e("s_mov_b32 s21, 0\ns_mov_b32 s20, 0\ns_mov_b32 s22, 4096")
    for i in range(7): dma(i, 0, "s21", ("D", 0))
    for t in range(P):
        for tt in range(4): tok1(t, tt, "s20" if t < 2 else "s22", (t % 2) * 2048)
    if timing: stamp(e, 1)
    for st in range(1, R):
        e(f"s_mov_b32 s21, {st*64*ROWB}")
        for i in range(7): dma(i, st, "s21", ("D", st))
    e("s_lshl_b32 s41, s35, 11")
    for tt in range(4):
        e.vmem(f"buffer_load_dwordx4 a[{176+4*tt}:{179+4*tt}], v{2+(tt>>1)}, s[4:7], s41 offen offset:{256*(tt&1)}", ("HS", 0))
    e(f"""
    s_lshl_b32 s41, s3, 6
    v_add_u32 v13, s41, v0
    v_cmp_gt_u32 vcc, 112, v13
    v_mov_b32 v14, {(3584-112)*4}
    s_mul_i32 s41, s35, 448
    v_cndmask_b32 v14, v14, 0, vcc
    s_add_u32 s41, s41, {WS_CSP}
    v_lshl_add_u32 v14, v13, 2, v14
    v_lshlrev_b32 v13, 2, v13
    v_add_u32 v13, {CS_LDS}, v13
    """)
    for i in range(8):
        e.vmem(f"buffer_load_dword a{192+i}, v14, s[16:19], s41 offen", ("CP", 0))
        if i < 7: e(f"s_add_u32 s41, s41, {7168*4}")
    e(srd(48, 44, 256))
    ex = []
    ex.append((1, lambda: e(f"s_waitcnt vmcnt({e.need([('CP',0)])})")))
    ex.append((1, "v_mov_b32 v15, 0x3f803f80"))
    for i in range(8): ex.append((1, f"v_mov_b32 v{16+i}, 0"))
    for tt in range(4):
        for d in range(4): ex.append((1, f"v_accvgpr_read_b32 v{24+d}, a{176+4*tt+d}"))
        for d in range(4):
            ex.append((1, f"v_dot2_f32_bf16 v{16+tt}, v{24+d}, v15, v{16+tt}"))
            ex.append((1, f"v_dot2_f32_bf16 v{20+tt}, v{24+d}, v{24+d}, v{20+tt}"))
    for i in range(8): ex.append((1, f"v_accvgpr_read_b32 v{24+i}, a{192+i}"))
    for o in (16, 20):
        ex.append((1, f"v_permlane32_swap_b32 v{o}, v{o+2}"))
        ex.append((1, f"v_permlane32_swap_b32 v{o+1}, v{o+3}"))
    for o in (16, 20):
        ex.append((1, f"v_add_f32 v{o}, v{o}, v{o+2}"))
        ex.append((1, f"v_add_f32 v{o+1}, v{o+1}, v{o+3}"))
    for a_, b_ in ((24,25),(26,27),(28,29),(30,31),(24,26),(28,30),(24,28)): ex.append((1, f"v_add_f32 v{a_}, v{a_}, v{b_}"))
    for o in (16, 20): ex.append((1, f"v_permlane16_swap_b32 v{o}, v{o+1}"))
    ex.append((1, "ds_write_b32 v13, v24"))
    ex.append((1, f"s_lshl_b32 s41, s36, 7\ns_add_u32 s41, s41, {WS_ST2}\nv_lshlrev_b32 v14, 2, v0"))
    for o in (16, 20): ex.append((1, f"v_add_f32 v{o}, v{o}, v{o+1}"))
    ex.append((1, "s_add_u32 s42, s41, 8192"))
    ex.append((1, lambda: e.vmem("buffer_atomic_add_f32 v16, v14, s[16:19], s41 offen", ("AT", 0))))
    ex.append((1, lambda: e.vmem("buffer_atomic_add_f32 v20, v14, s[16:19], s42 offen", ("AT", 0))))
    ex.append((1, "v_and_b32 v14, 15, v0\nv_lshlrev_b32 v14, 2, v14\ns_lshl_b32 s43, s34, 5\nv_mov_b32 v15, 0"))
    ex.append((24, lambda: e.vmem("buffer_load_dword v16, v15, s[48:51], s43 offen sc1", ("PL", 0))))
    def chk():
        e(f"""
        s_waitcnt vmcnt({e.need([('PL',0)])})
        L_g1_poll:
        v_readfirstlane_b32 s52, v16
        s_cmp_eq_u32 s52, 32
        s_cbranch_scc1 L_g1_polled
        s_sleep 2
        buffer_load_dword v16, v15, s[48:51], s43 offen sc1
        s_waitcnt vmcnt(0)
        s_branch L_g1_poll
        L_g1_polled:
        """)
        for tt in range(4):
            e.vmem(f"buffer_load_dword v{16+2*tt}, v14, s[16:19], s41 offen offset:{64*tt} sc1", ("S", 0))
            e.vmem(f"buffer_load_dword v{17+2*tt}, v14, s[16:19], s42 offen offset:{64*tt} sc1", ("S", 0))
    ex.append((28, chk))
    e(f"s_mov_b32 s20, {P*2048}\ns_mov_b32 s22, {P*2048+4096}\ns_mov_b32 s21, {R*64*ROWB}")
    e(f"s_waitcnt vmcnt({e.need([('D',0)])})\ns_barrier")
    for t in range(14):
        for j in range(2): trread(0, t, j)
    if timing: stamp(e, 2)
    segs = []
    pend_dma = []
    for step in range(NSTEP):
        if step % 8 == 0: segs.append([e.mark(), None])
        st = step // 2; kp = step % 2
        n = e.need([("T", step)])
        e(f"s_waitcnt vmcnt({n}) lgkmcnt(0)")
        fill = [[] for _ in range(56)]
        g0 = 0
        if kp == 1:
            g0 = 3
            if st + R < 16: pend_dma += [(st + R, i) for i in range(7)]
        if step + 1 < NSTEP:
            k = 0
            for t in range(14):
                for j in range(2):
                    fill[g0 + k].append(("R", step + 1, t, j)); k += 1
        if step + P < NSTEP and not noload:
            for tt in range(4): fill[g0 + 29 + 2 * tt].append(("T", step + P, tt))
        nd = 4 if kp == 1 else 3
        for q in range(nd):
            if pend_dma: fill[g0 + 38 + 3 * q].append(("D",) + pend_dma.pop(0))
        for i in range(56):
            if order == "ut": t, tt = i // 4, i % 4
            else: tt, t = i // 14, i % 14
            c = "0" if step == 0 else acc(tt, t)
            if not nomfma: e(f"v_mfma_f32_16x16x32_bf16 {acc(tt,t)}, {afr(step%2,t)}, {bfr(step%RB,tt)}, {c}")
            if kp == 1 and i == 2 and st + 1 < 16:
                n = e.need([("D", st + 1)] + ([("AT", 0)] if st == 3 else []))
                e(f"s_waitcnt vmcnt({n})\ns_barrier")
                if st == 3:
                    assert not [x for x in ex if x[0] == 1]
                    e("""
                    s_cmp_lg_u32 s3, 0
                    s_cbranch_scc1 L_g1_nosig
                    v_mov_b32 v16, 1
                    s_mov_b64 exec, 1
                    buffer_atomic_add v16, v15, s[48:51], s43 offen sc1
                    s_mov_b64 exec, -1
                    s_nop 3
                    L_g1_nosig:
                    """)
            for f in fill[i]:
                if f[0] == "R": trread(f[1], f[2], f[3])
                elif f[0] == "T":
                    j4 = step % 4
                    tok1(f[1], f[2], "s20" if j4 < 2 else "s22", (j4 % 2) * 2048)
                    if j4 == 3 and f[2] == 3: e("s_add_u32 s20, s20, 8192\ns_add_u32 s22, s22, 8192")
                elif f[0] == "D":
                    if not noload: dma(f[2], f[1] % R, "s21", ("D", f[1]))
                    if f[2] == 6: e(f"s_add_u32 s21, s21, {64*ROWB}")
            if not fill[i] and i >= g0 + 28 and ex and ex[0][0] <= step:
                x = ex.pop(0)[1]
                if callable(x): x()
                else: e(x)
        if step % 8 == 7: segs[-1][1] = e.mark()
    end_main = e.mark()
    if timing: stamp(e, 3)
    e(f"""
    s_waitcnt vmcnt(0)
    v_lshrrev_b32 v13, 4, v0
    v_lshlrev_b32 v1, 4, v13
    v_add_u32 v1, {CS_LDS}, v1
    v_and_b32 v14, 1, v13
    v_lshlrev_b32 v14, 9, v14
    v_lshrrev_b32 v13, 1, v13
    v_lshlrev_b32 v13, 8, v13
    v_and_b32 v15, 15, v0
    v_lshlrev_b32 v15, 4, v15
    v_add3_u32 v2, v13, v14, v15
    s_mul_i32 s41, s36, {224*1024}
    s_mul_i32 s42, s35, {7*1024}
    s_add_u32 s41, s41, s42
    v_add_u32 v2, s41, v2
    v_add_u32 v3, {224*1024}, v2
    s_mov_b32 s43, 0xbfb8aa3b
    s_mov_b32 s44, 4096
    """)
    e("v_mov_b32 v24, v16\nv_mov_b32 v25, v17\nv_mov_b32 v26, v18\nv_mov_b32 v27, v19\ns_mov_b32 s45, 0xba800000\ns_mov_b32 s46, 0x3a800000")
    src = {0: (24, 25), 1: (26, 27), 2: (20, 21), 3: (22, 23)}
    for tt in range(4):
        m, r = src[tt]; b = 4 + 4 * tt
        e(f"""
        v_mul_f32 v{b}, s45, v{m}
        v_mul_f32 v{b+2}, s46, v{r}
        v_fma_f32 v{b+2}, -v{b}, v{b}, v{b+2}
        v_max_f32 v{b+2}, 0, v{b+2}
        v_add_f32 v{b+2}, 0x3727c5ac, v{b+2}
        v_rsq_f32 v{b+1}, v{b+2}
        s_nop 0
        v_mul_f32 v{b+1}, s43, v{b+1}
        """)
    def cread(u, buf):
        e(f"ds_read_b128 v[{20+8*buf}:{23+8*buf}], v1 offset:{u*64}\nds_read_b128 v[{24+8*buf}:{27+8*buf}], v1 offset:{448+u*64}")
    e("s_nop 4")
    cread(0, 0)
    for u in range(7):
        e("s_waitcnt lgkmcnt(0)")
        G = [accb(tt, 2*u) for tt in range(4)]; U = [accb(tt, 2*u+1) for tt in range(4)]
        for tt in range(4):
            b = 4 + 4 * tt
            for p in range(2):
                g = G[tt] + 2*p; up = U[tt] + 2*p
                e(f"v_pk_fma_f32 v[{g}:{g+1}], v[{b}:{b+1}], v[{20+2*p}:{21+2*p}], v[{g}:{g+1}] op_sel_hi:[0,1,1]")
                e(f"v_pk_fma_f32 v[{up}:{up+1}], v[{b}:{b+1}], v[{24+2*p}:{25+2*p}], v[{up}:{up+1}] op_sel_hi:[0,1,1]")
        if u < 6: cread(u + 1, 0)
        for tt in range(4):
            b = 4 + 4 * tt
            for p in range(2):
                g = G[tt] + 2*p; up = U[tt] + 2*p
                e(f"v_pk_mul_f32 v[{up}:{up+1}], v[{g}:{g+1}], v[{up}:{up+1}]")
                e(f"v_pk_mul_f32 v[{g}:{g+1}], v[{g}:{g+1}], v[{b}:{b+1}] op_sel:[0,1] op_sel_hi:[1,1]")
        for tt in range(4):
            for p in range(4): e(f"v_exp_f32 v{G[tt]+p}, v{G[tt]+p}")
        for tt in range(4):
            b = 4 + 4 * tt
            for p in range(2):
                g = G[tt] + 2*p
                e(f"v_pk_fma_f32 v[{g}:{g+1}], v[{g}:{g+1}], v[{b+2}:{b+3}], v[{b+2}:{b+3}] op_sel_hi:[1,0,0]")
        for tt in range(4):
            for p in range(4): e(f"v_rcp_f32 v{G[tt]+p}, v{G[tt]+p}")
        for tt in range(4):
            for p in range(2):
                g = G[tt] + 2*p; up = U[tt] + 2*p
                e(f"v_pk_mul_f32 v[{up}:{up+1}], v[{g}:{g+1}], v[{up}:{up+1}]")
        for i in range(2):
            d = G[2*i]
            e(f"v_cvt_pk_bf16_f32 v{d}, v{U[2*i]}, v{U[2*i]+1}")
            e(f"v_cvt_pk_bf16_f32 v{d+1}, v{U[2*i]+2}, v{U[2*i]+3}")
            e(f"v_cvt_pk_bf16_f32 v{d+2}, v{U[2*i+1]}, v{U[2*i+1]+1}")
            e(f"v_cvt_pk_bf16_f32 v{d+3}, v{U[2*i+1]+2}, v{U[2*i+1]+3}")
        e("s_nop 0")
        for i in range(2):
            d = G[2*i]
            e(f"v_permlane32_swap_b32 v{d}, v{d+2}\nv_permlane32_swap_b32 v{d+1}, v{d+3}")
        for i in range(2):
            d = G[2*i]
            so = "0" if u < 4 else "s44"
            e(f"buffer_store_dwordx4 v[{d}:{d+3}], v{2+i}, s[12:15], {so} offen offset:{(u%4)*1024} {st_flags}")
    if timing:
        e("s_waitcnt vmcnt(0)")
        stamp(e, 4)
        timing_store(e, "s[16:19]", 5, 60, 1)
    e("L_g1_end:\ns_endpgm")
    txt = [e.text(a, b) for a, b in segs]
    out = e.text(0, segs[0][0]) + txt[0]
    if txt[1] == txt[2]:
        out += "s_mov_b32 s23, 0\nL_g1_loop:\n" + txt[1] + "s_add_u32 s23, s23, 1\ns_cmp_lt_u32 s23, 2\ns_cbranch_scc1 L_g1_loop\n" + txt[3]
    else:
        print("; WARNING: not rolled")
        out += txt[1] + txt[2] + txt[3]
    out += e.text(end_main)
    return kstart(name) + out, kdesc(name, 512, 102, 256), f"; @launch kernel={name} grid=(256,1,1) block=(256,1,1) lds={LDS_G1}\n"

if __name__ == "__main__":
    import sys
    kw = dict(a.split("=") for a in sys.argv[2:])
    kw = {k: (v if k in ("st_flags", "order") else bool(int(v))) for k, v in kw.items()}
    code, desc, launch = gen(**kw)
    open(sys.argv[1], "w").write(launch + HEADER + code + RODATA + desc)
```

```python
from common import *
SK = 4
STB = SK * 4096
R = 6
LDS_G2 = R * STB
RB = 12
P = 11
NSTEP = 112
NST = NSTEP // SK
ACC0 = 32
def accb(tt, t): return ACC0 + (tt * 4 + t) * 4
def acc(tt, t): b = accb(tt, t); return f"v[{b}:{b+3}]"
AF0 = 64
def afr(buf, t, j=None):
    b = AF0 + buf * 16 + t * 4
    return f"v[{b}:{b+3}]" if j is None else f"v[{b+2*j}:{b+2*j+1}]"
BF0 = 96
def bfr(slot, tt): b = BF0 + slot * 8 + tt * 4; return f"v[{b}:{b+3}]"
UNR = 12 * 2

def gen(name="g2_kernel", timing=False, nomfma=False, noload=False):
    e = Em()
    e(f"""
    s_cmp_ge_u32 s2, 256
    s_cbranch_scc1 L_g2_end
    s_load_dwordx2 s[24:25], s[0:1], {KA['ws']}
    s_load_dwordx4 s[28:31], s[0:1], {KA['w2']}
    """)
    if timing: stamp(e, 0)
    e(f"""
    v_lshrrev_b32 v1, 6, v0
    v_and_b32 v0, 63, v0
    s_and_b32 s32, s2, 7
    v_readfirstlane_b32 s3, v1
    s_lshr_b32 s33, s2, 3
    s_lshr_b32 s34, s32, 1
    s_lshl_b32 s34, s34, 2
    s_and_b32 s35, s33, 3
    s_add_u32 s34, s34, s35
    s_and_b32 s35, s32, 1
    s_lshl_b32 s35, s35, 3
    s_lshr_b32 s36, s33, 2
    s_add_u32 s35, s35, s36
    s_lshl_b32 s36, s34, 2
    s_add_u32 s36, s36, s3
    s_mul_i32 s37, s36, {224*1024}
    """)
    e(f"""
    v_lshrrev_b32 v13, 5, v0
    v_lshlrev_b32 v2, 10, v13
    v_bfe_u32 v14, v0, 4, 1
    v_lshlrev_b32 v14, 9, v14
    v_and_b32 v15, 15, v0
    v_lshlrev_b32 v15, 4, v15
    v_add3_u32 v2, v2, v14, v15
    v_add_u32 v2, s37, v2
    """)
    e(f"""
    v_lshrrev_b32 v13, 3, v0
    v_lshrrev_b32 v14, 1, v13
    v_lshlrev_b32 v14, 1, v14
    v_and_b32 v15, 7, v0
    v_xor_b32 v15, v14, v15
    v_and_b32 v15, 7, v15
    v_lshlrev_b32 v15, 4, v15
    v_lshlrev_b32 v13, 11, v13
    s_lshl_b32 s38, s3, 14
    s_lshl_b32 s39, s35, 7
    s_add_u32 s38, s38, s39
    v_add3_u32 v4, v13, v15, s38
    """)
    e(f"""
    v_lshrrev_b32 v13, 5, v0
    v_lshlrev_b32 v13, 4, v13
    v_bfe_u32 v14, v0, 2, 3
    v_add_u32 v13, v13, v14
    v_lshlrev_b32 v13, 7, v13
    v_and_b32 v15, 3, v0
    v_lshlrev_b32 v15, 3, v15
    v_add_u32 v13, v13, v15
    v_lshrrev_b32 v14, 1, v14
    """)
    for t in range(4):
        e(f"v_xor_b32 v15, {t}, v14\nv_lshlrev_b32 v15, 5, v15\nv_add_u32 v{5+t}, v13, v15\nv_add_u32 v{9+t}, {3*STB}, v{5+t}")
    e(f"""
    s_lshl_b32 s40, s3, 10
    s_waitcnt lgkmcnt(0)
    s_add_u32 s4, s24, {WS_HHF}
    s_addc_u32 s5, s25, 0
    s_and_b32 s5, s5, 0xffff
    s_mov_b32 s6, {2048*3584*2}
    s_mov_b32 s7, 0x00020000
    s_mov_b32 s8, s28
    s_and_b32 s9, s29, 0xffff
    s_mov_b32 s10, {3584*2048}
    s_mov_b32 s11, 0x00020000
    s_mov_b32 s12, s30
    s_and_b32 s13, s31, 0xffff
    s_mov_b32 s14, {2048*2048}
    s_mov_b32 s15, 0x00020000
    s_mov_b32 s16, s24
    s_and_b32 s17, s25, 0xffff
    s_mov_b32 s18, {WS_SIZE}
    s_mov_b32 s19, 0x00020000
    """)
    def dma(kp, slot, tag):
        e(f"s_add_u32 m0, s40, {slot*STB + kp*4096}")
        e("s_nop 0")
        e.vmem(f"buffer_load_dwordx4 v4, s[8:11], s21 offen lds", tag)
        e(f"s_add_u32 s21, s21, {32*2048}")
    def tok1(step, tt, soff, imm):
        e.vmem(f"buffer_load_dwordx4 {bfr(step % RB, tt)}, v2, s[4:7], {soff} offen offset:{imm + 256*tt}", ("T", step))
    def trread(step, t, j):
        st = step // SK; kp = step % SK; slot = st % R
        base = f"v{5+t}" if slot < 3 else f"v{9+t}"
        off = (slot % 3) * STB + kp * 4096 + j * 1024
        e(f"ds_read_b64_tr_b16 {afr(step % 2, t, j)}, {base} offset:{off}")
    e("s_mov_b32 s21, 0\ns_mov_b32 s20, 0")
    for kp in range(SK): dma(kp, 0, ("D", 0))
    def toks(step):
        for tt in range(2): tok1(step, tt, "s20", (step % 2) * 2048)
        if step % 2 == 1: e("s_add_u32 s20, s20, 4096")
    for t in range(4): toks(t)
    if timing: stamp(e, 1)
    e(f"""
    v_bfe_u32 v14, v0, 4, 1
    v_lshlrev_b32 v14, 9, v14
    v_and_b32 v15, 15, v0
    v_lshlrev_b32 v15, 4, v15
    v_lshrrev_b32 v13, 5, v0
    v_lshlrev_b32 v13, 3, v13
    v_add3_u32 v3, v13, v14, v15
    s_lshl_b32 s41, s36, 16
    s_lshl_b32 s42, s35, 12
    s_add_u32 s41, s41, s42
    """)
    for tt in range(2):
        for t in range(4):
            b = 16 + (tt * 4 + t) * 2
            e.vmem(f"buffer_load_dwordx2 v[{b}:{b+1}], v3, s[16:19], s41 offen offset:{t*1024 + tt*256}", ("H", 0))
    for kp in range(SK): dma(kp, 1, ("D", 1))
    for t in range(4, P): toks(t)
    for st in range(2, R):
        for kp in range(SK): dma(kp, st, ("D", st))
    e(f"s_waitcnt vmcnt({e.need([('D',0)])})\ns_barrier")
    for t in range(4):
        for j in range(2): trread(0, t, j)
    e(f"s_waitcnt vmcnt({e.need([('H',0)])})")
    for tt in range(2):
        for t in range(4):
            b = 16 + (tt * 4 + t) * 2; a = accb(tt, t)
            e(f"v_lshlrev_b32 v{a}, 16, v{b}\nv_and_b32 v{a+1}, 0xffff0000, v{b}\nv_lshlrev_b32 v{a+2}, 16, v{b+1}\nv_and_b32 v{a+3}, 0xffff0000, v{b+1}")
    if timing: stamp(e, 2)
    segs = []
    pend = []
    for step in range(NSTEP):
        if (step - 8) % UNR == 0 or step == 0:
            if segs: segs[-1][1] = e.mark()
            segs.append([e.mark(), None])
        st = step // SK; kp = step % SK
        n = e.need([("T", step)])
        e(f"s_waitcnt vmcnt({n}) lgkmcnt(0)")
        fill = [[] for _ in range(8)]
        g0 = 0
        if kp == SK - 1:
            g0 = 1
            if st + R < NST: pend += [(st + R, i) for i in range(SK)]
        if step + 1 < NSTEP:
            k = 0
            for t in range(4):
                for j in range(2):
                    fill[g0 + k // 2].append(("R", step + 1, t, j)); k += 1
        if step + P < NSTEP and not noload: fill[g0 + 4].append(("T", step + P))
        if pend: fill[g0 + 5].append(("D",) + pend.pop(0))
        for i in range(8):
            tt, t = i // 4, i % 4
            if not nomfma: e(f"v_mfma_f32_16x16x32_bf16 {acc(tt,t)}, {afr(step%2,t)}, {bfr(step%RB,tt)}, {acc(tt,t)}")
            if kp == SK - 1 and i == 0 and st + 1 < NST:
                n = e.need([("D", st + 1)])
                e(f"s_waitcnt vmcnt({n})\ns_barrier")
            for f in fill[i]:
                if f[0] == "R": trread(f[1], f[2], f[3])
                elif f[0] == "T": toks(f[1])
                elif f[0] == "D":
                    if not noload: dma(f[2], f[1] % R, ("D", f[1]))
    segs[-1][1] = e.mark()
    end_main = e.mark()
    if timing: stamp(e, 3)
    e(f"""
    v_and_b32 v15, 15, v0
    v_lshlrev_b32 v15, 11, v15
    v_bfe_u32 v14, v0, 4, 1
    v_lshlrev_b32 v14, 5, v14
    v_lshrrev_b32 v13, 5, v0
    v_lshlrev_b32 v13, 4, v13
    v_add3_u32 v3, v13, v14, v15
    s_lshl_b32 s41, s36, 16
    s_lshl_b32 s42, s35, 7
    s_add_u32 s41, s41, s42
    s_add_u32 s42, s41, 32768
    s_nop 4
    """)
    for tt in range(2):
        for tp in range(2):
            a0 = accb(tt, 2*tp); a1 = accb(tt, 2*tp+1); d = 16 + (tt*2+tp)*4
            e(f"v_cvt_pk_bf16_f32 v{d}, v{a0}, v{a0+1}\nv_cvt_pk_bf16_f32 v{d+1}, v{a0+2}, v{a0+3}\nv_cvt_pk_bf16_f32 v{d+2}, v{a1}, v{a1+1}\nv_cvt_pk_bf16_f32 v{d+3}, v{a1+2}, v{a1+3}")
    e("s_nop 1")
    for tt in range(2):
        for tp in range(2):
            d = 16 + (tt*2+tp)*4
            e(f"v_permlane16_swap_b32 v{d}, v{d+2}\nv_permlane16_swap_b32 v{d+1}, v{d+3}")
            e(f"buffer_store_dwordx4 v[{d}:{d+3}], v3, s[12:15], {'s41' if tt==0 else 's42'} offen offset:{tp*64}")
    if timing:
        e("s_waitcnt vmcnt(0)")
        stamp(e, 4)
        timing_store(e, "s[16:19]", 5, 60, 2)
    e("L_g2_end:\ns_endpgm")
    txt = [e.text(a, b) for a, b in segs]
    out = e.text(0, segs[0][0]) + txt[0]
    i = 1
    nl = 0
    while i < len(txt):
        j = i
        while j + 1 < len(txt) and txt[j+1] == txt[i]: j += 1
        if j > i:
            out += f"s_mov_b32 s23, 0\nL_g2_loop{nl}:\n" + txt[i] + f"s_add_u32 s23, s23, 1\ns_cmp_lt_u32 s23, {j-i+1}\ns_cbranch_scc1 L_g2_loop{nl}\n"
            nl += 1
        else: out += txt[i]
        i = j + 1
    print("; g2 segments", len(txt), "loops", nl)
    out += e.text(end_main)
    return kstart(name) + out, kdesc(name, 192, 102), f"; @launch kernel={name} grid=(256,1,1) block=(256,1,1) lds={LDS_G2}\n"

if __name__ == "__main__":
    import sys
    kw = dict(a.split("=") for a in sys.argv[2:])
    kw = {k: bool(int(v)) for k, v in kw.items()}
    code, desc, launch = gen(**kw)
    open(sys.argv[1], "w").write(launch + HEADER + code + RODATA + desc)
```

```python
from common import *
CPS = 4160
XR = 8 * CPS
CH = XR + 4608
CSL = 4 * CH
LDS_K1 = CSL + 8192
VK = 16
VV = 38
VX = 54
VS = 70
VU = 86
VKV = 130
VC = 162
VCA = 226
VF = 130
FR = 8
FD = 6
ACC = 86
def gfr(q, r): b = 4 * (q * 8 + r); return f"a[{b}:{b+3}]"
def ffr(m): b = VF + 4 * (m % FR); return f"v[{b}:{b+3}]"
def acc(j): b = ACC + 4 * j; return f"v[{b}:{b+3}]"

class Col:
    def __init__(self): self.l = []
    def __call__(self, t):
        for l in t.strip("\n").split("\n"):
            if l.strip(): self.l.append(l.strip())

def gen(name="k1_kernel", timing=False, st_flags="", nopf=False):
    e = Em()
    TS = 64
    e(f"""
    s_cmp_ge_u32 s2, 256
    s_cbranch_scc1 L_k1_end
    s_load_dwordx8 s[24:31], s[0:1], 0
    s_load_dwordx4 s[32:35], s[0:1], 32
    s_load_dwordx4 s[36:39], s[0:1], {KA['w1']}
    s_load_dwordx4 s[44:47], s[0:1], {KA['dbg']}
    """)
    if timing: stamp(e, 0, TS)
    e(f"""
    v_lshrrev_b32 v1, 6, v0
    v_and_b32 v0, 63, v0
    s_and_b32 s40, s2, 7
    v_readfirstlane_b32 s3, v1
    s_lshl_b32 s40, s40, 5
    s_lshr_b32 s41, s2, 3
    s_add_u32 s40, s40, s41
    s_lshl_b32 s41, s40, 3
    s_lshl_b32 s42, s3, 20
    s_add_u32 s42, s42, s41
    v_lshlrev_b32 v2, 14, v0
    v_add_u32 v2, s42, v2
    v_lshlrev_b32 v3, 11, v0
    v_add_u32 v3, s42, v3
    s_lshl_b32 s43, s2, 14
    s_lshl_b32 s48, s3, 12
    s_add_u32 s43, s43, s48
    v_lshlrev_b32 v4, 4, v0
    v_add_u32 v5, s43, v4
    s_lshl_b32 s61, s40, 2
    s_add_u32 s61, s61, s3
    s_lshl_b32 s61, s61, 12
    v_add_u32 v6, s61, v4
    v_subrev_u32 v7, 16, v6
    v_cmp_eq_u32 vcc, 0, v0
    v_mov_b32 v8, 0x80000000
    s_mul_i32 s62, s3, {CH}
    v_cndmask_b32 v8, v7, v8, vcc
    s_bfe_u32 s48, s40, 0x30001
    s_lshl_b32 s48, s48, 11
    s_bitcmp1_b32 s40, 0
    s_waitcnt lgkmcnt(0)
    s_cselect_b32 s12, s28, s26
    s_cselect_b32 s13, s29, s27
    s_and_b32 s13, s13, 0xffff
    s_mov_b32 s14, 4194304
    s_mov_b32 s15, 0x00020000
    """)
    if not nopf: e.vmem(f"buffer_load_dword v14, v2, s[12:15], s48 offen", "PF")
    e(srd(16, 32, 4194304))
    for c in range(4):
        e.vmem(f"buffer_load_dwordx4 v[{VC+8*c}:{VC+8*c+3}], {'v8' if c == 0 else 'v7'}, s[16:19], 0 offen offset:{1024*c}", "KW")
        e.vmem(f"buffer_load_dwordx4 v[{VC+8*c+4}:{VC+8*c+7}], v6, s[16:19], 0 offen offset:{1024*c}", "KW")
    e(srd(4, 24, 4194304))
    for i in range(4):
        e.vmem(f"buffer_load_dwordx4 v[{VS+4*i}:{VS+4*i+3}], v5, s[4:7], 0 offen offset:{i*1024}", "SL")
    e(f"""
    s_lshl_b32 s48, s40, 5
    s_add_u32 s30, s30, s48
    s_addc_u32 s31, s31, 0
    s_load_dwordx8 s[52:59], s[30:31], 0
    s_add_u32 s34, s34, s41
    s_addc_u32 s35, s35, 0
    s_load_dwordx2 s[50:51], s[34:35], 0
    {srd(8, 26, 4194304)}
    {srd(12, 28, 4194304)}
    {srd(20, 46, WS_SIZE)}
    v_mov_b32 v130, 0
    v_mov_b32 v131, 0
    v_mov_b32 v132, 0
    v_mov_b32 v133, 0
    v_add_u32 v9, s62, v4
    v_mul_u32_u24 v10, {CPS}, v0
    v_add_u32 v10, s62, v10
    s_mov_b32 exec_hi, 0
    ds_write_b128 v9, v[130:133] offset:{XR+4096}
    s_mov_b32 exec_lo, 0xff
    ds_write_b128 v10, v[130:133]
    s_mov_b32 exec_lo, 15
    s_lshl_b32 s63, s2, 6
    s_add_u32 s63, s63, {WS_ST2}
    s_cmp_eq_u32 s3, 0
    s_cselect_b32 s63, s63, 0x80000000
    """)
    e.vmem("buffer_store_dwordx4 v[130:133], v4, s[20:23], s63 offen", "Z")
    e(f"""
    s_mov_b64 exec, -1
    v_subrev_u32 v6, {3*2048}, v2
    s_cselect_b32 s63, 0x80000000, 0
    v_or_b32 v6, s63, v6
    s_mov_b32 s48, 4096
    s_mov_b32 s49, 8192
    s_mov_b32 s60, 12288
    """)
    e(f"s_waitcnt vmcnt({e.need(['SL'])})")
    if timing: stamp(e, 1, TS)
    c_ = Col()
    c_("s_mov_b32 s63, 0x3f803f80\nv_mov_b32 v134, 0\nv_mov_b32 v135, 0\nv_mov_b32 v136, 0\nv_mov_b32 v137, 0\nv_mov_b32 v138, s63")
    for i in range(8):
        for r in range(2):
            x = VS + 8*r + i
            c_(f"v_dot2_f32_bf16 v{134+2*r}, v{x}, v138, v{134+2*r}\nv_dot2_f32_bf16 v{135+2*r}, v{x}, v{x}, v{135+2*r}")
    c_("s_nop 2")
    for op in ["row_shr:1", "row_shr:2", "row_shr:4", "row_shr:8"]:
        for r in range(4): c_(f"v_add_f32_dpp v{134+r}, v{134+r}, v{134+r} {op} row_mask:0xf bank_mask:0xf bound_ctrl:0")
    for op, m in [("row_bcast:15", "0xa"), ("row_bcast:31", "0xc")]:
        for r in range(4): c_(f"v_add_f32_dpp v{134+r}, v{134+r}, v{134+r} {op} row_mask:{m} bank_mask:0xf")
    c_(f"""
    s_mov_b32 s63, 0x3a800000
    v_mul_f32 v134, s63, v134
    v_mul_f32 v136, s63, v136
    v_mul_f32 v135, s63, v135
    v_mul_f32 v137, s63, v137
    v_fma_f32 v135, -v134, v134, v135
    v_fma_f32 v137, -v136, v136, v137
    v_max_f32 v135, 0, v135
    v_max_f32 v137, 0, v137
    v_add_f32 v135, 0x3727c5ac, v135
    v_add_f32 v137, 0x3727c5ac, v137
    v_rsq_f32 v135, v135
    v_rsq_f32 v137, v137
    s_lshl_b32 s63, s2, 6
    s_lshl_b32 s43, s3, 4
    s_add_u32 s63, s63, s43
    s_add_u32 s63, s63, {WS_ST1}
    v_mov_b32 v12, 0
    @SS
    """)
    nt = 0
    for c in range(4):
        W = VC + 8*c
        for s in range(8):
            sh = s + 1
            off = s*CPS + 16 + 1024*c
            if sh % 4 == 0:
                b = W + sh // 2
                c_(f"ds_write_b128 v9, v[{b}:{b+3}] offset:{off}")
            else:
                t = VC + 32 + 4 * (nt % 8); nt += 1
                for d in range(4):
                    if sh % 2 == 0: c_(f"v_mov_b32 v{t+d}, v{W + sh//2 + d}")
                    else: c_(f"v_alignbit_b32 v{t+d}, v{W + sh//2 + d + 1}, v{W + sh//2 + d}, 16")
                c_(f"ds_write_b128 v9, v[{t}:{t+3}] offset:{off}")
    so = ["0", "s48", "s49", "s60"]
    loads = []
    for j in range(8): loads.append(("K", f"buffer_load_dwordx2 v[{VK+6+2*j}:{VK+7+2*j}], v2, s[8:11], {so[j//2]} offen offset:{(j%2)*2048}"))
    loads.append(("H", None))
    for j in range(8): loads.append(("V", f"buffer_load_dwordx2 v[{VV+2*j}:{VV+1+2*j}], v2, s[12:15], {so[j//2]} offen offset:{(j%2)*2048}"))
    va = c_.l
    every = len(va) // len(loads)
    def issue(ld):
        if ld[0] == "H":
            e("s_mov_b64 exec, 1")
            for j in range(3):
                e.vmem(f"buffer_load_dwordx2 v[{VK+2*j}:{VK+1+2*j}], v6, s[8:11], {so[j//2]} offen offset:{(j%2)*2048}", "K")
            e("s_mov_b64 exec, -1")
        else: e.vmem(ld[1], ld[0])
    for n_, l in enumerate(va):
        if n_ % every == 0 and loads: issue(loads.pop(0))
        if l == "@SS":
            e("s_mov_b32 exec_lo, 0\ns_mov_b32 exec_hi, 0x80000000")
            e.vmem("buffer_store_dwordx4 v[134:137], v12, s[20:23], s63 offen sc1", "SS")
            e("s_mov_b64 exec, -1")
        else: e(l)
    assert not loads
    e("s_waitcnt lgkmcnt(0)")
    for j in range(4):
        for c in range(4):
            src = 52 + 2*c + (j >> 1); d = 84 + 4*j + c
            e(f"s_lshl_b32 s{d}, s{src}, 16" if j % 2 == 0 else f"s_and_b32 s{d}, s{src}, 0xffff0000")
    e(f"""
    s_cmp_ge_u32 s3, 2
    s_cselect_b32 s48, s51, s50
    s_bitcmp1_b32 s3, 0
    s_cselect_b32 s49, 0, 16
    s_lshl_b32 s48, s48, s49
    s_and_b32 s48, s48, 0xffff0000
    s_mul_i32 s49, s2, 2341
    s_lshr_b32 s49, s49, 16
    s_mul_i32 s50, s49, 28
    s_sub_u32 s50, s2, s50
    s_cmp_ge_u32 s50, 14
    s_cselect_b32 s16, s38, s36
    s_cselect_b32 s17, s39, s37
    s_cselect_b32 s51, 14, 0
    s_and_b32 s17, s17, 0xffff
    s_mov_b32 s18, {1024*7168}
    s_mov_b32 s19, 0x00020000
    s_sub_u32 s51, s50, s51
    s_lshl_b32 s51, s51, 9
    s_lshl_b32 s52, s49, 2
    s_add_u32 s52, s52, s3
    s_mul_i32 s52, s52, {32*7168}
    s_add_u32 s51, s51, s52
    {srd(36, 44, 256)}
    v_lshrrev_b32 v9, 5, v0
    v_mul_u32_u24 v9, 7168, v9
    v_and_b32 v10, 31, v0
    v_lshl_add_u32 v9, v10, 4, v9
    v_and_b32 v12, 7, v0
    v_mul_u32_u24 v10, {CPS}, v12
    v_bfe_u32 v12, v0, 3, 1
    v_lshrrev_b32 v13, 4, v0
    v_add_u32 v12, v12, v13
    v_lshl_add_u32 v10, v12, 4, v10
    v_add_u32 v10, s62, v10
    v_and_b32 v12, 15, v0
    v_lshlrev_b32 v12, 5, v12
    v_lshlrev_b32 v13, 4, v13
    v_sub_u32 v11, v13, v12
    s_add_u32 s52, s62, {XR + 4064 - 3584}
    v_add_u32 v11, s52, v11
    v_mov_b32 v12, 0x3f80
    v_mov_b32 v13, 0x3f800000
    s_lshl_b32 s49, s3, 10
    s_sub_u32 s49, {XR + 4080}, s49
    v_sub_u32 v8, s49, v4
    v_add_u32 v7, {2*CH}, v8
    """)
    for i in range(8): e(f"v_mov_b32 v{VCA+i}, 0")
    e(f"s_waitcnt vmcnt({e.need(['K'])})")
    if timing: stamp(e, 2, TS)
    for j in range(3):
        for d in range(2):
            e(f"v_mov_b32_dpp v{VK+2*j+d}, v{VK+6+2*(5+j)+d} wave_shr:1 row_mask:0xf bank_mask:0xf")
    for r in list(range(3, 11)) + [0, 1, 2]:
        for d in range(2):
            e(f"v_lshlrev_b32 v{VU+4*r+2*d}, 16, v{VK+2*r+d}\nv_and_b32 v{VU+4*r+2*d+1}, 0xffff0000, v{VK+2*r+d}")
    for i in range(8):
        for j in range(4):
            for cp in range(2):
                o = VKV + 4*i + 2*cp
                kr = VU + 4*(i + 3 - j) + 2*cp
                w = 84 + 4*j + 2*cp
                if j == 0: e(f"v_pk_mul_f32 v[{o}:{o+1}], v[{kr}:{kr+1}], s[{w}:{w+1}]")
                else: e(f"v_pk_fma_f32 v[{o}:{o+1}], v[{kr}:{kr+1}], s[{w}:{w+1}], v[{o}:{o+1}]")
    e(f"s_waitcnt vmcnt(0)")
    for i in range(8):
        for cp in range(2):
            o = VKV + 4*i + 2*cp; sv = VV + 2*i + cp; t = VK + 2*((2*i+cp) % 8)
            e(f"v_lshlrev_b32 v{t}, 16, v{sv}\nv_and_b32 v{t+1}, 0xffff0000, v{sv}\nv_pk_mul_f32 v[{o}:{o+1}], v[{o}:{o+1}], v[{t}:{t+1}]")
    for c in range(4):
        b = VV + 4*c
        for d in range(4):
            e(f"v_cvt_pk_bf16_f32 v{b+d}, v{VKV+4*(7-2*d)+c}, v{VKV+4*(6-2*d)+c}")
        e(f"ds_write_b128 {'v8' if c < 2 else 'v7'}, v[{b}:{b+3}] offset:{(c%2)*CH}")
    e(f"s_waitcnt lgkmcnt(0)\ns_barrier")
    if timing: stamp(e, 3, TS)
    def fread(m): e(f"ds_read_b128 {ffr(m)}, v10 offset:{64*m}")
    def gread(q, r): e(f"ds_read_b128 {gfr(q,r)}, v11 offset:{512*(7-q) + 64*r}")
    fread(0)
    for q in range(8): gread(q, 0)
    fread(1)
    e(f"""
    s_cmp_lg_u32 s3, 0
    s_cbranch_scc1 L_k1_nosig
    s_and_b32 s52, s2, 7
    s_lshl_b32 s52, s52, 5
    v_mov_b32 v14, 1
    v_mov_b32 v15, 0
    s_mov_b64 exec, 1
    buffer_atomic_add v14, v15, s[36:39], s52 offen sc1
    s_mov_b64 exec, -1
    L_k1_nosig:
    s_mov_b32 s49, 0
    v_lshlrev_b32 v14, 5, v0
    v_lshlrev_b32 v5, 3, v0
    s_lshl_b32 s52, s3, 12
    s_add_u32 s52, s52, {WS_ST1}
    """)
    lds = ['F1']; nextF = 2
    cs_ops = []
    for i in range(16):
        for d in range(4):
            cs_ops.append((i, f"v_dot2_f32_bf16 v{VCA+2*d}, v{VC+4*i+d}, v12, v{VCA+2*d}"))
            cs_ops.append((i, f"v_dot2_f32_bf16 v{VCA+2*d+1}, v{VC+4*i+d}, v13, v{VCA+2*d+1}"))
    cs_waited = -1
    sched = {}
    for i in range(16): sched[6 + 4*i] = ("CS", i)
    for i in range(8): sched[72 + 20*i] = ("X", i)
    sched[225] = ("POLL",)
    sched[270] = ("CHK",)
    nm = 0
    for m in range(64):
        p, r = m // 8, m % 8
        need_ = [i_ for i_, t_ in enumerate(lds) if t_ == f"F{m}" or t_ == f"G{m}"]
        if m == 0: e("s_waitcnt lgkmcnt(1)")
        elif need_:
            k_ = len(lds) - 1 - max(need_)
            e(f"s_waitcnt lgkmcnt({min(k_, 15)})")
            lds = lds[max(need_)+1:]
        fills = []
        if p == 0 and r < 7: fills += [("G", q, r + 1) for q in range(8)]
        lim = m + 2 if p == 0 and r < 6 else m + FD
        while nextF <= lim and nextF < 64 and len([f for f in fills if f[0] == "F"]) < 2:
            fills.append(("F", nextF)); nextF += 1
        nq = 8 - p
        for q in range(nq):
            j = p + q
            c = "0" if m == 0 else acc(j)
            e(f"v_mfma_f32_16x16x32_bf16 {acc(j)}, {ffr(m)}, {gfr(q,r)}, {c}")
            nm += 1
            take = fills[:2] if p == 0 else fills[:1]
            if q == nq - 1: take = fills
            fills = fills[len(take):]
            for f in take:
                if f[0] == "G": gread(f[1], f[2]); lds.append(f"G{f[2]}")
                else: fread(f[1]); lds.append(f"F{f[1]}")
            if nm in sched:
                s_ = sched[nm]
                if s_[0] == "CS":
                    i = s_[1]
                    e.vmem(f"buffer_load_dwordx4 v[{VC+4*i}:{VC+4*i+3}], v9, s[16:19], s51 offen", ("CS", i))
                    e(f"s_add_u32 s51, s51, {2*7168}")
                elif s_[0] == "X":
                    i = s_[1]
                    e.vmem(f"buffer_load_dwordx2 v[{VX+2*i}:{VX+2*i+1}], v3, s[4:7], s49 offen", "X")
                    e(f"s_add_u32 s49, s49, {64*2048}")
                elif s_[0] == "POLL":
                    e.vmem("buffer_load_dword v15, v14, s[36:39], 0 offen sc1", "PL")
                elif s_[0] == "CHK":
                    e(f"""
                    s_waitcnt vmcnt({e.need(['PL'])})
                    L_k1_poll:
                    v_cmp_eq_u32 vcc, 32, v15
                    s_cmp_eq_u32 vcc_lo, 0xff
                    s_cbranch_scc1 L_k1_polled
                    s_sleep 2
                    buffer_load_dword v15, v14, s[36:39], 0 offen sc1
                    s_waitcnt vmcnt(0)
                    s_branch L_k1_poll
                    L_k1_polled:
                    """)
                    for i in range(8):
                        e.vmem(f"buffer_load_dwordx2 v[{VS+2*i}:{VS+2*i+1}], v5, s[20:23], s52 offen offset:{512*i} sc1", "ST")
            if nm > 150 and cs_ops:
                i, op = cs_ops.pop(0)
                if i > cs_waited:
                    e(f"s_waitcnt vmcnt({e.need([('CS', i)])})"); cs_waited = i
                e(op)
    assert not cs_ops
    if timing: stamp(e, 4, TS)
    e(f"""
    v_and_b32 v14, 15, v0
    v_lshlrev_b32 v14, 5, v14
    v_lshrrev_b32 v15, 4, v0
    v_lshl_add_u32 v14, v15, 3, v14
    s_add_u32 s52, s62, {XR + 4088 - 3584}
    v_sub_u32 v15, s52, v14
    s_lshl_b32 s52, s3, 6
    s_add_u32 s52, s52, s62
    v_add_u32 v14, s52, v14
    """)
    for j in range(8): e(f"ds_read_b64 v[{VK+2*j}:{VK+2*j+1}], v15 offset:{512*(7-j)}")
    e(f"""
    s_lshl_b32 s52, s3, 11
    s_add_u32 s52, s52, {CSL}
    v_lshlrev_b32 v9, 5, v0
    v_add_u32 v9, s52, v9
    ds_write_b128 v9, v[{VCA}:{VCA+3}]
    ds_write_b128 v9, v[{VCA+4}:{VCA+7}] offset:16
    s_waitcnt lgkmcnt(2)
    """)
    for j in range(8):
        a = ACC + 4*j; kk = VK + 2*j; t = VKV + 4*j
        e(f"""
        v_and_b32 v{t}, 0xffff0000, v{kk+1}
        v_lshlrev_b32 v{t+1}, 16, v{kk+1}
        v_and_b32 v{t+2}, 0xffff0000, v{kk}
        v_lshlrev_b32 v{t+3}, 16, v{kk}
        v_fma_f32 v{a}, s48, v{t}, v{a}
        v_fma_f32 v{a+1}, s48, v{t+1}, v{a+1}
        v_fma_f32 v{a+2}, s48, v{t+2}, v{a+2}
        v_fma_f32 v{a+3}, s48, v{t+3}, v{a+3}
        v_cvt_pk_bf16_f32 v{t}, v{a}, v{a+1}
        v_cvt_pk_bf16_f32 v{t+1}, v{a+2}, v{a+3}
        ds_write_b64 v14, v[{t}:{t+1}] offset:{512*j}
        """)
    e(f"""
    v_bfe_u32 v14, v0, 2, 2
    v_mul_u32_u24 v14, {CH+64}, v14
    v_lshrrev_b32 v15, 4, v0
    v_lshl_add_u32 v14, v15, 5, v14
    v_and_b32 v15, 3, v0
    v_lshl_add_u32 v14, v15, 3, v14
    s_lshl_b32 s52, s3, 10
    v_add_u32 v14, s52, v14
    v_lshrrev_b32 v15, 5, v0
    v_lshlrev_b32 v15, 16, v15
    v_and_b32 v9, 31, v0
    v_lshl_add_u32 v15, v9, 4, v15
    s_lshl_b32 s52, s3, 20
    s_lshr_b32 s53, s40, 2
    s_lshl_b32 s53, s53, 10
    s_add_u32 s52, s52, s53
    s_and_b32 s53, s40, 1
    s_lshl_b32 s53, s53, 9
    s_add_u32 s52, s52, s53
    s_and_b32 s53, s40, 2
    s_lshl_b32 s53, s53, 2
    s_add_u32 s52, s52, s53
    s_lshl_b32 s53, s3, 8
    s_add_u32 s53, s53, {CSL}
    v_lshlrev_b32 v9, 2, v0
    v_add_u32 v8, s53, v9
    s_waitcnt lgkmcnt(0)
    s_barrier
    """)
    for i in range(8): e(f"ds_read_b64_tr_b16 v[{VK+2*i}:{VK+2*i+1}], v14 offset:{128*i}")
    for i in range(7): e(f"ds_read_b32 v{VC+i}, v8 offset:{1024*i}")
    e("s_waitcnt vmcnt(0) lgkmcnt(7)")
    e(f"ds_read_b32 v{VC+7}, v8 offset:{1024*7}")
    for i in range(8):
        x = VX + 2*i; y = VK + 2*i; st = VS + 2*i; t = VU + 12*(i % 2)
        e(f"""
        v_lshlrev_b32 v{t}, 16, v{x}
        v_and_b32 v{t+1}, 0xffff0000, v{x}
        v_lshlrev_b32 v{t+2}, 16, v{x+1}
        v_and_b32 v{t+3}, 0xffff0000, v{x+1}
        v_mul_f32 v{st}, v{st}, v{st+1}
        v_lshlrev_b32 v{t+4}, 16, v{y}
        v_and_b32 v{t+5}, 0xffff0000, v{y}
        v_lshlrev_b32 v{t+6}, 16, v{y+1}
        v_and_b32 v{t+7}, 0xffff0000, v{y+1}
        v_pk_fma_f32 v[{t+8}:{t+9}], v[{t}:{t+1}], v[{st}:{st+1}], v[{st}:{st+1}] op_sel:[0,1,0] op_sel_hi:[1,1,0] neg_lo:[0,0,1] neg_hi:[0,0,1]
        v_pk_fma_f32 v[{t+10}:{t+11}], v[{t+2}:{t+3}], v[{st}:{st+1}], v[{st}:{st+1}] op_sel:[0,1,0] op_sel_hi:[1,1,0] neg_lo:[0,0,1] neg_hi:[0,0,1]
        v_pk_fma_f32 v[{t}:{t+1}], v[{t+8}:{t+9}], v[{t+4}:{t+5}], v[{t}:{t+1}]
        v_pk_fma_f32 v[{t+2}:{t+3}], v[{t+10}:{t+11}], v[{t+6}:{t+7}], v[{t+2}:{t+3}]
        v_cvt_pk_bf16_f32 v{x}, v{t}, v{t+1}
        v_cvt_pk_bf16_f32 v{x+1}, v{t+2}, v{t+3}
        buffer_store_dwordx2 v[{x}:{x+1}], v15, s[20:23], s52 offen {st_flags}
        s_add_u32 s52, s52, {2*65536}
        """)
    e(f"""
    s_waitcnt lgkmcnt(0)
    v_add_f32 v{VC}, v{VC}, v{VC+1}
    v_add_f32 v{VC+2}, v{VC+2}, v{VC+3}
    v_add_f32 v{VC+4}, v{VC+4}, v{VC+5}
    v_add_f32 v{VC+6}, v{VC+6}, v{VC+7}
    v_add_f32 v{VC}, v{VC}, v{VC+2}
    v_add_f32 v{VC+4}, v{VC+4}, v{VC+6}
    v_add_f32 v{VC}, v{VC}, v{VC+4}
    s_lshl_b32 s52, s2, 10
    s_lshl_b32 s53, s3, 8
    s_add_u32 s52, s52, s53
    s_add_u32 s52, s52, {WS_CSP}
    s_cmp_lt_u32 s2, 224
    s_cselect_b32 s52, s52, 0x80000000
    buffer_store_dword v{VC}, v9, s[20:23], s52 offen
    """)
    if timing:
        e("s_waitcnt vmcnt(0)")
        stamp(e, 5, 24)
        e("s_waitcnt lgkmcnt(0)\ns_mov_b32 s84, s44\ns_mov_b32 s86, s46")
        timing_store(e, "s[20:23]", 6, TS)
    e("L_k1_end:\ns_endpgm")
    return kstart(name) + e.text(), kdesc(name, 512, 102, 256), f"; @launch kernel={name} grid=(256,1,1) block=(256,1,1) lds={LDS_K1}\n"

if __name__ == "__main__":
    import sys
    kw = dict(a.split("=") for a in sys.argv[2:])
    kw = {k: (v if k in ("st_flags",) else bool(int(v))) for k, v in kw.items()}
    code, desc, launch = gen(**kw)
    open(sys.argv[1], "w").write(launch + HEADER + code + RODATA + desc)
```

```python
import sys, k1, g1s, g2s
from common import *
def build(fn, timing=False, **kw):
    parts = [k1.gen(timing=timing, st_flags=kw.get("k1st","")), g1s.gen(timing=timing, st_flags=kw.get("g1st","")), g2s.gen(timing=timing)]
    hdr = open("sequential_preLN__ssm_conv_h3__glu_gated_swiglu__prompt.s.ref").read().split("; Override")[0]
    o = hdr + "".join(p[2] for p in parts) + HEADER + "".join(p[0] for p in parts) + RODATA + ".p2align 6\n".join(p[1] for p in parts)
    open(fn, "w").write(o)
if __name__ == "__main__":
    kw = dict(a.split("=") for a in sys.argv[2:])
    t = bool(int(kw.pop("timing", "0")))
    build(sys.argv[1], t, **kw)
```

```python
from ag import *
WS_HF   = 0x0000000
WS_HHF  = 0x0400000
WS_KVT  = 0x1200000
WS_XT   = 0x1600000
WS_ST1  = 0x1A00000
WS_ST2  = 0x1A10000
WS_CS   = 0x1A20000
WS_CSP  = 0x1A30000
WS_FL   = 0x1AC0000
WS_EP   = 0x1AB0000
WS_XB   = 0x1C00000
WS_TM   = 0x1B00000
WS_SIZE = 268435456

class Em:
    def __init__(self):
        self.lines = []
        self.vm = []
    def __call__(self, s):
        for l in s.strip("\n").split("\n"):
            l = l.strip()
            if l: self.lines.append(l)
    def vmem(self, s, tag):
        self(s); self.vm.append(tag)
    def need(self, tags):
        last = -1
        for i, t in enumerate(self.vm):
            if t in tags: last = i
        if last < 0: return 63
        return min(63, len(self.vm) - 1 - last)
    def mark(self): return len(self.lines)
    def text(self, a=0, b=None): return "\n".join(self.lines[a:b]) + "\n"

def timing_store(e, srd, pts, sbase=60, region=0):
    e("s_waitcnt vmcnt(0) lgkmcnt(0)")
    e(f"s_lshl_b32 s41, s2, 2\ns_add_u32 s41, s41, {WS_TM + region*0x10000}\nv_mov_b32 v7, s41")
    for i in range(1, pts):
        e(f"s_sub_u32 s42, s{sbase+4*i}, s{sbase}\nv_mov_b32 v4, s42\nbuffer_store_dword v4, v7, {srd}, 0 offen\nv_add_u32 v7, 1024, v7")
    for i in range(1, pts):
        e(f"s_sub_u32 s42, s{sbase+4*i+2}, s{sbase+2}\nv_mov_b32 v4, s42\nbuffer_store_dword v4, v7, {srd}, 0 offen\nv_add_u32 v7, 1024, v7")
    e(f"v_mov_b32 v4, s{sbase+2}\nbuffer_store_dword v4, v7, {srd}, 0 offen")
def stamp(e, i, sbase=60):
    e(f"s_memtime s[{sbase+4*i}:{sbase+4*i+1}]\ns_memrealtime s[{sbase+4*i+2}:{sbase+4*i+3}]")

POLL_MAX = 20000
```

```python
from common import *
ROWB = 7168
MATB = 14336
STB  = 2 * MATB
R = 4
P = 7
RB = 8
NSTEP = 32
ACC0 = 32
def accb(tt, t): return ACC0 + (t * 4 + tt) * 4
def acc(tt, t): b = accb(tt, t); return f"v[{b}:{b+3}]"
def afr(t, j=None):
    b = t * 4
    return f"a[{b}:{b+3}]" if j is None else f"a[{b+2*j}:{b+2*j+1}]"
BF0 = 56
def bfr(slot, tt): b = BF0 + slot * 16 + tt * 4; return f"a[{b}:{b+3}]"
A_CSR, A_CSA, A_SEL, A_DUM = 184, 216, 224, 232
SK2 = 4
STB2 = SK2 * 8192
R2 = 4
RB2 = 8
P2 = 7
NSTEP2 = 56
NST2 = NSTEP2 // SK2
CS_LDS = R2 * STB2
LDS_G12 = CS_LDS + 8192
def accb2(tt, t): return 32 + (tt * 8 + t) * 4
def acc2(tt, t): b = accb2(tt, t); return f"v[{b}:{b+3}]"
def afr2(buf, t, j=None):
    b = buf * 32 + t * 4
    return f"a[{b}:{b+3}]" if j is None else f"a[{b+2*j}:{b+2*j+1}]"
def bfr2(slot, tt): b = 64 + slot * 8 + tt * 4; return f"a[{b}:{b+3}]"
TB = 96
RES = 112
VD0, VD1 = 28, 29

def k2_blocks(step):
    if step < 48: k = 7 * (step % 16) + 2 * (step // 16); return k, k + 1
    i = 2 * (step - 48); return 7 * i + 6, 7 * (i + 1) + 6

def roll(e, segs, label, ctr="s23"):
    txt = [e.text(a, b) for a, b in segs]
    out = ""; i = 0; nl = 0
    while i < len(txt):
        j = i
        while j + 1 < len(txt) and txt[j+1] == txt[i]: j += 1
        if j > i:
            out += f"s_mov_b32 {ctr}, 0\n{label}{nl}:\n" + txt[i] + f"s_add_u32 {ctr}, {ctr}, 1\ns_cmp_lt_u32 {ctr}, {j-i+1}\ns_cbranch_scc1 {label}{nl}\n"
            nl += 1
        else: out += txt[i]
        i = j + 1
    return out, nl

def gen(name="g12_kernel", timing=False, ldf="", wf="", w2pf=1, TL=0, nomfma2=False, noload2=False):
    e = Em()
    e(f"""
    s_cmp_ge_u32 s2, 256
    s_cbranch_scc1 L_g12_end
    s_load_dwordx4 s[44:47], s[0:1], {KA['dbg']}
    s_load_dwordx4 s[28:31], s[0:1], {KA['w1']}
    s_load_dwordx4 s[92:95], s[0:1], {KA['w2']}
    """)
    if timing: stamp(e, 0)
    e(f"""
    v_lshrrev_b32 v1, 6, v0
    v_and_b32 v0, 63, v0
    s_and_b32 s32, s2, 7
    v_readfirstlane_b32 s3, v1
    s_lshr_b32 s33, s2, 3
    s_and_b32 s34, s33, 7
    s_lshl_b32 s35, s32, 2
    s_lshr_b32 s36, s33, 3
    s_add_u32 s35, s35, s36
    s_lshl_b32 s36, s34, 3
    s_lshl_b32 s37, s3, 1
    s_add_u32 s36, s36, s37
    s_lshl_b32 s37, s36, 16
    s_and_b32 s38, s3, 1
    s_mul_i32 s38, s38, {32*ROWB}
    s_mul_i32 s39, s35, 224
    s_add_u32 s38, s38, s39
    """)
    for i in range(7):
        e(f"""
        v_add_u32 v11, {64*i}, v0
        v_mul_u32_u24 v12, 4682, v11
        v_lshrrev_b32 v12, 16, v12
        v_mul_u32_u24 v13, {ROWB - 224}, v12
        v_lshl_add_u32 v13, v11, 4, v13
        v_add_u32 v{4+i}, s38, v13
        """)
        if i % 4: e(f"v_subrev_u32 v{4+i}, {1024*(i%4)}, v{4+i}")
    e(f"""
    v_lshrrev_b32 v13, 5, v0
    v_lshlrev_b32 v2, 10, v13
    v_bfe_u32 v14, v0, 4, 1
    v_lshlrev_b32 v14, 9, v14
    v_and_b32 v15, 15, v0
    v_lshlrev_b32 v15, 4, v15
    v_add3_u32 v2, v2, v14, v15
    v_add_u32 v2, s37, v2
    v_add_u32 v3, 0x10000, v2
    s_lshr_b32 s40, s3, 1
    s_mul_i32 s40, s40, {MATB}
    s_and_b32 s41, s3, 1
    s_mul_i32 s41, s41, 7168
    s_add_u32 s40, s40, s41
    s_cmp_ge_u32 s3, 2
    s_waitcnt lgkmcnt(0)
    s_cselect_b32 s8, s30, s28
    s_cselect_b32 s9, s31, s29
    s_and_b32 s9, s9, 0xffff
    s_mov_b32 s10, {1024*ROWB}
    s_mov_b32 s11, 0x00020000
    s_mov_b32 s21, 0
    """)
    def dma(i, slot, soff, tag):
        if i % 4 == 0:
            e(f"s_add_u32 m0, s40, {slot*STB + (i//4)*4096}")
            e("s_nop 0")
        e.vmem(f"buffer_load_dwordx4 v{4+i}, s[8:11], {soff} offen offset:{1024*(i%4)} {wf} lds", tag)
    def tok1(step, tt, soff, imm):
        e.vmem(f"buffer_load_dwordx4 {bfr(step % RB, tt)}, v{2+(tt>>1)}, s[4:7], {soff} offen offset:{imm + 256*(tt&1)} {ldf}", ("T", step))
    def trread(step, t, j):
        st = step // 2; kp = step % 2; slot = st % R
        base = "v11" if slot < 2 else "v12"
        off = (slot % 2) * STB + (t & 1) * MATB + (32 * kp + 8 * j) * 224 + 32 * (t >> 1)
        e(f"ds_read_b64_tr_b16 {afr(t, j)}, {base} offset:{off}")
    def ptok(t):
        e(f"s_mov_b32 s20, {(t//2)*4096}")
        for tt in range(4): tok1(t, tt, "s20", (t % 2) * 2048)
    for i in range(7): dma(i, 0, "s21", ("D", 0))
    e(srd(4, 46, 0x400000))
    for t in range(2): ptok(t)
    if timing: stamp(e, 1)
    for st in range(1, R):
        e(f"s_mov_b32 s21, {st*64*ROWB}")
        for i in range(7): dma(i, st, "s21", ("D", st))
        for t in range(2*st, min(2*st+2, P)): ptok(t)
    e("s_lshl_b32 s41, s35, 11")
    for tt in range(4):
        e.vmem(f"buffer_load_dwordx4 v[{16+4*tt}:{19+4*tt}], v{2+(tt>>1)}, s[4:7], s41 offen offset:{256*(tt&1)} {ldf}", ("HS", 0))
    e(f"""
    v_lshrrev_b32 v13, 5, v0
    v_lshlrev_b32 v13, 4, v13
    v_bfe_u32 v14, v0, 2, 3
    v_add_u32 v13, v13, v14
    v_mul_u32_u24 v13, 224, v13
    v_and_b32 v14, 3, v0
    v_lshlrev_b32 v14, 3, v14
    v_add_u32 v11, v13, v14
    v_add_u32 v12, {2*STB}, v11
    s_add_u32 s12, s46, {WS_HHF}
    s_addc_u32 s13, s47, 0
    s_and_b32 s13, s13, 0xffff
    s_mov_b32 s14, {2048*3584*2}
    s_mov_b32 s15, 0x00020000
    {srd(16, 46, WS_SIZE)}
    {srd(48, 44, 256)}
    {srd(52, 92, 3584*2048)}
    {srd(88, 94, 2048*2048)}
    s_lshl_b32 s58, s2, 2
    s_add_u32 s58, s58, s3
    s_mul_i32 s58, s58, 7168
    v_lshlrev_b32 v1, 4, v0
    """)
    e(f"""
    v_bfe_u32 v13, v0, 2, 2
    v_lshrrev_b32 v14, 4, v0
    v_cmp_eq_u32 vcc, v13, v14
    v_and_b32 v13, 1, v0
    v_lshlrev_b32 v13, 4, v13
    v_mov_b32 v14, 0x3f80
    v_lshlrev_b32 v13, v13, v14
    v_cndmask_b32 v13, 0, v13, vcc
    v_and_b32 v14, 2, v0
    v_cmp_eq_u32 vcc, 0, v14
    v_accvgpr_write_b32 a{A_SEL+2}, 0
    v_accvgpr_write_b32 a{A_SEL+3}, 0
    v_cndmask_b32 v14, 0, v13, vcc
    v_cndmask_b32 v15, v13, 0, vcc
    v_accvgpr_write_b32 a{A_SEL+4}, 0
    v_accvgpr_write_b32 a{A_SEL+5}, 0
    v_accvgpr_write_b32 a{A_SEL}, v14
    v_accvgpr_write_b32 a{A_SEL+1}, v15
    v_accvgpr_write_b32 a{A_SEL+6}, v14
    v_accvgpr_write_b32 a{A_SEL+7}, v15
    """)
    e(f"s_mul_i32 s59, s34, {4*ROWB}")
    ex = []
    ex.append((3, lambda: e(f"s_waitcnt vmcnt({e.need([('HS',0)])})")))
    ex.append((1, "v_mov_b32 v15, 0x3f803f80"))
    for tt in range(4):
        x = 16 + 4*tt
        ex.append((1, f"v_dot2_f32_bf16 v14, v{x}, v{x}, 0"))
        for d in range(1, 4): ex.append((1, f"v_dot2_f32_bf16 v14, v{x+d}, v{x+d}, v14"))
        ex.append((1, f"v_dot2_f32_bf16 v13, v{x}, v15, 0"))
        for d in range(1, 4): ex.append((1, f"v_dot2_f32_bf16 v13, v{x+d}, v15, v13"))
        ex.append((1, f"s_nop 1\nv_mov_b32 v{x+1}, v14"))
        ex.append((1, f"s_nop 1\nv_mov_b32 v{x}, v13\ns_nop 1"))
    for o in (0, 1):
        ex.append((1, f"v_permlane32_swap_b32 v{16+o}, v{24+o}"))
        ex.append((1, f"v_permlane32_swap_b32 v{20+o}, v{28+o}"))
    for o in (0, 1):
        ex.append((1, f"v_add_f32 v{16+o}, v{16+o}, v{24+o}"))
        ex.append((1, f"v_add_f32 v{20+o}, v{20+o}, v{28+o}"))
    ex.append((1, f"s_lshl_b32 s41, s36, 7\ns_add_u32 s41, s41, {WS_ST2}\nv_lshlrev_b32 v14, 2, v0"))
    ex.append((1, "s_add_u32 s42, s41, 8192"))
    for o in (0, 1): ex.append((1, f"v_permlane16_swap_b32 v{16+o}, v{20+o}"))
    for o in (0, 1): ex.append((1, f"v_add_f32 v{16+o}, v{16+o}, v{20+o}"))
    ex.append((1, lambda: e.vmem("buffer_atomic_add_f32 v16, v14, s[16:19], s41 offen", ("AT", 0))))
    ex.append((1, lambda: e.vmem("buffer_atomic_add_f32 v17, v14, s[16:19], s42 offen", ("AT", 0))))
    ex.append((13, f"""
    s_lshl_b32 s57, s3, 11
    s_add_u32 s57, s57, {CS_LDS}
    v_lshl_add_u32 v13, v0, 5, s57
    ds_write_b128 v13, a[{A_CSA}:{A_CSA+3}]
    ds_write_b128 v13, a[{A_CSA+4}:{A_CSA+7}] offset:16
    v_lshl_add_u32 v13, v0, 2, s57
    """))
    for i in range(8): ex.append((13, f"ds_read_b32 v{18+i}, v13 offset:{(i >> 1)*448 + (i & 1)*224}"))
    ex.append((14, f"""
    s_lshr_b32 s56, s3, 1
    s_mul_i32 s56, s56, {3584*4}
    s_mul_i32 s57, s35, 448
    s_add_u32 s56, s56, s57
    s_add_u32 s56, s56, {WS_CS}
    v_lshlrev_b32 v13, 2, v0
    s_waitcnt lgkmcnt(12)
    """))
    ex.append((14, "v_pk_add_f32 v[18:19], v[18:19], v[20:21]"))
    ex.append((14, "v_pk_add_f32 v[22:23], v[22:23], v[24:25]"))
    ex.append((14, "v_pk_add_f32 v[18:19], v[18:19], v[22:23]"))
    def csat(i):
        def f():
            e("s_mov_b32 exec_hi, 0xffffff")
            e.vmem(f"buffer_atomic_add_f32 v{18+i}, v13, s[16:19], s56 offen offset:{224*i}", ("AT", 0))
            e("s_mov_b32 exec_hi, -1")
        return f
    for i in range(2): ex.append((14, csat(i)))
    ex.append((14, f"""
    s_lshl_b32 s43, s34, 7
    s_add_u32 s43, s43, s35
    s_lshl_b32 s43, s43, 7
    s_add_u32 s43, s43, {WS_FL + 32}
    s_lshl_b32 s56, s34, 7
    v_add_u32 v15, s56, v0
    v_and_b32 v13, 7, v0
    v_lshlrev_b32 v13, 7, v13
    v_add_u32 v13, s35, v13
    v_cmp_gt_u32 vcc, 32, v0
    v_and_b32 v14, 15, v0
    v_lshlrev_b32 v14, 2, v14
    v_cndmask_b32 v15, v13, v15, vcc
    v_lshlrev_b32 v15, 7, v15
    v_add_u32 v15, {WS_FL + 32}, v15
    v_mov_b32 v16, 0
    v_mov_b32 v17, 1
    """))
    ex.append((23, lambda: e.vmem("buffer_load_dword v16, v15, s[16:19], 0 offen sc1", ("PL", 0))))
    ex.append((24, f"""
    s_and_b32 s96, s32, 1
    s_bfe_u32 s97, s32, 0x10001
    s_lshl_b32 s97, s97, 3
    s_and_b32 s98, s33, 7
    s_add_u32 s97, s97, s98
    s_lshr_b32 s98, s32, 2
    s_lshl_b32 s98, s98, 2
    s_lshr_b32 s99, s33, 3
    s_add_u32 s98, s98, s99
    s_lshl_b32 s99, s97, 2
    s_add_u32 s99, s99, s3
    """))
    ex.append((24, f"""
    v_lshrrev_b32 v{VD1}, 4, v0
    v_lshlrev_b32 v30, 1, v{VD1}
    v_and_b32 v31, 15, v0
    v_xor_b32 v31, v30, v31
    v_lshlrev_b32 v31, 4, v31
    v_lshlrev_b32 v{VD1}, 11, v{VD1}
    s_and_b32 s100, s3, 1
    s_lshl_b32 s100, s100, 14
    s_lshl_b32 s101, s98, 8
    s_add_u32 s100, s100, s101
    v_add3_u32 v{VD0}, v{VD1}, v31, s100
    v_xor_b32 v{VD1}, 0x80, v{VD0}
    v_add_u32 v{VD1}, {4*2048 - 1024}, v{VD1}
    s_lshr_b32 s101, s3, 1
    s_mul_i32 s100, s96, 112
    s_add_u32 s100, s100, s101
    s_lshl_b32 s100, s100, 15
    s_mul_i32 s101, s101, {6*32768}
    s_lshl_b32 s26, s3, 11
    """))
    def chk():
        e(f"""
        s_waitcnt vmcnt({e.need([('PL',0)])})
        s_mov_b32 s57, 0
        L_g1_poll:
        v_cmp_eq_u32 vcc, 1, v16
        s_cmp_eq_u64 vcc, -1
        s_cbranch_scc1 L_g1_polled
        s_add_u32 s57, s57, 1
        s_cmp_gt_u32 s57, {POLL_MAX}
        s_cbranch_scc1 L_g1_polled
        s_sleep 1
        buffer_load_dword v16, v15, s[16:19], 0 offen sc1
        s_waitcnt vmcnt(0)
        s_branch L_g1_poll
        L_g1_polled:
        v_cmp_gt_u32 vcc, 28, v0
        v_mov_b32 v13, {WS_CS + 3584*4 - 448}
        v_mov_b32 v15, {WS_CS}
        s_mul_i32 s56, s35, 448
        v_cndmask_b32 v13, v13, v15, vcc
        s_lshl_b32 s57, s3, 11
        s_add_u32 m0, s57, {CS_LDS}
        v_add3_u32 v13, v13, v1, s56
        """)
        e.vmem("buffer_load_dwordx4 v13, s[16:19], 0 offen sc1 lds", ("S", 0))
        for tt in range(4):
            e.vmem(f"buffer_load_dword v{16+2*tt}, v14, s[16:19], s41 offen offset:{64*tt} sc1", ("S", 0))
            e.vmem(f"buffer_load_dword v{17+2*tt}, v14, s[16:19], s42 offen offset:{64*tt} sc1", ("S", 0))
    ex.append((27, chk))
    def pf2():
        e.vmem(f"buffer_load_dwordx4 a[{A_DUM}:{A_DUM+3}], v1, s[52:55], s58 offen", ("W2", 0))
        e("s_add_u32 s58, s58, 1024")
    cs_order = []
    for i in range(8): cs_order += [8 + i, i]
    def csload(n):
        e(f"s_add_u32 s56, s59, {cs_order[n]*64*ROWB}")
        b = A_CSR + 4 * (n % 8)
        e.vmem(f"buffer_load_dwordx4 a[{b}:{b+3}], v4, s[8:11], s56 offen", ("CS", n))
    def csmfma(n):
        b = A_CSR + 4 * (n % 8)
        e(f"s_waitcnt vmcnt({e.need([('CS', n)])})")
        for h_ in range(2):
            d = f"a[{A_CSA+4*h_}:{A_CSA+4*h_+3}]"
            e(f"v_mfma_f32_16x16x32_bf16 {d}, a[{A_SEL+4*h_}:{A_SEL+4*h_+3}], a[{b}:{b+3}], {'0' if n == 0 else d}")
    d2state = {"k": 0}
    def dma2(step):
        st = step // SK2; kp = step % SK2; slot = st % R2
        ka = k2_blocks(step)[0]
        if step > 0:
            dk = ka - d2state["k"]
            e(f"s_add_u32 s100, s100, {dk*32768}" if dk >= 0 else f"s_sub_u32 s100, s100, {-dk*32768}")
            if step == 48: e("s_add_u32 s100, s100, s101")
        d2state["k"] = ka
        e(f"s_add_u32 m0, s26, {slot*STB2 + kp*8192}")
        e("s_nop 0")
        e.vmem(f"buffer_load_dwordx4 v{VD0}, s[52:55], s100 offen lds", ("D2", st))
        e.vmem(f"buffer_load_dwordx4 v{VD1}, s[52:55], s100 offen offset:1024 lds", ("D2", st))
    e(f"s_mov_b32 s20, {P*2048}\ns_mov_b32 s22, {P*2048+4096}\ns_mov_b32 s21, {R*64*ROWB}")
    e(f"s_waitcnt vmcnt({e.need([('D',0)])})\ns_barrier")
    for t in range(14):
        for j in range(2): trread(0, t, j)
    if timing: stamp(e, 2)
    pend_dma = []
    d2pend = []
    for step in range(NSTEP):
        st = step // 2; kp = step % 2
        n = e.need([("T", step)])
        e(f"s_waitcnt vmcnt({n}) lgkmcnt(" + ("0" if step == 0 else "12") + ")")
        fill = [[] for _ in range(56)]
        if kp == 1 and st + R < 16: pend_dma += [(st + R, i) for i in range(7)]
        if step == 29: d2pend += list(range(8))
        if step + 1 < NSTEP:
            for t in range(14):
                fill[4*t + 3].append(("R", step + 1, t, 0))
                if t < 13: fill[4*t + 4].append(("R", step + 1, t, 1))
                else: fill[55].append(("R", step + 1, t, 1))
        if step + P < NSTEP:
            for tt in range(4): fill[5 + 4 * tt].append(("T", step + P, tt))
        nd = 4 if kp == 1 else 3
        for q in range(nd):
            if pend_dma: fill[21 + 4 * q].append(("D",) + pend_dma.pop(0))
        for q in range(3):
            if d2pend: fill[21 + 8 * q].append(("D2", d2pend.pop(0)))
        if 1 <= step <= 8:
            fill[37].append(("CSL", 2*(step-1))); fill[41].append(("CSL", 2*(step-1)+1))
        if 5 <= step <= 12:
            fill[1].append(("CSM", 2*(step-5))); fill[2].append(("CSM", 2*(step-5)+1))
        if w2pf and 9 <= step <= 21 and step % 2 == 1: fill[45].append(("PF2",))
        for i in range(56):
            t, tt = i // 4, i % 4
            if kp == 0 and step > 0 and i in (24, 48): e("s_waitcnt lgkmcnt(12)" if i == 24 else "s_waitcnt lgkmcnt(12)")
            c = "0" if step == 0 else acc(tt, t)
            e(f"v_mfma_f32_16x16x32_bf16 {acc(tt,t)}, {afr(t)}, {bfr(step%RB,tt)}, {c}")
            if kp == 1 and i == 2:
                n = e.need([("D", st + 1)] + ([("AT", 0)] if st == 8 else []))
                e(f"s_waitcnt vmcnt({n}) lgkmcnt(0)\ns_barrier" if st + 1 < 16 else "s_waitcnt lgkmcnt(0)\ns_barrier")
                if st == 8:
                    assert not [x for x in ex if x[0] <= 14]
                    e("s_cmp_eq_u32 s3, 0\ns_cselect_b32 s56, s43, 0x80000000\ns_mov_b64 exec, 1")
                    e.vmem("buffer_store_dword v17, v16, s[16:19], s56 offen sc1", ("SG", 0))
                    e("s_mov_b64 exec, -1")
            for f in fill[i]:
                if f[0] == "R": trread(f[1], f[2], f[3])
                elif f[0] == "T":
                    j4 = step % 4
                    tok1(f[1], f[2], "s20" if j4 < 2 else "s22", (j4 % 2) * 2048)
                    if j4 == 3 and f[2] == 3: e("s_add_u32 s20, s20, 8192\ns_add_u32 s22, s22, 8192")
                elif f[0] == "D":
                    dma(f[2], f[1] % R, "s21", ("D", f[1]))
                    if f[2] == 6: e(f"s_add_u32 s21, s21, {64*ROWB}")
                elif f[0] == "D2": dma2(f[1])
                elif f[0] == "CSL": csload(f[1])
                elif f[0] == "CSM": csmfma(f[1])
                elif f[0] == "PF2": pf2()
            if not fill[i] and i >= 4 and ex and ex[0][0] <= step:
                x = ex.pop(0)[1]
                if callable(x): x()
                else: e(x)
    assert not ex and not d2pend
    if timing: stamp(e, 3)
    e(f"""
    s_waitcnt vmcnt({e.need([('S',0)])})
    v_lshrrev_b32 v13, 4, v0
    s_lshl_b32 s57, s3, 11
    s_add_u32 s57, s57, {CS_LDS}
    v_lshl_add_u32 v1, v13, 4, s57
    v_and_b32 v14, 1, v13
    v_lshlrev_b32 v14, 9, v14
    v_lshrrev_b32 v13, 1, v13
    v_lshlrev_b32 v13, 8, v13
    v_and_b32 v15, 15, v0
    v_lshlrev_b32 v15, 4, v15
    v_add3_u32 v2, v13, v14, v15
    s_mul_i32 s41, s36, {224*1024}
    s_mul_i32 s42, s35, {7*1024}
    s_add_u32 s41, s41, s42
    v_add_u32 v2, s41, v2
    v_add_u32 v3, {224*1024}, v2
    s_mov_b32 s43, 0xbfb8aa3b
    s_mov_b32 s44, 4096
    s_lshl_b32 s47, s34, 2
    s_add_u32 s47, s47, s3
    s_lshl_b32 s47, s47, 5
    s_add_u32 s47, s47, s35
    s_lshl_b32 s47, s47, 7
    s_add_u32 s47, s47, {WS_FL}
    v_mov_b32 v30, 0
    v_mov_b32 v24, v16
    v_mov_b32 v25, v17
    v_mov_b32 v26, v18
    v_mov_b32 v27, v19
    s_mov_b32 s45, 0xba800000
    s_mov_b32 s46, 0x3a800000
    """)
    src = {0: (24, 25), 1: (26, 27), 2: (20, 21), 3: (22, 23)}
    for tt in range(4):
        m, r = src[tt]; b = 4 + 4 * tt
        e(f"""
        v_mul_f32 v{b}, s45, v{m}
        v_mul_f32 v{b+2}, s46, v{r}
        v_fma_f32 v{b+2}, -v{b}, v{b}, v{b+2}
        v_max_f32 v{b+2}, 0, v{b+2}
        v_add_f32 v{b+2}, 0x3727c5ac, v{b+2}
        v_rsq_f32 v{b+1}, v{b+2}
        s_nop 0
        v_mul_f32 v{b+1}, s43, v{b+1}
        """)
    def cread(u): e(f"ds_read_b128 v[20:23], v1 offset:{u*64}\nds_read_b128 v[24:27], v1 offset:{448+u*64}")
    def hhflag(val, tags):
        e(f"s_waitcnt vmcnt({e.need(tags)})\nv_mov_b32 v31, {val}\ns_mov_b64 exec, 1")
        e.vmem("buffer_store_dword v31, v30, s[16:19], s47 offen sc1", ("HF", val))
        e("s_mov_b64 exec, -1")
    cread(0)
    d2pend = list(range(8, 16))
    for u in range(7):
        e("s_waitcnt lgkmcnt(0)")
        G = [accb(tt, 2*u) for tt in range(4)]; U = [accb(tt, 2*u+1) for tt in range(4)]
        for tt in range(4):
            b = 4 + 4 * tt
            for p in range(2):
                g = G[tt] + 2*p; up = U[tt] + 2*p
                e(f"v_pk_fma_f32 v[{g}:{g+1}], v[{b}:{b+1}], v[{20+2*p}:{21+2*p}], v[{g}:{g+1}] op_sel_hi:[0,1,1]")
                e(f"v_pk_fma_f32 v[{up}:{up+1}], v[{b}:{b+1}], v[{24+2*p}:{25+2*p}], v[{up}:{up+1}] op_sel_hi:[0,1,1]")
        if u < 6: cread(u + 1)
        for tt in range(4):
            b = 4 + 4 * tt
            for p in range(2):
                g = G[tt] + 2*p; up = U[tt] + 2*p
                e(f"v_pk_mul_f32 v[{up}:{up+1}], v[{g}:{g+1}], v[{up}:{up+1}]")
                e(f"v_pk_mul_f32 v[{g}:{g+1}], v[{g}:{g+1}], v[{b}:{b+1}] op_sel:[0,1] op_sel_hi:[1,1]")
        for tt in range(4):
            for p in range(4): e(f"v_exp_f32 v{G[tt]+p}, v{G[tt]+p}")
        if d2pend and u < 4:
            dma2(d2pend.pop(0)); dma2(d2pend.pop(0))
        for tt in range(4):
            b = 4 + 4 * tt
            for p in range(2):
                g = G[tt] + 2*p
                e(f"v_pk_fma_f32 v[{g}:{g+1}], v[{g}:{g+1}], v[{b+2}:{b+3}], v[{b+2}:{b+3}] op_sel_hi:[1,0,0]")
        for tt in range(4):
            for p in range(4): e(f"v_rcp_f32 v{G[tt]+p}, v{G[tt]+p}")
        for tt in range(4):
            for p in range(2):
                g = G[tt] + 2*p; up = U[tt] + 2*p
                e(f"v_pk_mul_f32 v[{up}:{up+1}], v[{g}:{g+1}], v[{up}:{up+1}]")
        for i in range(2):
            d = G[2*i]
            e(f"v_cvt_pk_bf16_f32 v{d}, v{U[2*i]}, v{U[2*i]+1}")
            e(f"v_cvt_pk_bf16_f32 v{d+1}, v{U[2*i]+2}, v{U[2*i]+3}")
            e(f"v_cvt_pk_bf16_f32 v{d+2}, v{U[2*i+1]}, v{U[2*i+1]+1}")
            e(f"v_cvt_pk_bf16_f32 v{d+3}, v{U[2*i+1]+2}, v{U[2*i+1]+3}")
        e("s_nop 0")
        for i in range(2):
            d = G[2*i]
            e(f"v_permlane32_swap_b32 v{d}, v{d+2}\nv_permlane32_swap_b32 v{d+1}, v{d+3}")
        for i in range(2):
            d = G[2*i]
            so = "0" if u < 4 else "s44"
            e.vmem(f"buffer_store_dwordx4 v[{d}:{d+3}], v{2+i}, s[12:15], {so} offen offset:{(u%4)*1024} sc1", ("HH", u))
        if u == 4: hhflag(1, [("HH", 1)])
        if u == 6: hhflag(2, [("HH", 3)])
    if timing: stamp(e, 4)
    e(f"""
    s_lshr_b32 s41, s99, 1
    s_lshl_b32 s41, s41, 5
    s_lshl_b32 s42, s96, 4
    s_add_u32 s41, s41, s42
    s_lshl_b32 s41, s41, 7
    s_add_u32 s41, s41, {WS_FL}
    v_and_b32 v9, 15, v0
    v_lshlrev_b32 v9, 7, v9
    v_add_u32 v9, s41, v9
    """)
    e.vmem("buffer_load_dword v10, v9, s[16:19], 0 offen sc1", ("PL2", 1))
    e(f"""
    s_mul_i32 s37, s99, {224*1024}
    s_mul_i32 s38, s96, {112*1024}
    s_add_u32 s37, s37, s38
    v_bfe_u32 v14, v0, 4, 1
    v_lshlrev_b32 v14, 9, v14
    v_and_b32 v15, 15, v0
    v_lshlrev_b32 v15, 4, v15
    v_add3_u32 v4, v14, v15, s37
    v_lshrrev_b32 v13, 5, v0
    v_lshl_add_u32 v2, v13, 10, v4
    v_mul_u32_u24 v5, 7168, v13
    v_add_u32 v3, v4, v5
    v_lshlrev_b32 v5, 3, v13
    v_add3_u32 v5, v5, v14, v15
    s_lshl_b32 s41, s99, 16
    s_lshl_b32 s42, s98, 13
    s_add_u32 s41, s41, s42
    s_lshl_b32 s42, s96, 12
    s_add_u32 s41, s41, s42
    """)
    for tt in range(2):
        for t in range(4):
            b = RES + (tt * 4 + t) * 2
            e.vmem(f"buffer_load_dwordx2 v[{b}:{b+1}], v5, s[4:7], s41 offen offset:{t*1024 + tt*256} {ldf}", ("H", 0))
    e(f"""
    v_lshlrev_b32 v13, 4, v13
    v_bfe_u32 v14, v0, 2, 3
    v_add_u32 v13, v13, v14
    v_lshlrev_b32 v13, 8, v13
    v_and_b32 v15, 3, v0
    v_lshlrev_b32 v15, 3, v15
    v_add_u32 v13, v13, v15
    s_lshl_b32 s40, s96, 2
    v_xor_b32 v14, s40, v14
    v_lshl_add_u32 v13, v14, 5, v13
    """)
    for t in range(8):
        e(f"v_xor_b32 v{TB+t}, {t*32}, v13\nv_add_u32 v{TB+8+t}, {2*STB2}, v{TB+t}")
    npoll = [0]
    def poll2(val):
        k = npoll[0]; npoll[0] += 1
        e(f"""
        s_waitcnt vmcnt({e.need([('PL2', val)])})
        s_mov_b32 s57, 0
        L_g2_pollA{k}:
        v_cmp_le_u32 vcc, {val}, v10
        s_cmp_eq_u64 vcc, -1
        s_cbranch_scc1 L_g2_polledA{k}
        s_add_u32 s57, s57, 1
        s_cmp_gt_u32 s57, {POLL_MAX}
        s_cbranch_scc1 L_g2_polledA{k}
        buffer_load_dword v10, v9, s[16:19], 0 offen sc1
        s_waitcnt vmcnt(0)
        s_branch L_g2_pollA{k}
        L_g2_polledA{k}:
        """)
    t2state = {"k": 0}
    def toks2(step):
        ka = k2_blocks(step)[0]
        if step == 0: e("s_mov_b32 s20, 0")
        else:
            dk = ka - t2state["k"]
            e(f"s_add_u32 s20, s20, {dk*1024}" if dk >= 0 else f"s_sub_u32 s20, s20, {-dk*1024}")
        t2state["k"] = ka
        for tt in range(2):
            e.vmem(f"buffer_load_dwordx4 {bfr2(step % RB2, tt)}, {'v2' if step < 48 else 'v3'}, s[12:15], s20 offen offset:{256*tt} sc1", ("T2", step))
    def trread2(step, t, j):
        st = step // SK2; kp = step % SK2; slot = st % R2
        base = f"v{TB+t}" if slot < 2 else f"v{TB+8+t}"
        off = (slot % 2) * STB2 + kp * 8192 + j * 2048
        e(f"ds_read_b64_tr_b16 {afr2(step % 2, t, j)}, {base} offset:{off}")
    e(f"s_waitcnt vmcnt({e.need([('D2',0)])})\ns_barrier")
    for t in range(8):
        for j in range(2): trread2(0, t, j)
    poll2(1)
    for t in range(P2): toks2(t)
    e(f"s_waitcnt vmcnt({e.need([('H',0)])})")
    for tt in range(2):
        for t in range(4):
            b = RES + (tt * 4 + t) * 2; a = accb2(tt, t)
            e(f"v_lshlrev_b32 v{a}, 16, v{b}\nv_and_b32 v{a+1}, 0xffff0000, v{b}\nv_lshlrev_b32 v{a+2}, 16, v{b+1}\nv_and_b32 v{a+3}, 0xffff0000, v{b+1}")
    e(f"""
    v_lshlrev_b32 v6, 4, v0
    s_lshl_b32 s43, s2, 2
    s_add_u32 s43, s43, s3
    s_xor_b32 s44, s43, 4
    s_lshl_b32 s45, s43, 7
    s_lshl_b32 s46, s44, 7
    s_add_u32 s45, s45, {WS_FL + 64}
    s_add_u32 s46, s46, {WS_FL + 64}
    s_lshl_b32 s43, s43, 13
    s_lshl_b32 s44, s44, 13
    s_add_u32 s43, s43, {WS_XB}
    s_add_u32 s44, s44, {WS_XB}
    s_add_u32 s58, s43, 4096
    s_add_u32 s59, s44, 4096
    """)
    if timing: stamp(e, 5)
    pend = []
    for step in range(NSTEP2):
        st = step // SK2; kp = step % SK2
        n = e.need([("T2", step)])
        e(f"s_waitcnt vmcnt({n}) lgkmcnt(0)")
        fill = [[] for _ in range(16)]
        g0 = 0
        if kp == SK2 - 1:
            g0 = 2
            if st + R2 < NST2: pend += [(st + R2) * SK2 + i for i in range(SK2)]
        if step + 1 < NSTEP2:
            k = 0
            for t in range(8):
                for j in range(2):
                    fill[g0 + (k * 3) // 4].append(("R", step + 1, t, j)); k += 1
        if step == 0: fill[14].append(("HF3",))
        if step in (4, 18): fill[14].append(("PL", 2 if step == 4 else 3))
        if step + P2 in (16, 32): fill[g0 + 12].append(("CK", 2 if step + P2 == 16 else 3))
        if step + P2 < NSTEP2 and not noload2: fill[g0 + 12].append(("T", step + P2))
        if pend: fill[g0 + 13].append(("D", pend.pop(0)))
        for i in range(16):
            tt, t = i // 8, i % 8
            c = "0" if (step == 0 and t >= 4) else acc2(tt, t)
            if not nomfma2: e(f"v_mfma_f32_16x16x32_bf16 {acc2(tt,t)}, {afr2(step%2,t)}, {bfr2(step%RB2,tt)}, {c}")
            if kp == SK2 - 1 and i == 1 and st + 1 < NST2:
                n = e.need([("D2", st + 1)])
                e(f"s_waitcnt vmcnt({n})\ns_barrier")
            for f in fill[i]:
                if f[0] == "R": trread2(f[1], f[2], f[3])
                elif f[0] == "T": toks2(f[1])
                elif f[0] == "D":
                    if not noload2: dma2(f[1])
                elif f[0] == "HF3": hhflag(3, [("HH", 6)])
                elif f[0] == "PL": e.vmem("buffer_load_dword v10, v9, s[16:19], 0 offen sc1", ("PL2", f[1]))
                elif f[0] == "CK": poll2(f[1])
    if timing: stamp(e, 6)
    e(f"""
    v_and_b32 v15, 15, v0
    v_lshlrev_b32 v15, 11, v15
    v_bfe_u32 v14, v0, 4, 1
    v_lshlrev_b32 v14, 5, v14
    v_lshrrev_b32 v13, 5, v0
    v_lshlrev_b32 v13, 4, v13
    v_add3_u32 v3, v13, v14, v15
    s_lshl_b32 s41, s99, 16
    s_lshl_b32 s42, s98, 8
    s_add_u32 s41, s41, s42
    s_lshl_b32 s42, s96, 7
    s_add_u32 s41, s41, s42
    s_add_u32 s42, s41, 32768
    v_mov_b32 v7, 0
    v_mov_b32 v8, 1
    """)
    for tt in range(2):
        for t in range(4):
            e(f"buffer_store_dwordx4 {acc2(tt, 4+t)}, v6, s[16:19], {'s43' if tt == 0 else 's58'} offen offset:{t*1024} sc1")
    e(f"""
    s_waitcnt vmcnt(0)
    s_mov_b64 exec, 1
    buffer_store_dword v8, v7, s[16:19], s45 offen sc1
    s_mov_b64 exec, -1
    s_mov_b32 s57, 0
    L_g2_poll:
    buffer_load_dword v9, v7, s[16:19], s46 offen sc1
    s_waitcnt vmcnt(0)
    v_readfirstlane_b32 s56, v9
    s_cmp_eq_u32 s56, 1
    s_cbranch_scc1 L_g2_polled
    s_add_u32 s57, s57, 1
    s_cmp_gt_u32 s57, {POLL_MAX}
    s_cbranch_scc1 L_g2_polled
    s_branch L_g2_poll
    L_g2_polled:
    """)
    for tt in range(2):
        for t in range(4):
            b = RES + (tt * 4 + t) * 4
            e(f"buffer_load_dwordx4 v[{b}:{b+3}], v6, s[16:19], {'s44' if tt == 0 else 's59'} offen offset:{t*1024} sc1")
    for tt in range(2):
        for tp in range(2):
            e(f"s_waitcnt vmcnt({6 - (tt*2+tp)})")
            a0 = accb2(tt, 2*tp); a1 = accb2(tt, 2*tp+1); d = 16 + (tt*2+tp)*4
            r0 = RES + (tt*4 + 2*tp)*4; r1 = r0 + 4
            for (a, r) in ((a0, r0), (a1, r1)):
                e(f"v_pk_add_f32 v[{a}:{a+1}], v[{a}:{a+1}], v[{r}:{r+1}]\nv_pk_add_f32 v[{a+2}:{a+3}], v[{a+2}:{a+3}], v[{r+2}:{r+3}]")
            e(f"v_cvt_pk_bf16_f32 v{d}, v{a0}, v{a0+1}\nv_cvt_pk_bf16_f32 v{d+1}, v{a0+2}, v{a0+3}\nv_cvt_pk_bf16_f32 v{d+2}, v{a1}, v{a1+1}\nv_cvt_pk_bf16_f32 v{d+3}, v{a1+2}, v{a1+3}")
            e("s_nop 1")
            e(f"v_permlane16_swap_b32 v{d}, v{d+2}\nv_permlane16_swap_b32 v{d+1}, v{d+3}")
            e(f"buffer_store_dwordx4 v[{d}:{d+3}], v3, s[88:91], {'s41' if tt==0 else 's42'} offen offset:{tp*64}")
    if timing:
        e("s_waitcnt vmcnt(0)")
        stamp(e, 7, 4)
        e("s_waitcnt lgkmcnt(0)\ns_mov_b32 s88, s32\ns_mov_b32 s90, s34")
        timing_store(e, "s[16:19]", 8, 60, 1)
    e("L_g12_end:\ns_endpgm")
    return kstart(name) + e.text(), kdesc(name, 512, 102, 256), f"; @launch kernel={name} grid=(256,1,1) block=(256,1,1) lds={LDS_G12}\n"
```

```python
from common import *
CPS = 4160
XR = 8 * CPS
CH = XR + 4608 + 64
CSL = 4 * CH
CNT = CSL + 8192
LDS_K1 = CNT + 64
VK = 16
VV = 38
VX = 54
VS = 70
VU = 86
VKV = 130
VC = 162
VW = 86
VCA = 226
VSEL = 234
VT = 242
VF = 130
FR = 8
FD = 6
ACC = 86
def gfr(q, r): b = 4 * (q * 8 + r); return f"a[{b}:{b+3}]"
def ffr(m): b = VF + 4 * (m % FR); return f"v[{b}:{b+3}]"
def acc(j): b = ACC + 4 * j; return f"v[{b}:{b+3}]"

class Col:
    def __init__(self): self.l = []
    def __call__(self, t):
        for l in t.strip("\n").split("\n"):
            if l.strip(): self.l.append(l.strip())

def body(e, timing=False, st_flags="", nox=False, nocs=True, wpf=1, pfl="nt", csl="nt", xl="", sll="", xpfl="", x0=4, xd=8, cm0=256, cmd=2, TS=64, sw=1, xpf=0, ncspre=4, cs0=2, csd=4, slpos=1):
    e(f"""
    s_load_dwordx8 s[24:31], s[0:1], 0
    s_load_dwordx4 s[32:35], s[0:1], 32
    s_load_dwordx4 s[36:39], s[0:1], {KA['w1']}
    s_load_dwordx4 s[44:47], s[0:1], {KA['dbg']}
    """)
    if timing: stamp(e, 0, TS)
    e(f"""
    v_lshrrev_b32 v1, 6, v0
    v_and_b32 v0, 63, v0
    s_and_b32 s40, s2, 7
    v_readfirstlane_b32 s3, v1
    s_lshl_b32 s40, s40, 5
    s_lshr_b32 s41, s2, 3
    s_add_u32 s40, s40, s41
    s_lshl_b32 s41, s40, 3
    s_lshl_b32 s42, s3, 20
    s_add_u32 s42, s42, s41
    v_lshlrev_b32 v2, 14, v0
    v_add_u32 v2, s42, v2
    v_lshlrev_b32 v4, 4, v0
    s_lshl_b32 s61, s40, 2
    s_add_u32 s61, s61, s3
    s_lshl_b32 s61, s61, 12
    v_add_u32 v6, s61, v4
    v_subrev_u32 v7, 16, v6
    v_cmp_eq_u32 vcc, 0, v0
    v_mov_b32 v8, 0x80000000
    s_mul_i32 s62, s3, {CH}
    v_cndmask_b32 v8, v7, v8, vcc
    s_bfe_u32 s63, s40, 0x30001
    s_lshl_b32 s63, s63, 11
    s_bitcmp1_b32 s40, 0
    s_waitcnt lgkmcnt(0)
    s_cselect_b32 s12, s28, s26
    s_cselect_b32 s13, s29, s27
    s_and_b32 s13, s13, 0xffff
    s_mov_b32 s14, 4194304
    s_mov_b32 s15, 0x00020000
    """)
    e.vmem(f"buffer_load_dword v255, v2, s[12:15], s63 offen {pfl}", "PF")
    e(srd(16, 32, 4194304))
    for c in range(4):
        e.vmem(f"buffer_load_dwordx4 v[{VW+8*c}:{VW+8*c+3}], {'v8' if c == 0 else 'v7'}, s[16:19], 0 offen offset:{1024*c} {pfl}", ("KW", c))
        e.vmem(f"buffer_load_dwordx4 v[{VW+8*c+4}:{VW+8*c+7}], v6, s[16:19], 0 offen offset:{1024*c} {pfl}", ("KW", c))
    e(f"""
    s_lshl_b32 s48, s40, 5
    s_add_u32 s30, s30, s48
    s_addc_u32 s31, s31, 0
    s_load_dwordx8 s[52:59], s[30:31], 0
    s_add_u32 s34, s34, s41
    s_addc_u32 s35, s35, 0
    s_load_dwordx2 s[50:51], s[34:35], 0
    {srd(4, 24, 4194304)}
    {srd(8, 26, 4194304)}
    {srd(12, 28, 4194304)}
    {srd(20, 46, WS_SIZE)}
    s_lshl_b32 s43, s2, 14
    s_lshl_b32 s48, s3, 12
    s_add_u32 s43, s43, s48
    v_add_u32 v5, s43, v4
    v_xor_b32 v3, 15, v0
    v_lshlrev_b32 v3, 11, v3
    v_add_u32 v3, s42, v3
    v_mov_b32 v{VC}, 0
    v_mov_b32 v{VC+1}, 0
    v_mov_b32 v{VC+2}, 0
    v_mov_b32 v{VC+3}, 0
    v_add_u32 v9, s62, v4
    v_mul_u32_u24 v10, {CPS}, v0
    v_add_u32 v10, s62, v10
    s_mov_b32 exec_hi, 0
    ds_write_b128 v9, v[{VC}:{VC+3}] offset:{XR+4096}
    s_mov_b32 exec_lo, 0xff
    ds_write_b128 v10, v[{VC}:{VC+3}]
    v_mov_b32 v10, {CNT}
    ds_write_b32 v10, v{VC}
    s_mov_b32 exec_lo, 15
    s_lshl_b32 s43, s2, 6
    s_add_u32 s43, s43, {WS_ST2}
    s_cmp_eq_u32 s3, 0
    s_cselect_b32 s43, s43, 0x80000000
    """)
    e.vmem(f"buffer_store_dwordx4 v[{VC}:{VC+3}], v4, s[20:23], s43 offen sc1", "Z")
    e(f"s_lshl_b32 s43, s2, 7\ns_add_u32 s43, s43, {WS_CS}\ns_mov_b32 exec_lo, 0xff\ns_cmp_eq_u32 s3, 1\ns_cselect_b32 s43, s43, 0x80000000")
    e.vmem(f"buffer_store_dwordx4 v[{VC}:{VC+3}], v4, s[20:23], s43 offen sc1", "Z")
    e(f"s_lshl_b32 s43, s2, 9\ns_lshl_b32 s48, s3, 7\ns_add_u32 s43, s43, s48\ns_add_u32 s43, s43, {WS_FL}\ns_mov_b32 exec_lo, 0xff\ns_cmp_eq_u32 s3, 0")
    e.vmem(f"buffer_store_dwordx4 v[{VC}:{VC+3}], v4, s[20:23], s43 offen sc1", "Z")
    e(f"""
    s_mov_b64 exec, -1
    v_subrev_u32 v6, {3*2048}, v2
    s_cselect_b32 s43, 0x80000000, 0
    v_or_b32 v6, s43, v6
    s_mov_b32 s48, 4096
    s_mov_b32 s49, 8192
    s_mov_b32 s60, 12288
    """)
    e(f"""
    v_bfe_u32 v11, v0, 2, 2
    v_lshrrev_b32 v12, 4, v0
    v_cmp_eq_u32 vcc, v11, v12
    v_and_b32 v11, 1, v0
    v_lshlrev_b32 v11, 4, v11
    v_mov_b32 v12, 0x3f80
    v_lshlrev_b32 v11, v11, v12
    v_cndmask_b32 v11, 0, v11, vcc
    v_and_b32 v12, 2, v0
    v_cmp_eq_u32 vcc, 0, v12
    v_mov_b32 v{VSEL+2}, 0
    v_mov_b32 v{VSEL+3}, 0
    v_cndmask_b32 v{VSEL}, 0, v11, vcc
    v_cndmask_b32 v{VSEL+1}, v11, 0, vcc
    v_mov_b32 v{VSEL+4}, 0
    v_mov_b32 v{VSEL+5}, 0
    v_mov_b32 v{VSEL+6}, v{VSEL}
    v_mov_b32 v{VSEL+7}, v{VSEL+1}
    """)
    e("s_waitcnt lgkmcnt(0)\ns_barrier")
    e(f"s_waitcnt vmcnt({e.need(['PF'] + ([('KW', 3)] if sw else []))})")
    if timing: stamp(e, 1, TS)
    c_ = Col()
    nt = 0
    for c in range(2):
        W = VW + 8*c
        c_(f"@W{c}")
        for s in range(8):
            sh = s + 1
            off = s*CPS + 16 + 1024*c
            if sh % 4 == 0:
                b = W + sh // 2
                c_(f"ds_write_b128 v9, v[{b}:{b+3}] offset:{off}")
            else:
                t = VW + 32 + 4 * (nt % 8); nt += 1
                for d in range(4):
                    if sh % 2 == 0: c_(f"v_mov_b32 v{t+d}, v{W + sh//2 + d}")
                    else: c_(f"v_alignbit_b32 v{t+d}, v{W + sh//2 + d + 1}, v{W + sh//2 + d}, 16")
                c_(f"ds_write_b128 v9, v[{t}:{t+3}] offset:{off}")
    T = VT
    c_(f"@SLW\ns_mov_b32 s43, 0x3f803f80\nv_mov_b32 v{T}, 0\nv_mov_b32 v{T+1}, 0\nv_mov_b32 v{T+2}, 0\nv_mov_b32 v{T+3}, 0\nv_mov_b32 v{T+4}, s43")
    for i in range(8):
        for r in range(2):
            x = VS + 8*r + i
            c_(f"v_dot2_f32_bf16 v{T+2*r}, v{x}, v{T+4}, v{T+2*r}\nv_dot2_f32_bf16 v{T+1+2*r}, v{x}, v{x}, v{T+1+2*r}")
    c_("s_nop 2")
    for op in ["row_shr:1", "row_shr:2", "row_shr:4", "row_shr:8"]:
        for r in range(4): c_(f"v_add_f32_dpp v{T+r}, v{T+r}, v{T+r} {op} row_mask:0xf bank_mask:0xf bound_ctrl:0")
    for op, m in [("row_bcast:15", "0xa"), ("row_bcast:31", "0xc")]:
        for r in range(4): c_(f"v_add_f32_dpp v{T+r}, v{T+r}, v{T+r} {op} row_mask:{m} bank_mask:0xf")
    c_(f"""
    s_mov_b32 s43, 0x3a800000
    v_mul_f32 v{T}, s43, v{T}
    v_mul_f32 v{T+2}, s43, v{T+2}
    v_mul_f32 v{T+1}, s43, v{T+1}
    v_mul_f32 v{T+3}, s43, v{T+3}
    v_fma_f32 v{T+1}, -v{T}, v{T}, v{T+1}
    v_fma_f32 v{T+3}, -v{T+2}, v{T+2}, v{T+3}
    v_max_f32 v{T+1}, 0, v{T+1}
    v_max_f32 v{T+3}, 0, v{T+3}
    v_add_f32 v{T+1}, 0x3727c5ac, v{T+1}
    v_add_f32 v{T+3}, 0x3727c5ac, v{T+3}
    v_rsq_f32 v{T+1}, v{T+1}
    v_rsq_f32 v{T+3}, v{T+3}
    s_lshl_b32 s43, s2, 6
    s_lshl_b32 s61, s3, 4
    s_add_u32 s43, s43, s61
    s_add_u32 s43, s43, {WS_ST1}
    v_mov_b32 v12, 0
    @SS
    """)
    for c in range(2, 4):
        W = VW + 8*c
        c_(f"@W{c}")
        for s in range(8):
            sh = s + 1
            off = s*CPS + 16 + 1024*c
            if sh % 4 == 0:
                b = W + sh // 2
                c_(f"ds_write_b128 v9, v[{b}:{b+3}] offset:{off}")
            else:
                t = VW + 32 + 4 * (nt % 8); nt += 1
                for d in range(4):
                    if sh % 2 == 0: c_(f"v_mov_b32 v{t+d}, v{W + sh//2 + d}")
                    else: c_(f"v_alignbit_b32 v{t+d}, v{W + sh//2 + d + 1}, v{W + sh//2 + d}, 16")
                c_(f"ds_write_b128 v9, v[{t}:{t+3}] offset:{off}")
    so = ["0", "s48", "s49", "s60"]
    loads = []
    for j in range(8):
        loads.append(("K", f"buffer_load_dwordx2 v[{VK+6+2*j}:{VK+7+2*j}], v2, s[8:11], {so[j//2]} offen offset:{(j%2)*2048}"))
        if j == slpos: loads.append(("SL", None))
    loads.append(("H", None))
    for j in range(8): loads.append(("V", f"buffer_load_dwordx2 v[{VV+2*j}:{VV+1+2*j}], v2, s[12:15], {so[j//2]} offen offset:{(j%2)*2048}"))
    va = c_.l
    every = len(va) // len(loads)
    def issue(ld):
        if ld[0] == "H":
            e("s_mov_b64 exec, 1")
            for j in range(3):
                e.vmem(f"buffer_load_dwordx2 v[{VK+2*j}:{VK+1+2*j}], v6, s[8:11], {so[j//2]} offen offset:{(j%2)*2048}", "K")
            e("s_mov_b64 exec, -1")
        elif ld[0] == "SL":
            for i in range(4):
                e.vmem(f"buffer_load_dwordx4 v[{VS+4*i}:{VS+4*i+3}], v5, s[4:7], 0 offen offset:{i*1024} {sll}", "SL")
        else: e.vmem(ld[1], ld[0])
    for n_, l in enumerate(va):
        if n_ % every == 0 and loads: issue(loads.pop(0))
        if l == "@SS":
            e("s_mov_b32 exec_lo, 0\ns_mov_b32 exec_hi, 0x80000000")
            e.vmem(f"buffer_store_dwordx4 v[{T}:{T+3}], v12, s[20:23], s43 offen sc1", "SS")
            e("s_mov_b64 exec, -1")
        elif l == "@SLW": e(f"s_waitcnt vmcnt({e.need(['SL'])})")
        elif l.startswith("@W"): e(f"s_waitcnt vmcnt({e.need([('KW', int(l[2:]))])})")
        else: e(l)
    assert not loads
    e(f"""
    s_lshr_b32 s49, s2, 3
    s_cmp_ge_u32 s49, 16
    s_cselect_b32 s16, s38, s36
    s_cselect_b32 s17, s39, s37
    s_and_b32 s17, s17, 0xffff
    s_mov_b32 s18, {1024*7168}
    s_mov_b32 s19, 0x00020000
    s_and_b32 s49, s49, 15
    s_lshl_b32 s49, s49, 2
    s_add_u32 s49, s49, s3
    s_mul_i32 s60, s49, {16*7168}
    s_and_b32 s49, s2, 7
    s_mul_i32 s49, s49, 896
    s_add_u32 s60, s60, s49
    v_cmp_gt_u32 vcc, 56, v0
    v_mov_b32 v9, 0x80000000
    s_nop 0
    v_cndmask_b32 v9, v9, v4, vcc
    """)
    e(f"""
    v_mul_u32_u24 v252, 9363, v0
    v_lshrrev_b32 v252, 16, v252
    v_mul_u32_u24 v252, {7168 - 896}, v252
    v_lshl_add_u32 v254, v0, 7, v252
    v_cndmask_b32 v254, v9, v254, vcc
    s_lshr_b32 s49, s2, 3
    s_and_b32 s49, s49, 15
    s_lshl_b32 s49, s49, 2
    s_add_u32 s49, s49, s3
    s_mul_i32 s61, s49, {8*7168}
    s_and_b32 s49, s2, 7
    s_mul_i32 s49, s49, 896
    s_add_u32 s61, s61, s49
    """)
    def csload(i):
        e.vmem(f"buffer_load_dwordx4 v[{VC+4*i}:{VC+4*i+3}], v9, s[16:19], s60 offen {csl}", ("CS", i))
        e(f"s_add_u32 s60, s60, 7168")
    e("s_waitcnt lgkmcnt(0)")
    for j in range(4):
        for c in range(4):
            src = 52 + 2*c + (j >> 1); d = 84 + 4*j + c
            e(f"s_lshl_b32 s{d}, s{src}, 16" if j % 2 == 0 else f"s_and_b32 s{d}, s{src}, 0xffff0000")
    e(f"""
    s_cmp_ge_u32 s3, 2
    s_cselect_b32 s48, s51, s50
    s_bitcmp1_b32 s3, 0
    s_cselect_b32 s49, 0, 16
    s_lshl_b32 s48, s48, s49
    s_and_b32 s48, s48, 0xffff0000
    {srd(36, 44, 256)}
    v_and_b32 v12, 7, v0
    v_mul_u32_u24 v10, {CPS}, v12
    v_bfe_u32 v12, v0, 3, 1
    v_lshrrev_b32 v13, 4, v0
    v_add_u32 v12, v12, v13
    v_lshl_add_u32 v10, v12, 4, v10
    v_add_u32 v10, s62, v10
    v_and_b32 v12, 15, v0
    v_lshlrev_b32 v12, 5, v12
    v_lshlrev_b32 v13, 4, v13
    v_sub_u32 v11, v13, v12
    s_add_u32 s52, s62, {XR + 4064 - 3584}
    v_add_u32 v11, s52, v11
    v_lshrrev_b32 v13, 1, v13
    v_add_u32 v12, v12, v13
    s_add_u32 s52, s62, {XR + 4088 - 3584}
    v_sub_u32 v12, s52, v12
    s_lshl_b32 s49, s3, 10
    s_sub_u32 s49, {XR + 4080}, s49
    v_sub_u32 v8, s49, v4
    v_add_u32 v7, {2*CH}, v8
    """)
    e(f"s_waitcnt vmcnt({e.need(['K', 'SS', 'Z'])})")
    e(f"""
    v_mov_b32 v13, {CNT}
    v_mov_b32 v14, 1
    s_mov_b64 exec, 1
    ds_add_rtn_u32 v15, v13, v14
    s_waitcnt lgkmcnt(0)
    v_readfirstlane_b32 s52, v15
    s_and_b32 s53, s2, 7
    s_lshl_b32 s53, s53, 5
    s_cmp_eq_u32 s52, 3
    s_cselect_b32 s52, s53, 0x1000
    v_mov_b32 v15, 0
    """)
    e.vmem("buffer_atomic_add v14, v15, s[36:39], s52 offen sc1", "SIG")
    e("s_mov_b64 exec, -1")
    for j in range(3):
        for d in range(2):
            e(f"v_mov_b32_dpp v{VK+2*j+d}, v{VK+6+2*(5+j)+d} wave_shr:1 row_mask:0xf bank_mask:0xf")
    for r in list(range(3, 11)) + [0, 1, 2]:
        for d in range(2):
            e(f"v_lshlrev_b32 v{VU+4*r+2*d}, 16, v{VK+2*r+d}\nv_and_b32 v{VU+4*r+2*d+1}, 0xffff0000, v{VK+2*r+d}")
    for i in range(8):
        for j in range(4):
            for cp in range(2):
                o = VKV + 4*i + 2*cp
                kr = VU + 4*(i + 3 - j) + 2*cp
                w = 84 + 4*j + 2*cp
                if j == 0: e(f"v_pk_mul_f32 v[{o}:{o+1}], v[{kr}:{kr+1}], s[{w}:{w+1}]")
                else: e(f"v_pk_fma_f32 v[{o}:{o+1}], v[{kr}:{kr+1}], s[{w}:{w+1}], v[{o}:{o+1}]")
    e(f"s_waitcnt vmcnt({e.need(['V', 'SS', 'Z'])})")
    if timing: stamp(e, 2, TS)
    pre = ([("WPF",)] if wpf else []) + ([("XPF",)] if xpf else []) + ([] if nocs else [("CS", i) for i in range(ncspre)])
    def prel():
        if pre:
            x = pre.pop(0)
            if x[0] == "XPF": e.vmem(f"buffer_load_dword v255, v2, s[4:7], s63 offen {xpfl}", "XPF")
            elif x[0] == "WPF": e.vmem(f"buffer_load_dword v255, v254, s[16:19], s61 offen", "WPF")
            else: csload(x[1])
    for i in range(8):
        for cp in range(2):
            o = VKV + 4*i + 2*cp; sv = VV + 2*i + cp; t = VK + 2*((2*i+cp) % 8)
            e(f"v_lshlrev_b32 v{t}, 16, v{sv}\nv_and_b32 v{t+1}, 0xffff0000, v{sv}\nv_pk_mul_f32 v[{o}:{o+1}], v[{o}:{o+1}], v[{t}:{t+1}]")
        if i % 2 == 0: prel()
    for c in range(4):
        b = VV + 4*c
        for d in range(4):
            e(f"v_cvt_pk_bf16_f32 v{b+d}, v{VKV+4*(7-2*d)+c}, v{VKV+4*(6-2*d)+c}")
        e(f"ds_write_b128 {'v8' if c < 2 else 'v7'}, v[{b}:{b+3}] offset:{(c%2)*CH}")
    while pre: prel()
    e(f"s_waitcnt lgkmcnt(0)\ns_barrier")
    if timing: stamp(e, 3, TS)
    lds = []
    def fread(m): e(f"ds_read_b128 {ffr(m)}, v10 offset:{64*m}"); lds.append(f"F{m}")
    def gread(q, r): e(f"ds_read_b128 {gfr(q,r)}, v11 offset:{512*(7-q) + 64*r}"); lds.append(f"G{r}")
    def lwait(tags):
        nonlocal lds
        need_ = [i_ for i_, t_ in enumerate(lds) if t_ in tags]
        if need_:
            e(f"s_waitcnt lgkmcnt({min(len(lds) - 1 - max(need_), 15)})")
            lds = lds[max(need_)+1:]
    fread(0)
    for q in range(8): gread(q, 0)
    fread(1)
    e(f"""
    s_mov_b32 s49, 0
    v_lshlrev_b32 v14, 5, v0
    v_xor_b32 v5, 15, v0
    v_lshlrev_b32 v5, 3, v5
    s_lshl_b32 s52, s3, 12
    s_add_u32 s52, s52, {WS_ST1}
    """)
    nextF = 2
    sched = {}
    if not nox:
        for n in range(32): sched.setdefault(x0 + xd*n, []).append(("X", n))
    sched.setdefault(215, []).append(("POLL",))
    sched.setdefault(262, []).append(("CHK",))
    if not nocs:
        for i in range(16): sched.setdefault(cm0 + cmd*i, []).append(("CM", i))
        for i in range(ncspre, 16): sched.setdefault(cs0 + csd*(i-ncspre), []).append(("CS", i))
    ep1 = []
    def ep1_ops(j):
        a = ACC + 4*j; kk = VK + 2*j; t = VV + 4*(j % 4)
        ops = [lambda: lwait([f"Y{j}"])]
        ops += [f"v_and_b32 v{t}, 0xffff0000, v{kk+1}", f"v_lshlrev_b32 v{t+1}, 16, v{kk+1}", f"v_and_b32 v{t+2}, 0xffff0000, v{kk}", f"v_lshlrev_b32 v{t+3}, 16, v{kk}"]
        ops += [f"v_fma_f32 v{a+i}, s48, v{t+i}, v{a+i}" for i in range(4)]
        ops += [f"v_cvt_pk_bf16_f32 v{kk}, v{a+3}, v{a+2}", f"v_cvt_pk_bf16_f32 v{kk+1}, v{a+1}, v{a}"]
        def wr(): e(f"ds_write_b64 v12, v[{kk}:{kk+1}] offset:{512*(7-j)}"); lds.append("W")
        ops.append(wr)
        return ops
    nm = 0
    xi = 0
    for m in range(64):
        p, r = m // 8, m % 8
        lwait([f"F{m}", f"G{m}"])
        fills = []
        if p == 0 and r < 7: fills += [("G", q, r + 1) for q in range(8)]
        lim = m + 2 if p == 0 and r < 6 else m + FD
        while nextF <= lim and nextF < 64 and len([f for f in fills if f[0] == "F"]) < 2:
            fills.append(("F", nextF)); nextF += 1
        if p == 1: fills.append(("Y", r))
        if r == 3 and p >= 2: ep1 += ep1_ops(p - 2)
        if m == 62: ep1 += ep1_ops(6)
        nq = 8 - p
        for q in range(nq):
            j = p + q
            c = "0" if m == 0 else acc(j)
            e(f"v_mfma_f32_16x16x32_bf16 {acc(j)}, {ffr(m)}, {gfr(q,r)}, {c}")
            nm += 1
            take = fills[:2] if p == 0 else fills[:1]
            if q == nq - 1: take = fills
            fills = fills[len(take):]
            for f in take:
                if f[0] == "G": gread(f[1], f[2])
                elif f[0] == "F": fread(f[1])
                else:
                    e(f"ds_read_b64 v[{VK+2*f[1]}:{VK+2*f[1]+1}], v12 offset:{512*(7-f[1])}"); lds.append(f"Y{f[1]}")
            for s_ in sched.get(nm, []):
                if s_[0] == "X":
                    n = s_[1]; i = n >> 2
                    e(f"s_cmp_lg_u32 s3, {n & 3}\ns_cbranch_scc1 L_k1_x{n}")
                    l = f"buffer_load_dwordx2 v[{VX+2*i}:{VX+2*i+1}], v3, s[4:7], s49 offen {xl}"
                    if n & 3 == 0: e.vmem(l, "X")
                    else: e(l)
                    e(f"L_k1_x{n}:")
                    if n & 3 == 3: e(f"s_add_u32 s49, s49, {64*2048}")
                elif s_[0] == "CS": csload(s_[1])
                elif s_[0] == "CM":
                    i = s_[1]
                    if i == 0: e(f"s_waitcnt vmcnt({max(0, e.need([('CS', 15)]) - 1)})")
                    for h_ in range(2):
                        cc = "0" if i == 0 else f"v[{VCA+4*h_}:{VCA+4*h_+3}]"
                        e(f"v_mfma_f32_16x16x32_bf16 v[{VCA+4*h_}:{VCA+4*h_+3}], v[{VSEL+4*h_}:{VSEL+4*h_+3}], v[{VC+4*i}:{VC+4*i+3}], {cc}")
                elif s_[0] == "POLL":
                    e.vmem("buffer_load_dword v15, v14, s[36:39], 0 offen sc1", "PL")
                elif s_[0] == "CHK":
                    e(f"""
                    s_waitcnt vmcnt({max(0, e.need(['PL']) - 1)})
                    s_mov_b32 s53, 0
                    L_k1_poll:
                    v_cmp_eq_u32 vcc, 32, v15
                    s_cmp_eq_u32 vcc_lo, 0xff
                    s_cbranch_scc1 L_k1_polled
                    s_add_u32 s53, s53, 1
                    s_cmp_gt_u32 s53, {POLL_MAX}
                    s_cbranch_scc1 L_k1_polled
                    s_sleep 2
                    buffer_load_dword v15, v14, s[36:39], 0 offen sc1
                    s_waitcnt vmcnt(0)
                    s_branch L_k1_poll
                    L_k1_polled:
                    """)
                    for i in range(8):
                        e.vmem(f"buffer_load_dwordx2 v[{VS+2*i}:{VS+2*i+1}], v5, s[20:23], s52 offen offset:{512*i} sc1", "ST")
            for _ in range(1 if p < 6 else 2):
                if ep1 and not take:
                    x = ep1.pop(0)
                    if callable(x): x()
                    else: e(x)
    if timing: stamp(e, 4, TS)
    e(f"""
    v_bfe_u32 v14, v0, 2, 2
    v_mul_u32_u24 v14, {CH}, v14
    v_lshrrev_b32 v15, 4, v0
    v_lshlrev_b32 v15, 5, v15
    v_sub_u32 v14, v14, v15
    v_and_b32 v15, 3, v0
    v_lshl_add_u32 v14, v15, 3, v14
    s_lshl_b32 s52, s3, 10
    s_sub_u32 s52, {XR + 4064 - 896}, s52
    v_add_u32 v14, s52, v14
    v_lshrrev_b32 v15, 5, v0
    v_lshlrev_b32 v15, 16, v15
    v_xor_b32 v9, 15, v0
    v_and_b32 v9, 31, v9
    v_lshl_add_u32 v15, v9, 4, v15
    """)
    if not nocs:
        e(f"""
        s_lshl_b32 s53, s3, 11
        s_add_u32 s53, s53, {CSL}
        v_lshlrev_b32 v9, 5, v0
        v_add_u32 v9, s53, v9
        ds_write_b128 v9, v[{VCA}:{VCA+3}]
        ds_write_b128 v9, v[{VCA+4}:{VCA+7}] offset:16
        """)
        lds += ["W", "W"]
    for x in ep1 + ep1_ops(7):
        if callable(x): x()
        else: e(x)
    e(f"""
    s_lshl_b32 s52, s3, 20
    s_lshr_b32 s53, s40, 2
    s_lshl_b32 s53, s53, 10
    s_add_u32 s52, s52, s53
    s_and_b32 s53, s40, 1
    s_lshl_b32 s53, s53, 9
    s_add_u32 s52, s52, s53
    s_and_b32 s53, s40, 2
    s_lshl_b32 s53, s53, 2
    s_add_u32 s52, s52, s53
    s_lshl_b32 s53, s3, 9
    v_lshlrev_b32 v9, 3, v0
    v_add_u32 v9, s53, v9
    v_add_u32 v8, {CSL}, v9
    s_waitcnt lgkmcnt(0)
    s_barrier
    """)
    for i in range(8): e(f"ds_read_b64_tr_b16 v[{VK+2*i}:{VK+2*i+1}], v14 offset:{128*(7-i)}")
    if not nocs:
        for i in range(4): e(f"ds_read_b64 v[{VC+2*i}:{VC+2*i+1}], v8 offset:{2048*i}")
    e("s_waitcnt vmcnt(0) lgkmcnt(4)" if not nocs else "s_waitcnt vmcnt(0) lgkmcnt(0)")
    for i in range(8):
        x = VX + 2*i; y = VK + 2*i; st = VS + 2*i; t = VU + 12*(i % 2)
        e(f"""
        v_lshlrev_b32 v{t}, 16, v{x}
        v_and_b32 v{t+1}, 0xffff0000, v{x}
        v_lshlrev_b32 v{t+2}, 16, v{x+1}
        v_and_b32 v{t+3}, 0xffff0000, v{x+1}
        v_mul_f32 v{st}, v{st}, v{st+1}
        v_lshlrev_b32 v{t+4}, 16, v{y}
        v_and_b32 v{t+5}, 0xffff0000, v{y}
        v_lshlrev_b32 v{t+6}, 16, v{y+1}
        v_and_b32 v{t+7}, 0xffff0000, v{y+1}
        v_pk_fma_f32 v[{t+8}:{t+9}], v[{t}:{t+1}], v[{st}:{st+1}], v[{st}:{st+1}] op_sel:[0,1,0] op_sel_hi:[1,1,0] neg_lo:[0,0,1] neg_hi:[0,0,1]
        v_pk_fma_f32 v[{t+10}:{t+11}], v[{t+2}:{t+3}], v[{st}:{st+1}], v[{st}:{st+1}] op_sel:[0,1,0] op_sel_hi:[1,1,0] neg_lo:[0,0,1] neg_hi:[0,0,1]
        v_pk_fma_f32 v[{t}:{t+1}], v[{t+8}:{t+9}], v[{t+4}:{t+5}], v[{t}:{t+1}]
        v_pk_fma_f32 v[{t+2}:{t+3}], v[{t+10}:{t+11}], v[{t+6}:{t+7}], v[{t+2}:{t+3}]
        v_cvt_pk_bf16_f32 v{x}, v{t}, v{t+1}
        v_cvt_pk_bf16_f32 v{x+1}, v{t+2}, v{t+3}
        buffer_store_dwordx2 v[{x}:{x+1}], v15, s[20:23], s52 offen {st_flags}
        s_add_u32 s52, s52, {2*65536}
        """)
    if not nocs: e(f"""
    s_waitcnt lgkmcnt(0)
    v_pk_add_f32 v[{VC}:{VC+1}], v[{VC}:{VC+1}], v[{VC+2}:{VC+3}]
    v_pk_add_f32 v[{VC+4}:{VC+5}], v[{VC+4}:{VC+5}], v[{VC+6}:{VC+7}]
    v_cmp_gt_u32 vcc, 1792, v9
    v_mov_b32 v8, 0x80000000
    v_pk_add_f32 v[{VC}:{VC+1}], v[{VC}:{VC+1}], v[{VC+4}:{VC+5}]
    v_cndmask_b32 v9, v8, v9, vcc
    s_lshr_b32 s52, s2, 3
    s_and_b32 s53, s52, 15
    s_mul_i32 s53, s53, {7168*4}
    s_lshr_b32 s52, s52, 4
    s_mul_i32 s52, s52, {3584*4}
    s_add_u32 s52, s52, s53
    s_and_b32 s53, s2, 7
    s_mul_i32 s53, s53, 1792
    s_add_u32 s52, s52, s53
    s_add_u32 s52, s52, {WS_CSP}
    buffer_store_dwordx2 v[{VC}:{VC+1}], v9, s[20:23], s52 offen {st_flags}
    """)

def gen(name="k1_kernel", timing=False, **kw):
    e = Em()
    e("s_cmp_ge_u32 s2, 256\ns_cbranch_scc1 L_k1_end")
    body(e, timing, **kw)
    if timing:
        e("s_waitcnt vmcnt(0)")
        stamp(e, 5, 24)
        e("s_waitcnt lgkmcnt(0)\ns_mov_b32 s84, s44\ns_mov_b32 s86, s46")
        timing_store(e, "s[20:23]", 6, 64)
    e("L_k1_end:\ns_endpgm")
    return kstart(name) + e.text(), kdesc(name, 512, 102, 256), f"; @launch kernel={name} grid=(256,1,1) block=(256,1,1) lds={LDS_K1}\n"

if __name__ == "__main__":
    import sys
    kw = dict(a.split("=") for a in sys.argv[2:])
    kw = {k: (v if k in ("st_flags","pfl","csl","xl","sll","xpfl") else int(v)) for k, v in kw.items()}
    code, desc, launch = gen(**kw)
    open(sys.argv[1], "w").write(launch + HEADER + code + RODATA + desc)
```

```python
import sys, k1b as k1, g12
from common import *
def build(fn, timing=False, **kw):
    k1kw = {k[3:]: (v if k[3:] in ("st_flags","pfl","csl","xl","sll","xpfl") else int(v)) for k, v in kw.items() if k.startswith("k1_")}
    gkw = {k[2:]: (v if k[2:] in ("ldf","wf","t2f") else int(v)) for k, v in kw.items() if k.startswith("g_")}
    parts = [k1.gen(timing=timing, **k1kw), g12.gen(timing=timing, **gkw)]
    hdr = open("sequential_preLN__ssm_conv_h3__glu_gated_swiglu__prompt.s.ref").read().split("; Override")[0]
    o = hdr + "".join(p[2] for p in parts) + HEADER + "".join(p[0] for p in parts) + RODATA + ".p2align 6\n".join(p[1] for p in parts)
    open(fn, "w").write(o)
if __name__ == "__main__":
    kw = dict(a.split("=") for a in sys.argv[2:])
    t = bool(int(kw.pop("timing", "0")))
    build(sys.argv[1], t, **kw)
```

```python
from common import *
ROWB = 7168
MATB = 14336
STB  = 2 * MATB
R = 4
P = 7
RB = 8
NSTEP = 32
ACC0 = 32
def accb(tt, t): return ACC0 + (t * 4 + tt) * 4
def acc(tt, t): b = accb(tt, t); return f"v[{b}:{b+3}]"
def afr(t, j=None):
    b = t * 4
    return f"a[{b}:{b+3}]" if j is None else f"a[{b+2*j}:{b+2*j+1}]"
BF0 = 56
def bfr(slot, tt): b = BF0 + slot * 16 + tt * 4; return f"a[{b}:{b+3}]"
A_CSR, A_CSA, A_SEL, A_DUM = 184, 216, 224, 232
SK2 = 4
STB2 = SK2 * 8192
R2 = 4
RB2 = 8
P2 = 7
NSTEP2 = 56
NST2 = NSTEP2 // SK2
CS_LDS = R2 * STB2
LDS_G12 = CS_LDS + 8192
def accb2(tt, t): return 32 + (tt * 8 + t) * 4
def acc2(tt, t): b = accb2(tt, t); return f"v[{b}:{b+3}]"
def afr2(buf, t, j=None):
    b = buf * 32 + t * 4
    return f"a[{b}:{b+3}]" if j is None else f"a[{b+2*j}:{b+2*j+1}]"
def bfr2(slot, tt): b = 64 + slot * 8 + tt * 4; return f"a[{b}:{b+3}]"
TB = 96
RES = 112
VD0, VD1 = 28, 29

def k2_blocks(step):
    if step < 48: k = 7 * (step % 16) + 2 * (step // 16); return k, k + 1
    i = 2 * (step - 48); return 7 * i + 6, 7 * (i + 1) + 6

def roll(e, segs, label, ctr="s23"):
    txt = [e.text(a, b) for a, b in segs]
    out = ""; i = 0; nl = 0
    while i < len(txt):
        j = i
        while j + 1 < len(txt) and txt[j+1] == txt[i]: j += 1
        if j > i:
            out += f"s_mov_b32 {ctr}, 0\n{label}{nl}:\n" + txt[i] + f"s_add_u32 {ctr}, {ctr}, 1\ns_cmp_lt_u32 {ctr}, {j-i+1}\ns_cbranch_scc1 {label}{nl}\n"
            nl += 1
        else: out += txt[i]
        i = j + 1
    return out, nl

def gen(name="g12_kernel", timing=False, ldf="", wf="", w2pf=1, TL=0, nomfma2=False, noload2=False, dw=0):
    e = Em()
    e(f"""
    s_cmp_ge_u32 s2, 256
    s_cbranch_scc1 L_g12_end
    s_load_dwordx4 s[44:47], s[0:1], {KA['dbg']}
    s_load_dwordx4 s[28:31], s[0:1], {KA['w1']}
    s_load_dwordx4 s[92:95], s[0:1], {KA['w2']}
    """)
    if timing: stamp(e, 0)
    e(f"""
    v_lshrrev_b32 v1, 6, v0
    v_and_b32 v0, 63, v0
    s_and_b32 s32, s2, 7
    v_readfirstlane_b32 s3, v1
    s_lshr_b32 s33, s2, 3
    s_and_b32 s34, s33, 7
    s_lshl_b32 s35, s32, 2
    s_lshr_b32 s36, s33, 3
    s_add_u32 s35, s35, s36
    s_lshl_b32 s36, s34, 3
    s_lshl_b32 s37, s3, 1
    s_add_u32 s36, s36, s37
    s_lshl_b32 s37, s36, 16
    s_and_b32 s38, s3, 1
    s_mul_i32 s38, s38, {32*ROWB}
    s_mul_i32 s39, s35, 224
    s_add_u32 s38, s38, s39
    """)
    for i in range(7):
        e(f"""
        v_add_u32 v11, {64*i}, v0
        v_mul_u32_u24 v12, 4682, v11
        v_lshrrev_b32 v12, 16, v12
        v_mul_u32_u24 v13, {ROWB - 224}, v12
        v_lshl_add_u32 v13, v11, 4, v13
        v_add_u32 v{4+i}, s38, v13
        """)
        if i % 4: e(f"v_subrev_u32 v{4+i}, {1024*(i%4)}, v{4+i}")
    e(f"""
    v_lshrrev_b32 v13, 5, v0
    v_lshlrev_b32 v2, 10, v13
    v_bfe_u32 v14, v0, 4, 1
    v_lshlrev_b32 v14, 9, v14
    v_and_b32 v15, 15, v0
    v_lshlrev_b32 v15, 4, v15
    v_add3_u32 v2, v2, v14, v15
    v_add_u32 v2, s37, v2
    v_add_u32 v3, 0x10000, v2
    s_lshr_b32 s40, s3, 1
    s_mul_i32 s40, s40, {MATB}
    s_and_b32 s41, s3, 1
    s_mul_i32 s41, s41, 7168
    s_add_u32 s40, s40, s41
    s_cmp_ge_u32 s3, 2
    s_waitcnt lgkmcnt(0)
    s_cselect_b32 s8, s30, s28
    s_cselect_b32 s9, s31, s29
    s_and_b32 s9, s9, 0xffff
    s_mov_b32 s10, {1024*ROWB}
    s_mov_b32 s11, 0x00020000
    s_mov_b32 s21, 0
    """)
    def dma(i, slot, soff, tag):
        if i % 4 == 0:
            e(f"s_add_u32 m0, s40, {slot*STB + (i//4)*4096}")
            e("s_nop 0")
        e.vmem(f"buffer_load_dwordx4 v{4+i}, s[8:11], {soff} offen offset:{1024*(i%4)} {wf} lds", tag)
    def tok1(step, tt, soff, imm):
        e.vmem(f"buffer_load_dwordx4 {bfr(step % RB, tt)}, v{2+(tt>>1)}, s[4:7], {soff} offen offset:{imm + 256*(tt&1)} {ldf}", ("T", step))
    def trread(step, t, j):
        st = step // 2; kp = step % 2; slot = st % R
        base = "v11" if slot < 2 else "v12"
        off = (slot % 2) * STB + (t & 1) * MATB + (32 * kp + 8 * j) * 224 + 32 * (t >> 1)
        e(f"ds_read_b64_tr_b16 {afr(t, j)}, {base} offset:{off}")
    def ptok(t):
        e(f"s_mov_b32 s20, {(t//2)*4096}")
        for tt in range(4): tok1(t, tt, "s20", (t % 2) * 2048)
    for i in range(7): dma(i, 0, "s21", ("D", 0))
    e(srd(4, 46, 0x400000))
    for t in range(2): ptok(t)
    if timing: stamp(e, 1)
    for st in range(1, R):
        e(f"s_mov_b32 s21, {st*64*ROWB}")
        for i in range(7): dma(i, st, "s21", ("D", st))
        for t in range(2*st, min(2*st+2, P)): ptok(t)
    e("s_lshl_b32 s41, s35, 11")
    for tt in range(4):
        e.vmem(f"buffer_load_dwordx4 v[{16+4*tt}:{19+4*tt}], v{2+(tt>>1)}, s[4:7], s41 offen offset:{256*(tt&1)} {ldf}", ("HS", 0))
    e(f"""
    v_lshrrev_b32 v13, 5, v0
    v_lshlrev_b32 v13, 4, v13
    v_bfe_u32 v14, v0, 2, 3
    v_add_u32 v13, v13, v14
    v_mul_u32_u24 v13, 224, v13
    v_and_b32 v14, 3, v0
    v_lshlrev_b32 v14, 3, v14
    v_add_u32 v11, v13, v14
    v_add_u32 v12, {2*STB}, v11
    s_add_u32 s12, s46, {WS_HHF}
    s_addc_u32 s13, s47, 0
    s_and_b32 s13, s13, 0xffff
    s_mov_b32 s14, {2048*3584*2}
    s_mov_b32 s15, 0x00020000
    {srd(16, 46, WS_SIZE)}
    {srd(48, 44, 256)}
    {srd(52, 92, 3584*2048)}
    {srd(88, 94, 2048*2048)}
    s_lshl_b32 s58, s2, 2
    s_add_u32 s58, s58, s3
    s_mul_i32 s58, s58, 7168
    v_lshlrev_b32 v1, 4, v0
    """)
    e(f"""
    v_bfe_u32 v13, v0, 2, 2
    v_lshrrev_b32 v14, 4, v0
    v_cmp_eq_u32 vcc, v13, v14
    v_and_b32 v13, 1, v0
    v_lshlrev_b32 v13, 4, v13
    v_mov_b32 v14, 0x3f80
    v_lshlrev_b32 v13, v13, v14
    v_cndmask_b32 v13, 0, v13, vcc
    v_and_b32 v14, 2, v0
    v_cmp_eq_u32 vcc, 0, v14
    v_accvgpr_write_b32 a{A_SEL+2}, 0
    v_accvgpr_write_b32 a{A_SEL+3}, 0
    v_cndmask_b32 v14, 0, v13, vcc
    v_cndmask_b32 v15, v13, 0, vcc
    v_accvgpr_write_b32 a{A_SEL+4}, 0
    v_accvgpr_write_b32 a{A_SEL+5}, 0
    v_accvgpr_write_b32 a{A_SEL}, v14
    v_accvgpr_write_b32 a{A_SEL+1}, v15
    v_accvgpr_write_b32 a{A_SEL+6}, v14
    v_accvgpr_write_b32 a{A_SEL+7}, v15
    """)
    e(f"s_mul_i32 s59, s34, {4*ROWB}")
    ex = []
    ex.append((3, lambda: e(f"s_waitcnt vmcnt({e.need([('HS',0)])})")))
    ex.append((1, "v_mov_b32 v15, 0x3f803f80"))
    for tt in range(4):
        x = 16 + 4*tt
        ex.append((1, f"v_dot2_f32_bf16 v14, v{x}, v{x}, 0"))
        for d in range(1, 4): ex.append((1, f"v_dot2_f32_bf16 v14, v{x+d}, v{x+d}, v14"))
        ex.append((1, f"v_dot2_f32_bf16 v13, v{x}, v15, 0"))
        for d in range(1, 4): ex.append((1, f"v_dot2_f32_bf16 v13, v{x+d}, v15, v13"))
        ex.append((1, f"s_nop 1\nv_mov_b32 v{x+1}, v14"))
        ex.append((1, f"s_nop 1\nv_mov_b32 v{x}, v13\ns_nop 1"))
    for o in (0, 1):
        ex.append((1, f"v_permlane32_swap_b32 v{16+o}, v{24+o}"))
        ex.append((1, f"v_permlane32_swap_b32 v{20+o}, v{28+o}"))
    for o in (0, 1):
        ex.append((1, f"v_add_f32 v{16+o}, v{16+o}, v{24+o}"))
        ex.append((1, f"v_add_f32 v{20+o}, v{20+o}, v{28+o}"))
    ex.append((1, f"s_lshl_b32 s41, s36, 7\ns_add_u32 s41, s41, {WS_ST2}\nv_lshlrev_b32 v14, 2, v0"))
    ex.append((1, "s_add_u32 s42, s41, 8192"))
    for o in (0, 1): ex.append((1, f"v_permlane16_swap_b32 v{16+o}, v{20+o}"))
    for o in (0, 1): ex.append((1, f"v_add_f32 v{16+o}, v{16+o}, v{20+o}"))
    ex.append((1, lambda: e.vmem("buffer_atomic_add_f32 v16, v14, s[16:19], s41 offen", ("AT", 0))))
    ex.append((1, lambda: e.vmem("buffer_atomic_add_f32 v17, v14, s[16:19], s42 offen", ("AT", 0))))
    ex.append((13, f"""
    s_lshl_b32 s57, s3, 11
    s_add_u32 s57, s57, {CS_LDS}
    v_lshl_add_u32 v13, v0, 5, s57
    ds_write_b128 v13, a[{A_CSA}:{A_CSA+3}]
    ds_write_b128 v13, a[{A_CSA+4}:{A_CSA+7}] offset:16
    v_lshl_add_u32 v13, v0, 2, s57
    """))
    for i in range(8): ex.append((13, f"ds_read_b32 v{18+i}, v13 offset:{(i >> 1)*448 + (i & 1)*224}"))
    ex.append((14, f"""
    s_lshr_b32 s56, s3, 1
    s_mul_i32 s56, s56, {3584*4}
    s_mul_i32 s57, s35, 448
    s_add_u32 s56, s56, s57
    s_add_u32 s56, s56, {WS_CS}
    v_lshlrev_b32 v13, 2, v0
    s_waitcnt lgkmcnt(12)
    """))
    ex.append((14, "v_pk_add_f32 v[18:19], v[18:19], v[20:21]"))
    ex.append((14, "v_pk_add_f32 v[22:23], v[22:23], v[24:25]"))
    ex.append((14, "v_pk_add_f32 v[18:19], v[18:19], v[22:23]"))
    def csat(i):
        def f():
            e("s_mov_b32 exec_hi, 0xffffff")
            e.vmem(f"buffer_atomic_add_f32 v{18+i}, v13, s[16:19], s56 offen offset:{224*i}", ("AT", 0))
            e("s_mov_b32 exec_hi, -1")
        return f
    for i in range(2): ex.append((14, csat(i)))
    ex.append((14, f"""
    s_lshl_b32 s43, s34, 7
    s_add_u32 s43, s43, s35
    s_lshl_b32 s43, s43, 7
    s_add_u32 s43, s43, {WS_FL + 32}
    s_lshl_b32 s56, s34, 7
    v_add_u32 v15, s56, v0
    v_and_b32 v13, 7, v0
    v_lshlrev_b32 v13, 7, v13
    v_add_u32 v13, s35, v13
    v_cmp_gt_u32 vcc, 32, v0
    v_and_b32 v14, 15, v0
    v_lshlrev_b32 v14, 2, v14
    v_cndmask_b32 v15, v13, v15, vcc
    v_lshlrev_b32 v15, 7, v15
    v_add_u32 v15, {WS_FL + 32}, v15
    v_mov_b32 v16, 0
    v_mov_b32 v17, 1
    """))
    ex.append((23, lambda: e.vmem("buffer_load_dword v16, v15, s[16:19], 0 offen sc1", ("PL", 0))))
    ex.append((24, f"""
    s_and_b32 s96, s32, 1
    s_bfe_u32 s97, s32, 0x10001
    s_lshl_b32 s97, s97, 3
    s_and_b32 s98, s33, 7
    s_add_u32 s97, s97, s98
    s_lshr_b32 s98, s32, 2
    s_lshl_b32 s98, s98, 2
    s_lshr_b32 s99, s33, 3
    s_add_u32 s98, s98, s99
    s_lshl_b32 s99, s97, 2
    s_add_u32 s99, s99, s3
    """))
    ex.append((24, f"""
    v_lshrrev_b32 v{VD1}, 4, v0
    v_lshlrev_b32 v30, 1, v{VD1}
    v_and_b32 v31, 15, v0
    v_xor_b32 v31, v30, v31
    v_lshlrev_b32 v31, 4, v31
    v_lshlrev_b32 v{VD1}, 11, v{VD1}
    s_and_b32 s100, s3, 1
    s_lshl_b32 s100, s100, 14
    s_lshl_b32 s101, s98, 8
    s_add_u32 s100, s100, s101
    v_add3_u32 v{VD0}, v{VD1}, v31, s100
    v_xor_b32 v{VD1}, 0x80, v{VD0}
    v_add_u32 v{VD1}, {4*2048 - 1024}, v{VD1}
    s_lshr_b32 s101, s3, 1
    s_mul_i32 s100, s96, 112
    s_add_u32 s100, s100, s101
    s_lshl_b32 s100, s100, 15
    s_mul_i32 s101, s101, {6*32768}
    s_lshl_b32 s26, s3, 11
    """))
    def chk():
        e(f"""
        s_waitcnt vmcnt({e.need([('PL',0)])})
        s_mov_b32 s57, 0
        L_g1_poll:
        v_cmp_eq_u32 vcc, 1, v16
        s_cmp_eq_u64 vcc, -1
        s_cbranch_scc1 L_g1_polled
        s_add_u32 s57, s57, 1
        s_cmp_gt_u32 s57, {POLL_MAX}
        s_cbranch_scc1 L_g1_polled
        s_sleep 1
        buffer_load_dword v16, v15, s[16:19], 0 offen sc1
        s_waitcnt vmcnt(0)
        s_branch L_g1_poll
        L_g1_polled:
        v_cmp_gt_u32 vcc, 28, v0
        v_mov_b32 v13, {WS_CS + 3584*4 - 448}
        v_mov_b32 v15, {WS_CS}
        s_mul_i32 s56, s35, 448
        v_cndmask_b32 v13, v13, v15, vcc
        s_lshl_b32 s57, s3, 11
        s_add_u32 m0, s57, {CS_LDS}
        v_add3_u32 v13, v13, v1, s56
        """)
        e.vmem("buffer_load_dwordx4 v13, s[16:19], 0 offen sc1 lds", ("S", 0))
        for tt in range(4):
            e.vmem(f"buffer_load_dword v{16+2*tt}, v14, s[16:19], s41 offen offset:{64*tt} sc1", ("S", 0))
            e.vmem(f"buffer_load_dword v{17+2*tt}, v14, s[16:19], s42 offen offset:{64*tt} sc1", ("S", 0))
    ex.append((27, chk))
    def pf2():
        e.vmem(f"buffer_load_dwordx4 a[{A_DUM}:{A_DUM+3}], v1, s[52:55], s58 offen", ("W2", 0))
        e("s_add_u32 s58, s58, 1024")
    cs_order = []
    for i in range(8): cs_order += [8 + i, i]
    def csload(n):
        e(f"s_add_u32 s56, s59, {cs_order[n]*64*ROWB}")
        b = A_CSR + 4 * (n % 8)
        e.vmem(f"buffer_load_dwordx4 a[{b}:{b+3}], v4, s[8:11], s56 offen", ("CS", n))
    def csmfma(n):
        b = A_CSR + 4 * (n % 8)
        e(f"s_waitcnt vmcnt({e.need([('CS', n)])})")
        for h_ in range(2):
            d = f"a[{A_CSA+4*h_}:{A_CSA+4*h_+3}]"
            e(f"v_mfma_f32_16x16x32_bf16 {d}, a[{A_SEL+4*h_}:{A_SEL+4*h_+3}], a[{b}:{b+3}], {'0' if n == 0 else d}")
    d2state = {"k": 0}
    def dma2(step):
        st = step // SK2; kp = step % SK2; slot = st % R2
        ka = k2_blocks(step)[0]
        if step > 0:
            dk = ka - d2state["k"]
            e(f"s_add_u32 s100, s100, {dk*32768}" if dk >= 0 else f"s_sub_u32 s100, s100, {-dk*32768}")
            if step == 48: e("s_add_u32 s100, s100, s101")
        d2state["k"] = ka
        e(f"s_add_u32 m0, s26, {slot*STB2 + kp*8192}")
        e("s_nop 0")
        e.vmem(f"buffer_load_dwordx4 v{VD0}, s[52:55], s100 offen lds", ("D2", st))
        e.vmem(f"buffer_load_dwordx4 v{VD1}, s[52:55], s100 offen offset:1024 lds", ("D2", st))
    e(f"s_mov_b32 s20, {P*2048}\ns_mov_b32 s22, {P*2048+4096}\ns_mov_b32 s21, {R*64*ROWB}")
    e(f"s_waitcnt vmcnt({e.need([('D',0)])})\ns_barrier")
    for t in range(14):
        for j in range(2): trread(0, t, j)
    if timing: stamp(e, 2)
    pend_dma = []
    d2pend = []
    for step in range(NSTEP):
        st = step // 2; kp = step % 2
        n = e.need([("T", step)])
        e(f"s_waitcnt vmcnt({n}) lgkmcnt(" + ("0" if step == 0 else "12") + ")")
        fill = [[] for _ in range(56)]
        if kp == 1 and st + R < 16: pend_dma += [(st + R, i) for i in range(7)]
        if step == 29: d2pend += list(range(8))
        if step + 1 < NSTEP:
            for t in range(14):
                fill[4*t + 3].append(("R", step + 1, t, 0))
                if t < 13: fill[4*t + 4].append(("R", step + 1, t, 1))
                else: fill[55].append(("R", step + 1, t, 1))
        if step + P < NSTEP:
            for tt in range(4): fill[5 + 4 * tt].append(("T", step + P, tt))
        nd = 4 if kp == 1 else 3
        for q in range(nd):
            if pend_dma: fill[21 + 4 * q].append(("D",) + pend_dma.pop(0))
        for q in range(3):
            if d2pend: fill[21 + 8 * q].append(("D2", d2pend.pop(0)))
        if 1 <= step <= 8:
            fill[37].append(("CSL", 2*(step-1))); fill[41].append(("CSL", 2*(step-1)+1))
        if 5 <= step <= 12:
            fill[1].append(("CSM", 2*(step-5))); fill[2].append(("CSM", 2*(step-5)+1))
        if w2pf and 9 <= step <= 21 and step % 2 == 1: fill[45].append(("PF2",))
        for i in range(56):
            t, tt = i // 4, i % 4
            if kp == 0 and step > 0 and i in (24, 48): e("s_waitcnt lgkmcnt(12)" if i == 24 else "s_waitcnt lgkmcnt(12)")
            c = "0" if step == 0 else acc(tt, t)
            e(f"v_mfma_f32_16x16x32_bf16 {acc(tt,t)}, {afr(t)}, {bfr(step%RB,tt)}, {c}")
            if kp == 1 and i == 2:
                n = e.need([("D", st + 1)] + ([("AT", 0)] if st == 8 else []))
                e(f"s_waitcnt vmcnt({n}) lgkmcnt(0)\ns_barrier" if st + 1 < 16 else "s_waitcnt lgkmcnt(0)\ns_barrier")
                if st == 8:
                    assert not [x for x in ex if x[0] <= 14]
                    e("s_cmp_eq_u32 s3, 0\ns_cselect_b32 s56, s43, 0x80000000\ns_mov_b64 exec, 1")
                    e.vmem("buffer_store_dword v17, v16, s[16:19], s56 offen sc1", ("SG", 0))
                    e("s_mov_b64 exec, -1")
            for f in fill[i]:
                if f[0] == "R": trread(f[1], f[2], f[3])
                elif f[0] == "T":
                    j4 = step % 4
                    tok1(f[1], f[2], "s20" if j4 < 2 else "s22", (j4 % 2) * 2048)
                    if j4 == 3 and f[2] == 3: e("s_add_u32 s20, s20, 8192\ns_add_u32 s22, s22, 8192")
                elif f[0] == "D":
                    dma(f[2], f[1] % R, "s21", ("D", f[1]))
                    if f[2] == 6: e(f"s_add_u32 s21, s21, {64*ROWB}")
                elif f[0] == "D2": dma2(f[1])
                elif f[0] == "CSL": csload(f[1])
                elif f[0] == "CSM": csmfma(f[1])
                elif f[0] == "PF2": pf2()
            if not fill[i] and i >= 4 and ex and ex[0][0] <= step:
                x = ex.pop(0)[1]
                if callable(x): x()
                else: e(x)
    assert not ex and not d2pend
    if timing: stamp(e, 3)
    e(f"""
    s_waitcnt vmcnt({e.need([('S',0)])})
    v_lshrrev_b32 v13, 4, v0
    s_lshl_b32 s57, s3, 11
    s_add_u32 s57, s57, {CS_LDS}
    v_lshl_add_u32 v1, v13, 4, s57
    v_and_b32 v14, 1, v13
    v_lshlrev_b32 v14, 9, v14
    v_lshrrev_b32 v13, 1, v13
    v_lshlrev_b32 v13, 8, v13
    v_and_b32 v15, 15, v0
    v_lshlrev_b32 v15, 4, v15
    v_add3_u32 v2, v13, v14, v15
    s_mul_i32 s41, s36, {224*1024}
    s_mul_i32 s42, s35, {7*1024}
    s_add_u32 s41, s41, s42
    v_add_u32 v2, s41, v2
    v_add_u32 v3, {224*1024}, v2
    s_mov_b32 s43, 0xbfb8aa3b
    s_mov_b32 s44, 4096
    s_lshl_b32 s47, s34, 2
    s_add_u32 s47, s47, s3
    s_lshl_b32 s47, s47, 5
    s_add_u32 s47, s47, s35
    s_lshl_b32 s47, s47, 7
    s_add_u32 s47, s47, {WS_FL}
    v_mov_b32 v30, 0
    v_mov_b32 v24, v16
    v_mov_b32 v25, v17
    v_mov_b32 v26, v18
    v_mov_b32 v27, v19
    s_mov_b32 s45, 0xba800000
    s_mov_b32 s46, 0x3a800000
    """)
    src = {0: (24, 25), 1: (26, 27), 2: (20, 21), 3: (22, 23)}
    for tt in range(4):
        m, r = src[tt]; b = 4 + 4 * tt
        e(f"""
        v_mul_f32 v{b}, s45, v{m}
        v_mul_f32 v{b+2}, s46, v{r}
        v_fma_f32 v{b+2}, -v{b}, v{b}, v{b+2}
        v_max_f32 v{b+2}, 0, v{b+2}
        v_add_f32 v{b+2}, 0x3727c5ac, v{b+2}
        v_rsq_f32 v{b+1}, v{b+2}
        s_nop 0
        v_mul_f32 v{b+1}, s43, v{b+1}
        """)
    def cread(u): e(f"ds_read_b128 v[20:23], v1 offset:{u*64}\nds_read_b128 v[24:27], v1 offset:{448+u*64}")
    def hhflag(val, tags):
        e(f"s_waitcnt vmcnt({e.need(tags)})\nv_mov_b32 v31, {val}\ns_mov_b64 exec, 1")
        e.vmem("buffer_store_dword v31, v30, s[16:19], s47 offen sc1", ("HF", val))
        e("s_mov_b64 exec, -1")
    cread(0)
    d2pend = list(range(8, 16))
    for u in range(7):
        e("s_waitcnt lgkmcnt(0)")
        G = [accb(tt, 2*u) for tt in range(4)]; U = [accb(tt, 2*u+1) for tt in range(4)]
        for tt in range(4):
            b = 4 + 4 * tt
            for p in range(2):
                g = G[tt] + 2*p; up = U[tt] + 2*p
                e(f"v_pk_fma_f32 v[{g}:{g+1}], v[{b}:{b+1}], v[{20+2*p}:{21+2*p}], v[{g}:{g+1}] op_sel_hi:[0,1,1]")
                e(f"v_pk_fma_f32 v[{up}:{up+1}], v[{b}:{b+1}], v[{24+2*p}:{25+2*p}], v[{up}:{up+1}] op_sel_hi:[0,1,1]")
        if u < 6: cread(u + 1)
        for tt in range(4):
            b = 4 + 4 * tt
            for p in range(2):
                g = G[tt] + 2*p; up = U[tt] + 2*p
                e(f"v_pk_mul_f32 v[{up}:{up+1}], v[{g}:{g+1}], v[{up}:{up+1}]")
                e(f"v_pk_mul_f32 v[{g}:{g+1}], v[{g}:{g+1}], v[{b}:{b+1}] op_sel:[0,1] op_sel_hi:[1,1]")
        for tt in range(4):
            for p in range(4): e(f"v_exp_f32 v{G[tt]+p}, v{G[tt]+p}")
        if d2pend and u < 4:
            dma2(d2pend.pop(0)); dma2(d2pend.pop(0))
        for tt in range(4):
            b = 4 + 4 * tt
            for p in range(2):
                g = G[tt] + 2*p
                e(f"v_pk_fma_f32 v[{g}:{g+1}], v[{g}:{g+1}], v[{b+2}:{b+3}], v[{b+2}:{b+3}] op_sel_hi:[1,0,0]")
        for tt in range(4):
            for p in range(4): e(f"v_rcp_f32 v{G[tt]+p}, v{G[tt]+p}")
        for tt in range(4):
            for p in range(2):
                g = G[tt] + 2*p; up = U[tt] + 2*p
                e(f"v_pk_mul_f32 v[{up}:{up+1}], v[{g}:{g+1}], v[{up}:{up+1}]")
        for i in range(2):
            d = G[2*i]
            e(f"v_cvt_pk_bf16_f32 v{d}, v{U[2*i]}, v{U[2*i]+1}")
            e(f"v_cvt_pk_bf16_f32 v{d+1}, v{U[2*i]+2}, v{U[2*i]+3}")
            e(f"v_cvt_pk_bf16_f32 v{d+2}, v{U[2*i+1]}, v{U[2*i+1]+1}")
            e(f"v_cvt_pk_bf16_f32 v{d+3}, v{U[2*i+1]+2}, v{U[2*i+1]+3}")
        e("s_nop 0")
        for i in range(2):
            d = G[2*i]
            e(f"v_permlane32_swap_b32 v{d}, v{d+2}\nv_permlane32_swap_b32 v{d+1}, v{d+3}")
        for i in range(2):
            d = G[2*i]
            so = "0" if u < 4 else "s44"
            e.vmem(f"buffer_store_dwordx4 v[{d}:{d+3}], v{2+i}, s[12:15], {so} offen offset:{(u%4)*1024} sc1", ("HH", u))
        if u == 4: hhflag(1, [("HH", 1)])
        if u == 6: hhflag(2, [("HH", 3)])
    if timing: stamp(e, 4)
    e(f"""
    s_lshr_b32 s41, s99, 1
    s_lshl_b32 s41, s41, 5
    s_lshl_b32 s42, s96, 4
    s_add_u32 s41, s41, s42
    s_lshl_b32 s41, s41, 7
    s_add_u32 s41, s41, {WS_FL}
    v_and_b32 v9, 15, v0
    v_lshlrev_b32 v9, 7, v9
    v_add_u32 v9, s41, v9
    """)
    e.vmem("buffer_load_dword v10, v9, s[16:19], 0 offen sc1", ("PL2", 1))
    e(f"""
    s_mul_i32 s37, s99, {224*1024}
    s_mul_i32 s38, s96, {112*1024}
    s_add_u32 s37, s37, s38
    v_bfe_u32 v14, v0, 4, 1
    v_lshlrev_b32 v14, 9, v14
    v_and_b32 v15, 15, v0
    v_lshlrev_b32 v15, 4, v15
    v_add3_u32 v4, v14, v15, s37
    v_lshrrev_b32 v13, 5, v0
    v_lshl_add_u32 v2, v13, 10, v4
    v_mul_u32_u24 v5, 7168, v13
    v_add_u32 v3, v4, v5
    v_lshlrev_b32 v5, 3, v13
    v_add3_u32 v5, v5, v14, v15
    s_lshl_b32 s41, s99, 16
    s_lshl_b32 s42, s98, 13
    s_add_u32 s41, s41, s42
    s_lshl_b32 s42, s96, 12
    s_add_u32 s41, s41, s42
    """)
    for tt in range(2):
        for t in range(4):
            b = RES + (tt * 4 + t) * 2
            e.vmem(f"buffer_load_dwordx2 v[{b}:{b+1}], v5, s[4:7], s41 offen offset:{t*1024 + tt*256} {ldf}", ("H", 0))
    e(f"""
    v_lshlrev_b32 v13, 4, v13
    v_bfe_u32 v14, v0, 2, 3
    v_add_u32 v13, v13, v14
    v_lshlrev_b32 v13, 8, v13
    v_and_b32 v15, 3, v0
    v_lshlrev_b32 v15, 3, v15
    v_add_u32 v13, v13, v15
    s_lshl_b32 s40, s96, 2
    v_xor_b32 v14, s40, v14
    v_lshl_add_u32 v13, v14, 5, v13
    """)
    for t in range(8):
        e(f"v_xor_b32 v{TB+t}, {t*32}, v13\nv_add_u32 v{TB+8+t}, {2*STB2}, v{TB+t}")
    npoll = [0]
    def poll2(val):
        k = npoll[0]; npoll[0] += 1
        e(f"""
        s_waitcnt vmcnt({e.need([('PL2', val)])})
        s_mov_b32 s57, 0
        L_g2_pollA{k}:
        v_cmp_le_u32 vcc, {val}, v10
        s_cmp_eq_u64 vcc, -1
        s_cbranch_scc1 L_g2_polledA{k}
        s_add_u32 s57, s57, 1
        s_cmp_gt_u32 s57, {POLL_MAX}
        s_cbranch_scc1 L_g2_polledA{k}
        buffer_load_dword v10, v9, s[16:19], 0 offen sc1
        s_waitcnt vmcnt(0)
        s_branch L_g2_pollA{k}
        L_g2_polledA{k}:
        """)
    t2state = {"k": 0}
    def toks2(step):
        ka = k2_blocks(step)[0]
        if step == 0: e("s_mov_b32 s20, 0")
        else:
            dk = ka - t2state["k"]
            e(f"s_add_u32 s20, s20, {dk*1024}" if dk >= 0 else f"s_sub_u32 s20, s20, {-dk*1024}")
        t2state["k"] = ka
        for tt in range(2):
            e.vmem(f"buffer_load_dwordx4 {bfr2(step % RB2, tt)}, {'v2' if step < 48 else 'v3'}, s[12:15], s20 offen offset:{256*tt} sc1", ("T2", step))
    def trread2(step, t, j):
        st = step // SK2; kp = step % SK2; slot = st % R2
        base = f"v{TB+t}" if slot < 2 else f"v{TB+8+t}"
        off = (slot % 2) * STB2 + kp * 8192 + j * 2048
        e(f"ds_read_b64_tr_b16 {afr2(step % 2, t, j)}, {base} offset:{off}")
    e(f"s_waitcnt vmcnt({e.need([('D2',0)])})\ns_barrier")
    for t in range(8):
        for j in range(2): trread2(0, t, j)
    poll2(1)
    for t in range(P2): toks2(t)
    e(f"s_waitcnt vmcnt({e.need([('H',0)])})")
    for tt in range(2):
        for t in range(4):
            b = RES + (tt * 4 + t) * 2; a = accb2(tt, t)
            e(f"v_lshlrev_b32 v{a}, 16, v{b}\nv_and_b32 v{a+1}, 0xffff0000, v{b}\nv_lshlrev_b32 v{a+2}, 16, v{b+1}\nv_and_b32 v{a+3}, 0xffff0000, v{b+1}")
    e(f"""
    v_lshlrev_b32 v6, 4, v0
    s_lshl_b32 s43, s2, 2
    s_add_u32 s43, s43, s3
    s_xor_b32 s44, s43, 4
    s_lshl_b32 s45, s43, 7
    s_lshl_b32 s46, s44, 7
    s_add_u32 s45, s45, {WS_FL + 64}
    s_add_u32 s46, s46, {WS_FL + 64}
    s_lshl_b32 s43, s43, 13
    s_lshl_b32 s44, s44, 13
    s_add_u32 s43, s43, {WS_XB}
    s_add_u32 s44, s44, {WS_XB}
    s_add_u32 s58, s43, 4096
    s_add_u32 s59, s44, 4096
    """)
    if timing: stamp(e, 5)
    pend = []
    for step in range(NSTEP2):
        st = step // SK2; kp = step % SK2
        n = e.need([("T2", step)])
        e(f"s_waitcnt vmcnt({n}) lgkmcnt(0)")
        fill = [[] for _ in range(16)]
        g0 = 0
        if kp == SK2 - 1:
            g0 = 2
            if st + R2 < NST2: pend += [(st + R2) * SK2 + i for i in range(SK2)]
        if step + 1 < NSTEP2:
            k = 0
            for t in range(8):
                for j in range(2):
                    fill[g0 + (k * 3) // 4].append(("R", step + 1, t, j)); k += 1
        if step == 0: fill[14].append(("HF3",))
        if step in (4, 18): fill[14].append(("PL", 2 if step == 4 else 3))
        if step + P2 in (16, 32): fill[g0 + 12].append(("CK", 2 if step + P2 == 16 else 3))
        if step + P2 < NSTEP2 and not noload2: fill[g0 + 12].append(("T", step + P2))
        if pend: fill[g0 + 13].append(("D", pend.pop(0)))
        for i in range(16):
            tt, t = i // 8, i % 8
            c = "0" if (step == 0 and t >= 4) else acc2(tt, t)
            if not nomfma2: e(f"v_mfma_f32_16x16x32_bf16 {acc2(tt,t)}, {afr2(step%2,t)}, {bfr2(step%RB2,tt)}, {c}")
            if kp == SK2 - 1 and i == 1 and st + 1 < NST2:
                n = e.need([("D2", st + 1)])
                e(f"s_waitcnt vmcnt({n})\ns_barrier")
            for f in fill[i]:
                if f[0] == "R": trread2(f[1], f[2], f[3])
                elif f[0] == "T": toks2(f[1])
                elif f[0] == "D":
                    if not noload2: dma2(f[1])
                elif f[0] == "HF3": hhflag(3, [("HH", 6)])
                elif f[0] == "PL": e.vmem("buffer_load_dword v10, v9, s[16:19], 0 offen sc1", ("PL2", f[1]))
                elif f[0] == "CK": poll2(f[1])
    if timing: stamp(e, 6)
    e(f"""
    v_and_b32 v15, 15, v0
    v_lshlrev_b32 v15, 11, v15
    v_bfe_u32 v14, v0, 4, 1
    v_lshlrev_b32 v14, 5, v14
    v_lshrrev_b32 v13, 5, v0
    v_lshlrev_b32 v13, 4, v13
    v_add3_u32 v3, v13, v14, v15
    s_lshl_b32 s41, s99, 16
    s_lshl_b32 s42, s98, 8
    s_add_u32 s41, s41, s42
    s_lshl_b32 s42, s96, 7
    s_add_u32 s41, s41, s42
    s_add_u32 s42, s41, 32768
    v_mov_b32 v7, 0
    v_mov_b32 v8, 1
    """)
    for tt in range(2):
        for t in range(4):
            e(f"buffer_store_dwordx4 {acc2(tt, 4+t)}, v6, s[16:19], {'s43' if tt == 0 else 's58'} offen offset:{t*1024} sc1")
    e(f"""
    s_waitcnt vmcnt(0)
    s_mov_b64 exec, 1
    buffer_store_dword v8, v7, s[16:19], s45 offen sc1
    s_mov_b64 exec, -1
    s_mov_b32 s57, 0
    L_g2_poll:
    buffer_load_dword v9, v7, s[16:19], s46 offen sc1
    s_waitcnt vmcnt(0)
    v_readfirstlane_b32 s56, v9
    s_cmp_eq_u32 s56, 1
    s_cbranch_scc1 L_g2_polled
    s_add_u32 s57, s57, 1
    s_cmp_gt_u32 s57, {POLL_MAX}
    s_cbranch_scc1 L_g2_polled
    s_branch L_g2_poll
    L_g2_polled:
    """)
    for tt in range(2):
        for t in range(4):
            b = RES + (tt * 4 + t) * 4
            e(f"buffer_load_dwordx4 v[{b}:{b+3}], v6, s[16:19], {'s44' if tt == 0 else 's59'} offen offset:{t*1024} sc1")
    for tt in range(2):
        for tp in range(2):
            e(f"s_waitcnt vmcnt({6 - (tt*2+tp)})")
            a0 = accb2(tt, 2*tp); a1 = accb2(tt, 2*tp+1); d = 16 + (tt*2+tp)*4
            r0 = RES + (tt*4 + 2*tp)*4; r1 = r0 + 4
            for (a, r) in ((a0, r0), (a1, r1)):
                e(f"v_pk_add_f32 v[{a}:{a+1}], v[{a}:{a+1}], v[{r}:{r+1}]\nv_pk_add_f32 v[{a+2}:{a+3}], v[{a+2}:{a+3}], v[{r+2}:{r+3}]")
            e(f"v_cvt_pk_bf16_f32 v{d}, v{a0}, v{a0+1}\nv_cvt_pk_bf16_f32 v{d+1}, v{a0+2}, v{a0+3}\nv_cvt_pk_bf16_f32 v{d+2}, v{a1}, v{a1+1}\nv_cvt_pk_bf16_f32 v{d+3}, v{a1+2}, v{a1+3}")
            e("s_nop 1")
            e(f"v_permlane16_swap_b32 v{d}, v{d+2}\nv_permlane16_swap_b32 v{d+1}, v{d+3}")
            e(f"buffer_store_dwordx4 v[{d}:{d+3}], v3, s[88:91], {'s41' if tt==0 else 's42'} offen offset:{tp*64}")
    if timing:
        e("s_waitcnt vmcnt(0)")
        stamp(e, 7, 4)
        e("s_waitcnt lgkmcnt(0)\ns_mov_b32 s88, s32\ns_mov_b32 s90, s34")
        timing_store(e, "s[16:19]", 8, 60, 1)
        e(f"""
        s_cmp_lg_u32 s2, {dw}
        s_cbranch_scc1 L_g12_end
        s_cmp_lg_u32 s3, 0
        s_cbranch_scc1 L_g12_end
        s_waitcnt vmcnt(0)
        v_lshlrev_b32 v4, 10, v0
        v_add_u32 v4, {WS_TM + 4*dw}, v4
        buffer_load_dword v5, v4, s[16:19], 0 offen sc1
        v_add_u32 v4, 0x10000, v4
        buffer_load_dword v6, v4, s[16:19], 0 offen sc1
        s_waitcnt vmcnt(0)
        v_readlane_b32 s41, v5, 10
        v_readlane_b32 s42, v6, 14
        s_sub_u32 s41, s42, s41
        v_lshlrev_b32 v7, 2, v0
        v_subrev_u32 v8, 16, v7
        v_cmp_le_u32 vcc, 4, v0
        v_mov_b32 v9, 0x1000
        s_nop 1
        v_cndmask_b32 v8, v9, v8, vcc
        v_cmp_gt_u32 vcc, 10, v0
        s_nop 1
        v_cndmask_b32 v8, v9, v8, vcc
        buffer_store_dword v5, v8, s[48:51], 0 offen
        v_add_u32 v8, 4, v7
        v_cmp_le_u32 vcc, 6, v0
        s_nop 1
        v_cndmask_b32 v8, v9, v8, vcc
        v_cmp_gt_u32 vcc, 14, v0
        s_nop 1
        v_cndmask_b32 v8, v9, v8, vcc
        buffer_store_dword v6, v8, s[48:51], 0 offen
        v_mov_b32 v5, s41
        v_mov_b32 v8, 24
        buffer_store_dword v5, v8, s[48:51], 0 offen
        """)
    e("L_g12_end:\ns_endpgm")
    return kstart(name) + e.text(), kdesc(name, 512, 102, 256), f"; @launch kernel={name} grid=(256,1,1) block=(256,1,1) lds={LDS_G12}\n"
```

```python
import sys, k1, g12
from common import *
def spin(mult, off):
    name = "spin_kernel"
    e = Em()
    e(f"""
    s_cmp_ge_u32 s2, 1
    s_cbranch_scc1 L_sp_end
    s_load_dwordx2 s[4:5], s[0:1], {KA['ws']}
    s_waitcnt lgkmcnt(0)
    {srd(8, 4, WS_SIZE)}
    v_mov_b32 v1, {off}
    buffer_load_dword v2, v1, s[8:11], 0 offen sc1
    buffer_load_dword v3, v1, s[8:11], 0 offen offset:4 sc1
    s_memrealtime s[12:13]
    s_waitcnt vmcnt(0) lgkmcnt(0)
    v_readfirstlane_b32 s14, v2
    s_sub_u32 s14, s12, s14
    s_min_u32 s14, s14, 20000
    s_mul_i32 s14, s14, {mult}
    L_sp:
    s_memrealtime s[16:17]
    s_waitcnt lgkmcnt(0)
    s_sub_u32 s18, s16, s12
    s_cmp_lt_u32 s18, s14
    s_cbranch_scc1 L_sp
    L_sp_end:
    s_endpgm
    """)
    return kstart(name) + e.text(), kdesc(name, 8, 24), f"; @launch kernel={name} grid=(1,1,1) block=(64,1,1) lds=0\n"
fn = sys.argv[1]; mult = int(sys.argv[2]); which = sys.argv[3]
off = {"k1": WS_TM + 10*1024, "g12": WS_TM + 0x10000 + 14*1024}[which]
parts = [k1.gen(timing=True), g12.gen(timing=True), spin(mult, off)]
hdr = open("sequential_preLN__ssm_conv_h3__glu_gated_swiglu__prompt.s.ref").read().split("; Override")[0]
o = hdr + "".join(p[2] for p in parts) + HEADER + "".join(p[0] for p in parts) + RODATA + ".p2align 6\n".join(p[1] for p in parts)
open(fn, "w").write(o)
```

```python
import sys, k1, g12
from common import *
def spin(mult, off):
    name = "spin_kernel"
    e = Em()
    e(f"""
    s_cmp_ge_u32 s2, 1
    s_cbranch_scc1 L_sp_end
    s_load_dwordx2 s[4:5], s[0:1], {KA['ws']}
    s_waitcnt lgkmcnt(0)
    {srd(8, 4, WS_SIZE)}
    v_mov_b32 v1, {off}
    buffer_load_dword v2, v1, s[8:11], 0 offen sc1
    buffer_load_dword v3, v1, s[8:11], 0 offen offset:4 sc1
    s_memrealtime s[12:13]
    s_waitcnt vmcnt(0) lgkmcnt(0)
    v_readfirstlane_b32 s14, v2
    {"s_sub_u32 s14, s12, s14" if ABS else ""}
    s_min_u32 s14, s14, 20000
    s_mul_i32 s14, s14, {mult}
    L_sp:
    s_memrealtime s[16:17]
    s_waitcnt lgkmcnt(0)
    s_sub_u32 s18, s16, s12
    s_cmp_lt_u32 s18, s14
    s_cbranch_scc1 L_sp
    L_sp_end:
    s_endpgm
    """)
    return kstart(name) + e.text(), kdesc(name, 8, 24), f"; @launch kernel={name} grid=(1,1,1) block=(64,1,1) lds=0\n"
fn = sys.argv[1]; mult = int(sys.argv[2]); which = sys.argv[3]
ABS = which in ("k1", "g12")
if ABS: off = {"k1": WS_TM + 10*1024, "g12": WS_TM + 0x10000 + 14*1024}[which]
elif which[0] == "k": off = WS_TM + (5 + int(which[2:]) - 1)*1024 + 4*77
else: off = WS_TM + 0x10000 + (7 + int(which[2:]) - 1)*1024 + 4*77
kw = dict(a.split("=") for a in sys.argv[4:])
k1kw = {k[3:]: (v if k[3:] in ("st_flags","pfl","csl","xl","sll","xpfl") else int(v)) for k, v in kw.items() if k.startswith("k1_")}
gkw = {k[2:]: (v if k[2:] in ("ldf","wf") else int(v)) for k, v in kw.items() if k.startswith("g_")}
parts = [k1.gen(timing=True, **k1kw), g12.gen(timing=True, **gkw), spin(mult, off)]
hdr = open("sequential_preLN__ssm_conv_h3__glu_gated_swiglu__prompt.s.ref").read().split("; Override")[0]
o = hdr + "".join(p[2] for p in parts) + HEADER + "".join(p[0] for p in parts) + RODATA + ".p2align 6\n".join(p[1] for p in parts)
open(fn, "w").write(o)
```

```python
import sys, k1, g12
from common import *
def spin(mult, off):
    name = "spin_kernel"
    e = Em()
    e(f"""
    s_cmp_ge_u32 s2, 1
    s_cbranch_scc1 L_sp_end
    s_load_dwordx2 s[4:5], s[0:1], {KA['ws']}
    s_waitcnt lgkmcnt(0)
    {srd(8, 4, WS_SIZE)}
    v_mov_b32 v1, {off}
    buffer_load_dword v2, v1, s[8:11], 0 offen sc1
    buffer_load_dword v3, v1, s[8:11], 0 offen offset:4 sc1
    s_memrealtime s[12:13]
    s_waitcnt vmcnt(0) lgkmcnt(0)
    v_readfirstlane_b32 s14, v2
    {"s_sub_u32 s14, s12, s14" if ABS else ""}
    s_min_u32 s14, s14, 20000
    s_mul_i32 s14, s14, {mult}
    L_sp:
    s_memrealtime s[16:17]
    s_waitcnt lgkmcnt(0)
    s_sub_u32 s18, s16, s12
    s_cmp_lt_u32 s18, s14
    s_cbranch_scc1 L_sp
    L_sp_end:
    s_endpgm
    """)
    return kstart(name) + e.text(), kdesc(name, 8, 24), f"; @launch kernel={name} grid=(1,1,1) block=(64,1,1) lds=0\n"
def spin2(mult, off_start, off_rel, op="max"):
    name = "spin_kernel"
    e = Em()
    e(f"""
    s_cmp_ge_u32 s2, 1
    s_cbranch_scc1 L_sp_end
    s_load_dwordx2 s[4:5], s[0:1], {KA['ws']}
    s_waitcnt lgkmcnt(0)
    {srd(8, 4, WS_SIZE)}
    v_lshlrev_b32 v1, 4, v0
    s_mov_b32 s20, {off_start}
    s_mov_b32 s21, {off_rel if off_rel else 0}
    buffer_load_dwordx4 v[4:7], v1, s[8:11], s20 offen sc1
    buffer_load_dwordx4 v[8:11], v1, s[8:11], s21 offen sc1
    s_waitcnt vmcnt(0)
    v_readfirstlane_b32 s14, v4
    s_sub_u32 s14, s14, 0x100000
    v_subrev_u32 v4, s14, v4
    v_subrev_u32 v5, s14, v5
    v_subrev_u32 v6, s14, v6
    v_subrev_u32 v7, s14, v7
    v_min_u32 v12, v4, v5
    v_min3_u32 v12, v12, v6, v7
    """)
    if off_rel: e("v_add_u32 v4, v4, v8\nv_add_u32 v5, v5, v9\nv_add_u32 v6, v6, v10\nv_add_u32 v7, v7, v11")
    e(f"v_{op}_u32 v13, v4, v5\nv_{op}3_u32 v13, v13, v6, v7\ns_mov_b32 s15, -1\ns_mov_b32 s16, {0 if op == 'max' else -1}\ns_nop 1")
    for l in range(64):
        e(f"v_readlane_b32 s17, v12, {l}\nv_readlane_b32 s18, v13, {l}\ns_min_u32 s15, s15, s17\ns_{op}_u32 s16, s16, s18")
    e(f"""
    s_sub_u32 s14, s16, s15
    s_min_u32 s14, s14, 20000
    s_mul_i32 s14, s14, {mult}
    s_memrealtime s[12:13]
    s_waitcnt lgkmcnt(0)
    L_sp:
    s_memrealtime s[16:17]
    s_waitcnt lgkmcnt(0)
    s_sub_u32 s18, s16, s12
    s_cmp_lt_u32 s18, s14
    s_cbranch_scc1 L_sp
    L_sp_end:
    s_endpgm
    """)
    return kstart(name) + e.text(), kdesc(name, 16, 24), f"; @launch kernel={name} grid=(1,1,1) block=(64,1,1) lds=0\n"
fn = sys.argv[1]; mult = int(sys.argv[2]); which = sys.argv[3]
ABS = which in ("k1", "g12")
SP2 = None
if which[0] in "MN":
    base = WS_TM if which[1] == "k" else WS_TM + 0x10000
    np_ = 5 if which[1] == "k" else 7
    i = int(which[2:])
    SP2 = (base + 2*np_*1024, (base + (np_ + i - 1)*1024) if i else None, "max" if which[0] == "M" else "min"); off = 0
elif ABS: off = {"k1": WS_TM + 10*1024, "g12": WS_TM + 0x10000 + 14*1024}[which]
elif which[0] == "k": off = WS_TM + (5 + int(which[2:]) - 1)*1024 + 4*77
else: off = WS_TM + 0x10000 + (7 + int(which[2:]) - 1)*1024 + 4*77
kw = dict(a.split("=") for a in sys.argv[4:])
k1kw = {k[3:]: (v if k[3:] in ("st_flags","pfl","csl","xl","sll","xpfl") else int(v)) for k, v in kw.items() if k.startswith("k1_")}
gkw = {k[2:]: (v if k[2:] in ("ldf","wf") else int(v)) for k, v in kw.items() if k.startswith("g_")}
parts = [k1.gen(timing=True, **k1kw), g12.gen(timing=True, **gkw), spin2(mult, *SP2) if SP2 else spin(mult, off)]
hdr = open("sequential_preLN__ssm_conv_h3__glu_gated_swiglu__prompt.s.ref").read().split("; Override")[0]
o = hdr + "".join(p[2] for p in parts) + HEADER + "".join(p[0] for p in parts) + RODATA + ".p2align 6\n".join(p[1] for p in parts)
open(fn, "w").write(o)
```

```python
import sys, k1, g12
from common import *
def spin(mult, off):
    name = "spin_kernel"
    e = Em()
    e(f"""
    s_cmp_ge_u32 s2, 1
    s_cbranch_scc1 L_sp_end
    s_load_dwordx2 s[4:5], s[0:1], {KA['ws']}
    s_waitcnt lgkmcnt(0)
    {srd(8, 4, WS_SIZE)}
    v_mov_b32 v1, {off}
    buffer_load_dword v2, v1, s[8:11], 0 offen sc1
    buffer_load_dword v3, v1, s[8:11], 0 offen offset:4 sc1
    s_memrealtime s[12:13]
    s_waitcnt vmcnt(0) lgkmcnt(0)
    v_readfirstlane_b32 s14, v2
    {"s_sub_u32 s14, s12, s14" if ABS else ""}
    s_min_u32 s14, s14, 20000
    s_mul_i32 s14, s14, {mult}
    L_sp:
    s_memrealtime s[16:17]
    s_waitcnt lgkmcnt(0)
    s_sub_u32 s18, s16, s12
    s_cmp_lt_u32 s18, s14
    s_cbranch_scc1 L_sp
    L_sp_end:
    s_endpgm
    """)
    return kstart(name) + e.text(), kdesc(name, 8, 24), f"; @launch kernel={name} grid=(1,1,1) block=(64,1,1) lds=0\n"
def spin2(mult, off_start, off_rel, op="max", xcd=None):
    name = "spin_kernel"
    e = Em()
    e(f"""
    s_cmp_ge_u32 s2, 1
    s_cbranch_scc1 L_sp_end
    s_load_dwordx2 s[4:5], s[0:1], {KA['ws']}
    s_waitcnt lgkmcnt(0)
    {srd(8, 4, WS_SIZE)}
    v_lshlrev_b32 v1, 4, v0
    s_mov_b32 s20, {off_start}
    s_mov_b32 s21, {off_rel if off_rel else 0}
    buffer_load_dwordx4 v[4:7], v1, s[8:11], s20 offen sc1
    buffer_load_dwordx4 v[8:11], v1, s[8:11], s21 offen sc1
    s_waitcnt vmcnt(0)
    v_readfirstlane_b32 s14, v4
    s_sub_u32 s14, s14, 0x100000
    v_subrev_u32 v4, s14, v4
    v_subrev_u32 v5, s14, v5
    v_subrev_u32 v6, s14, v6
    v_subrev_u32 v7, s14, v7
    v_min_u32 v12, v4, v5
    v_min3_u32 v12, v12, v6, v7
    """)
    if off_rel: e("v_add_u32 v4, v4, v8\nv_add_u32 v5, v5, v9\nv_add_u32 v6, v6, v10\nv_add_u32 v7, v7, v11")
    if xcd is not None: e(f"v_mov_b32 v4, v{4 + (xcd & 3)}\nv_mov_b32 v5, v4\nv_mov_b32 v6, v4\nv_mov_b32 v7, v4")
    e(f"v_{op}_u32 v13, v4, v5\nv_{op}3_u32 v13, v13, v6, v7\ns_mov_b32 s15, -1\ns_mov_b32 s16, {0 if op == 'max' else -1}\ns_nop 1")
    for l in range(64):
        e(f"v_readlane_b32 s17, v12, {l}\nv_readlane_b32 s18, v13, {l if xcd is None else (l & ~1) | (xcd >> 2)}\ns_min_u32 s15, s15, s17\ns_{op}_u32 s16, s16, s18")
    e(f"""
    s_sub_u32 s14, s16, s15
    s_min_u32 s14, s14, 20000
    s_mul_i32 s14, s14, {mult}
    s_memrealtime s[12:13]
    s_waitcnt lgkmcnt(0)
    L_sp:
    s_memrealtime s[16:17]
    s_waitcnt lgkmcnt(0)
    s_sub_u32 s18, s16, s12
    s_cmp_lt_u32 s18, s14
    s_cbranch_scc1 L_sp
    L_sp_end:
    s_endpgm
    """)
    return kstart(name) + e.text(), kdesc(name, 16, 24), f"; @launch kernel={name} grid=(1,1,1) block=(64,1,1) lds=0\n"
fn = sys.argv[1]; mult = int(sys.argv[2]); which = sys.argv[3]
ABS = which in ("k1", "g12")
SP2 = None
if which[0] in "MN":
    base = WS_TM if which[1] == "k" else WS_TM + 0x10000
    np_ = 5 if which[1] == "k" else 7
    i = int(which[2])
    X = int(which[4]) if len(which) > 3 else None
    SP2 = (base + 2*np_*1024, (base + (np_ + i - 1)*1024) if i else None, "max" if which[0] == "M" else "min", X); off = 0
elif ABS: off = {"k1": WS_TM + 10*1024, "g12": WS_TM + 0x10000 + 14*1024}[which]
elif which[0] == "k": off = WS_TM + (5 + int(which[2:]) - 1)*1024 + 4*77
else: off = WS_TM + 0x10000 + (7 + int(which[2:]) - 1)*1024 + 4*77
kw = dict(a.split("=") for a in sys.argv[4:])
k1kw = {k[3:]: (v if k[3:] in ("st_flags","pfl","csl","xl","sll","xpfl") else int(v)) for k, v in kw.items() if k.startswith("k1_")}
gkw = {k[2:]: (v if k[2:] in ("ldf","wf") else int(v)) for k, v in kw.items() if k.startswith("g_")}
parts = [k1.gen(timing=True, **k1kw), g12.gen(timing=True, **gkw), spin2(mult, *SP2) if SP2 else spin(mult, off)]
hdr = open("sequential_preLN__ssm_conv_h3__glu_gated_swiglu__prompt.s.ref").read().split("; Override")[0]
o = hdr + "".join(p[2] for p in parts) + HEADER + "".join(p[0] for p in parts) + RODATA + ".p2align 6\n".join(p[1] for p in parts)
open(fn, "w").write(o)
```

```python
from common import *
CPS = 4160
XR = 8 * CPS
CH = XR + 4608 + 64
CSL = 4 * CH
CNT = CSL + 8192
LDS_K1 = CNT + 64
VK = 16
VV = 38
VX = 54
VS = 70
VU = 86
VKV = 130
VC = 162
VW = 86
VCA = 226
VSEL = 234
VT = 242
VF = 130
FR = 8
FD = 6
ACC = 86
def gfr(q, r): b = 4 * (q * 8 + r); return f"a[{b}:{b+3}]"
def ffr(m): b = VF + 4 * (m % FR); return f"v[{b}:{b+3}]"
def acc(j): b = ACC + 4 * j; return f"v[{b}:{b+3}]"

class Col:
    def __init__(self): self.l = []
    def __call__(self, t):
        for l in t.strip("\n").split("\n"):
            if l.strip(): self.l.append(l.strip())

def body(e, timing=False, st_flags="", nox=False, nocs=True, wpf=0, pfm=9, pfl="", csl="", xl="", sll="", xpfl="", x0=4, xd=8, cm0=256, cmd=2, TS=64, sw=1, xpf=0, ncspre=4, cs0=2, csd=4, slpos=1):
    e(f"""
    s_load_dwordx8 s[24:31], s[0:1], 0
    s_load_dwordx4 s[32:35], s[0:1], 32
    s_load_dwordx4 s[36:39], s[0:1], {KA['w1']}
    s_load_dwordx4 s[44:47], s[0:1], {KA['dbg']}
    """)
    if timing: stamp(e, 0, TS)
    e(f"""
    v_lshrrev_b32 v1, 6, v0
    v_and_b32 v0, 63, v0
    s_and_b32 s40, s2, 7
    v_readfirstlane_b32 s3, v1
    s_lshl_b32 s40, s40, 5
    s_lshr_b32 s41, s2, 3
    s_add_u32 s40, s40, s41
    s_lshl_b32 s41, s40, 3
    s_lshl_b32 s42, s3, 20
    s_add_u32 s42, s42, s41
    v_lshlrev_b32 v2, 14, v0
    v_add_u32 v2, s42, v2
    v_lshlrev_b32 v4, 4, v0
    s_lshl_b32 s61, s40, 2
    s_add_u32 s61, s61, s3
    s_lshl_b32 s61, s61, 12
    v_add_u32 v6, s61, v4
    v_subrev_u32 v7, 16, v6
    v_cmp_eq_u32 vcc, 0, v0
    v_mov_b32 v8, 0x80000000
    s_mul_i32 s62, s3, {CH}
    v_cndmask_b32 v8, v7, v8, vcc
    s_bfe_u32 s63, s40, 0x30001
    s_lshl_b32 s63, s63, 11
    s_bitcmp1_b32 s40, 0
    s_waitcnt lgkmcnt(0)
    s_cselect_b32 s12, s28, s26
    s_cselect_b32 s13, s29, s27
    s_and_b32 s13, s13, 0xffff
    s_mov_b32 s14, 4194304
    s_mov_b32 s15, 0x00020000
    """)
    if pfm == 0: e.vmem(f"buffer_load_dword v255, v2, s[12:15], s63 offen {pfl}", "PF")
    elif pfm == 1:
        e("v_lshlrev_b32 v253, 11, v0\nv_add_u32 v253, s42, v253\ns_lshl_b32 s48, s63, 6")
        e.vmem(f"buffer_load_dword v255, v253, s[12:15], s48 offen {pfl}", "PF")
    elif pfm == 2:
        e(f"""
        v_lshrrev_b32 v253, 4, v0
        v_lshlrev_b32 v253, 11, v253
        v_and_b32 v252, 15, v0
        v_lshl_add_u32 v253, v252, 4, v253
        s_lshr_b32 s48, s2, 3
        s_lshl_b32 s48, s48, 2
        s_add_u32 s48, s48, s3
        s_lshl_b32 s48, s48, 15
        s_and_b32 s49, s2, 7
        s_lshl_b32 s49, s49, 8
        s_add_u32 s48, s48, s49
        {srd(8, 26, 4194304)}
        {srd(12, 28, 4194304)}
        """)
        for sr in (8, 12):
            for i in range(4):
                e(f"s_add_u32 s49, s48, {i*8192}")
                e.vmem(f"buffer_load_dwordx4 v[248:251], v253, s[{sr}:{sr+3}], s49 offen {pfl}", "PF")
    e(srd(16, 32, 4194304))
    for c in range(4):
        e.vmem(f"buffer_load_dwordx4 v[{VW+8*c}:{VW+8*c+3}], {'v8' if c == 0 else 'v7'}, s[16:19], 0 offen offset:{1024*c} {pfl}", ("KW", c))
        e.vmem(f"buffer_load_dwordx4 v[{VW+8*c+4}:{VW+8*c+7}], v6, s[16:19], 0 offen offset:{1024*c} {pfl}", ("KW", c))
    e(f"""
    s_lshl_b32 s48, s40, 5
    s_add_u32 s30, s30, s48
    s_addc_u32 s31, s31, 0
    s_load_dwordx8 s[52:59], s[30:31], 0
    s_add_u32 s34, s34, s41
    s_addc_u32 s35, s35, 0
    s_load_dwordx2 s[50:51], s[34:35], 0
    {srd(4, 24, 4194304)}
    {srd(8, 26, 4194304)}
    {srd(12, 28, 4194304)}
    {srd(20, 46, WS_SIZE)}
    s_lshl_b32 s43, s2, 14
    s_lshl_b32 s48, s3, 12
    s_add_u32 s43, s43, s48
    v_add_u32 v5, s43, v4
    v_xor_b32 v3, 15, v0
    v_lshlrev_b32 v3, 11, v3
    v_add_u32 v3, s42, v3
    v_mov_b32 v{VC}, 0
    v_mov_b32 v{VC+1}, 0
    v_mov_b32 v{VC+2}, 0
    v_mov_b32 v{VC+3}, 0
    v_add_u32 v9, s62, v4
    v_mul_u32_u24 v10, {CPS}, v0
    v_add_u32 v10, s62, v10
    s_mov_b32 exec_hi, 0
    ds_write_b128 v9, v[{VC}:{VC+3}] offset:{XR+4096}
    s_mov_b32 exec_lo, 0xff
    ds_write_b128 v10, v[{VC}:{VC+3}]
    v_mov_b32 v10, {CNT}
    ds_write_b32 v10, v{VC}
    s_mov_b32 exec_lo, 15
    s_lshl_b32 s43, s2, 6
    s_add_u32 s43, s43, {WS_ST2}
    s_cmp_eq_u32 s3, 0
    s_cselect_b32 s43, s43, 0x80000000
    """)
    e.vmem(f"buffer_store_dwordx4 v[{VC}:{VC+3}], v4, s[20:23], s43 offen sc1", "Z")
    e(f"s_lshl_b32 s43, s2, 7\ns_add_u32 s43, s43, {WS_CS}\ns_mov_b32 exec_lo, 0xff\ns_cmp_eq_u32 s3, 1\ns_cselect_b32 s43, s43, 0x80000000")
    e.vmem(f"buffer_store_dwordx4 v[{VC}:{VC+3}], v4, s[20:23], s43 offen sc1", "Z")
    e(f"s_lshl_b32 s43, s2, 9\ns_lshl_b32 s48, s3, 7\ns_add_u32 s43, s43, s48\ns_add_u32 s43, s43, {WS_FL}\ns_mov_b32 exec_lo, 0xff\ns_cmp_eq_u32 s3, 0")
    e.vmem(f"buffer_store_dwordx4 v[{VC}:{VC+3}], v4, s[20:23], s43 offen sc1", "Z")
    e(f"""
    s_mov_b64 exec, -1
    v_subrev_u32 v6, {3*2048}, v2
    s_cselect_b32 s43, 0x80000000, 0
    v_or_b32 v6, s43, v6
    s_mov_b32 s48, 4096
    s_mov_b32 s49, 8192
    s_mov_b32 s60, 12288
    """)
    e(f"""
    v_bfe_u32 v11, v0, 2, 2
    v_lshrrev_b32 v12, 4, v0
    v_cmp_eq_u32 vcc, v11, v12
    v_and_b32 v11, 1, v0
    v_lshlrev_b32 v11, 4, v11
    v_mov_b32 v12, 0x3f80
    v_lshlrev_b32 v11, v11, v12
    v_cndmask_b32 v11, 0, v11, vcc
    v_and_b32 v12, 2, v0
    v_cmp_eq_u32 vcc, 0, v12
    v_mov_b32 v{VSEL+2}, 0
    v_mov_b32 v{VSEL+3}, 0
    v_cndmask_b32 v{VSEL}, 0, v11, vcc
    v_cndmask_b32 v{VSEL+1}, v11, 0, vcc
    v_mov_b32 v{VSEL+4}, 0
    v_mov_b32 v{VSEL+5}, 0
    v_mov_b32 v{VSEL+6}, v{VSEL}
    v_mov_b32 v{VSEL+7}, v{VSEL+1}
    """)
    e("s_waitcnt lgkmcnt(0)\ns_barrier")
    e(f"s_waitcnt vmcnt({e.need(['PF'] + ([('KW', 3)] if sw else []))})")
    if timing: stamp(e, 1, TS)
    c_ = Col()
    nt = 0
    for c in range(2):
        W = VW + 8*c
        c_(f"@W{c}")
        for s in range(8):
            sh = s + 1
            off = s*CPS + 16 + 1024*c
            if sh % 4 == 0:
                b = W + sh // 2
                c_(f"ds_write_b128 v9, v[{b}:{b+3}] offset:{off}")
            else:
                t = VW + 32 + 4 * (nt % 8); nt += 1
                for d in range(4):
                    if sh % 2 == 0: c_(f"v_mov_b32 v{t+d}, v{W + sh//2 + d}")
                    else: c_(f"v_alignbit_b32 v{t+d}, v{W + sh//2 + d + 1}, v{W + sh//2 + d}, 16")
                c_(f"ds_write_b128 v9, v[{t}:{t+3}] offset:{off}")
    T = VT
    c_(f"@SLW\ns_mov_b32 s43, 0x3f803f80\nv_mov_b32 v{T}, 0\nv_mov_b32 v{T+1}, 0\nv_mov_b32 v{T+2}, 0\nv_mov_b32 v{T+3}, 0\nv_mov_b32 v{T+4}, s43")
    for i in range(8):
        for r in range(2):
            x = VS + 8*r + i
            c_(f"v_dot2_f32_bf16 v{T+2*r}, v{x}, v{T+4}, v{T+2*r}\nv_dot2_f32_bf16 v{T+1+2*r}, v{x}, v{x}, v{T+1+2*r}")
    c_("s_nop 2")
    for op in ["row_shr:1", "row_shr:2", "row_shr:4", "row_shr:8"]:
        for r in range(4): c_(f"v_add_f32_dpp v{T+r}, v{T+r}, v{T+r} {op} row_mask:0xf bank_mask:0xf bound_ctrl:0")
    for op, m in [("row_bcast:15", "0xa"), ("row_bcast:31", "0xc")]:
        for r in range(4): c_(f"v_add_f32_dpp v{T+r}, v{T+r}, v{T+r} {op} row_mask:{m} bank_mask:0xf")
    c_(f"""
    s_mov_b32 s43, 0x3a800000
    v_mul_f32 v{T}, s43, v{T}
    v_mul_f32 v{T+2}, s43, v{T+2}
    v_mul_f32 v{T+1}, s43, v{T+1}
    v_mul_f32 v{T+3}, s43, v{T+3}
    v_fma_f32 v{T+1}, -v{T}, v{T}, v{T+1}
    v_fma_f32 v{T+3}, -v{T+2}, v{T+2}, v{T+3}
    v_max_f32 v{T+1}, 0, v{T+1}
    v_max_f32 v{T+3}, 0, v{T+3}
    v_add_f32 v{T+1}, 0x3727c5ac, v{T+1}
    v_add_f32 v{T+3}, 0x3727c5ac, v{T+3}
    v_rsq_f32 v{T+1}, v{T+1}
    v_rsq_f32 v{T+3}, v{T+3}
    s_lshl_b32 s43, s2, 6
    s_lshl_b32 s61, s3, 4
    s_add_u32 s43, s43, s61
    s_add_u32 s43, s43, {WS_ST1}
    v_mov_b32 v12, 0
    @SS
    """)
    for c in range(2, 4):
        W = VW + 8*c
        c_(f"@W{c}")
        for s in range(8):
            sh = s + 1
            off = s*CPS + 16 + 1024*c
            if sh % 4 == 0:
                b = W + sh // 2
                c_(f"ds_write_b128 v9, v[{b}:{b+3}] offset:{off}")
            else:
                t = VW + 32 + 4 * (nt % 8); nt += 1
                for d in range(4):
                    if sh % 2 == 0: c_(f"v_mov_b32 v{t+d}, v{W + sh//2 + d}")
                    else: c_(f"v_alignbit_b32 v{t+d}, v{W + sh//2 + d + 1}, v{W + sh//2 + d}, 16")
                c_(f"ds_write_b128 v9, v[{t}:{t+3}] offset:{off}")
    so = ["0", "s48", "s49", "s60"]
    loads = []
    for j in range(8):
        loads.append(("K", f"buffer_load_dwordx2 v[{VK+6+2*j}:{VK+7+2*j}], v2, s[8:11], {so[j//2]} offen offset:{(j%2)*2048}"))
        if j == slpos: loads.append(("SL", None))
    loads.append(("H", None))
    for j in range(8): loads.append(("V", f"buffer_load_dwordx2 v[{VV+2*j}:{VV+1+2*j}], v2, s[12:15], {so[j//2]} offen offset:{(j%2)*2048}"))
    va = c_.l
    every = len(va) // len(loads)
    def issue(ld):
        if ld[0] == "H":
            e("s_mov_b64 exec, 1")
            for j in range(3):
                e.vmem(f"buffer_load_dwordx2 v[{VK+2*j}:{VK+1+2*j}], v6, s[8:11], {so[j//2]} offen offset:{(j%2)*2048}", "K")
            e("s_mov_b64 exec, -1")
        elif ld[0] == "SL":
            for i in range(4):
                e.vmem(f"buffer_load_dwordx4 v[{VS+4*i}:{VS+4*i+3}], v5, s[4:7], 0 offen offset:{i*1024} {sll}", "SL")
        else: e.vmem(ld[1], ld[0])
    for n_, l in enumerate(va):
        if n_ % every == 0 and loads: issue(loads.pop(0))
        if l == "@SS":
            e("s_mov_b32 exec_lo, 0\ns_mov_b32 exec_hi, 0x80000000")
            e.vmem(f"buffer_store_dwordx4 v[{T}:{T+3}], v12, s[20:23], s43 offen sc1", "SS")
            e("s_mov_b64 exec, -1")
        elif l == "@SLW": e(f"s_waitcnt vmcnt({e.need(['SL'])})")
        elif l.startswith("@W"): e(f"s_waitcnt vmcnt({e.need([('KW', int(l[2:]))])})")
        else: e(l)
    assert not loads
    e(f"""
    s_lshr_b32 s49, s2, 3
    s_cmp_ge_u32 s49, 16
    s_cselect_b32 s16, s38, s36
    s_cselect_b32 s17, s39, s37
    s_and_b32 s17, s17, 0xffff
    s_mov_b32 s18, {1024*7168}
    s_mov_b32 s19, 0x00020000
    s_and_b32 s49, s49, 15
    s_lshl_b32 s49, s49, 2
    s_add_u32 s49, s49, s3
    s_mul_i32 s60, s49, {16*7168}
    s_and_b32 s49, s2, 7
    s_mul_i32 s49, s49, 896
    s_add_u32 s60, s60, s49
    v_cmp_gt_u32 vcc, 56, v0
    v_mov_b32 v9, 0x80000000
    s_nop 0
    v_cndmask_b32 v9, v9, v4, vcc
    """)
    e(f"""
    v_mul_u32_u24 v252, 9363, v0
    v_lshrrev_b32 v252, 16, v252
    v_mul_u32_u24 v252, {7168 - 896}, v252
    v_lshl_add_u32 v254, v0, 7, v252
    v_cndmask_b32 v254, v9, v254, vcc
    s_lshr_b32 s49, s2, 3
    s_and_b32 s49, s49, 15
    s_lshl_b32 s49, s49, 2
    s_add_u32 s49, s49, s3
    s_mul_i32 s61, s49, {8*7168}
    s_and_b32 s49, s2, 7
    s_mul_i32 s49, s49, 896
    s_add_u32 s61, s61, s49
    """)
    def csload(i):
        e.vmem(f"buffer_load_dwordx4 v[{VC+4*i}:{VC+4*i+3}], v9, s[16:19], s60 offen {csl}", ("CS", i))
        e(f"s_add_u32 s60, s60, 7168")
    e("s_waitcnt lgkmcnt(0)")
    for j in range(4):
        for c in range(4):
            src = 52 + 2*c + (j >> 1); d = 84 + 4*j + c
            e(f"s_lshl_b32 s{d}, s{src}, 16" if j % 2 == 0 else f"s_and_b32 s{d}, s{src}, 0xffff0000")
    e(f"""
    s_cmp_ge_u32 s3, 2
    s_cselect_b32 s48, s51, s50
    s_bitcmp1_b32 s3, 0
    s_cselect_b32 s49, 0, 16
    s_lshl_b32 s48, s48, s49
    s_and_b32 s48, s48, 0xffff0000
    {srd(36, 44, 256)}
    v_and_b32 v12, 7, v0
    v_mul_u32_u24 v10, {CPS}, v12
    v_bfe_u32 v12, v0, 3, 1
    v_lshrrev_b32 v13, 4, v0
    v_add_u32 v12, v12, v13
    v_lshl_add_u32 v10, v12, 4, v10
    v_add_u32 v10, s62, v10
    v_and_b32 v12, 15, v0
    v_lshlrev_b32 v12, 5, v12
    v_lshlrev_b32 v13, 4, v13
    v_sub_u32 v11, v13, v12
    s_add_u32 s52, s62, {XR + 4064 - 3584}
    v_add_u32 v11, s52, v11
    v_lshrrev_b32 v13, 1, v13
    v_add_u32 v12, v12, v13
    s_add_u32 s52, s62, {XR + 4088 - 3584}
    v_sub_u32 v12, s52, v12
    s_lshl_b32 s49, s3, 10
    s_sub_u32 s49, {XR + 4080}, s49
    v_sub_u32 v8, s49, v4
    v_add_u32 v7, {2*CH}, v8
    """)
    e(f"s_waitcnt vmcnt({e.need(['K', 'SS', 'Z'])})")
    e(f"""
    v_mov_b32 v13, {CNT}
    v_mov_b32 v14, 1
    s_mov_b64 exec, 1
    ds_add_rtn_u32 v15, v13, v14
    s_waitcnt lgkmcnt(0)
    v_readfirstlane_b32 s52, v15
    s_and_b32 s53, s2, 7
    s_lshl_b32 s53, s53, 5
    s_cmp_eq_u32 s52, 3
    s_cselect_b32 s52, s53, 0x1000
    v_mov_b32 v15, 0
    """)
    e.vmem("buffer_atomic_add v14, v15, s[36:39], s52 offen sc1", "SIG")
    e("s_mov_b64 exec, -1")
    for j in range(3):
        for d in range(2):
            e(f"v_mov_b32_dpp v{VK+2*j+d}, v{VK+6+2*(5+j)+d} wave_shr:1 row_mask:0xf bank_mask:0xf")
    for r in list(range(3, 11)) + [0, 1, 2]:
        for d in range(2):
            e(f"v_lshlrev_b32 v{VU+4*r+2*d}, 16, v{VK+2*r+d}\nv_and_b32 v{VU+4*r+2*d+1}, 0xffff0000, v{VK+2*r+d}")
    for i in range(8):
        for j in range(4):
            for cp in range(2):
                o = VKV + 4*i + 2*cp
                kr = VU + 4*(i + 3 - j) + 2*cp
                w = 84 + 4*j + 2*cp
                if j == 0: e(f"v_pk_mul_f32 v[{o}:{o+1}], v[{kr}:{kr+1}], s[{w}:{w+1}]")
                else: e(f"v_pk_fma_f32 v[{o}:{o+1}], v[{kr}:{kr+1}], s[{w}:{w+1}], v[{o}:{o+1}]")
    e(f"s_waitcnt vmcnt({e.need(['V', 'SS', 'Z'])})")
    if timing: stamp(e, 2, TS)
    pre = ([("WPF",)] if wpf else []) + ([("XPF",)] if xpf else []) + ([] if nocs else [("CS", i) for i in range(ncspre)])
    def prel():
        if pre:
            x = pre.pop(0)
            if x[0] == "XPF": e.vmem(f"buffer_load_dword v255, v2, s[4:7], s63 offen {xpfl}", "XPF")
            elif x[0] == "WPF": e.vmem(f"buffer_load_dword v255, v254, s[16:19], s61 offen", "WPF")
            else: csload(x[1])
    for i in range(8):
        for cp in range(2):
            o = VKV + 4*i + 2*cp; sv = VV + 2*i + cp; t = VK + 2*((2*i+cp) % 8)
            e(f"v_lshlrev_b32 v{t}, 16, v{sv}\nv_and_b32 v{t+1}, 0xffff0000, v{sv}\nv_pk_mul_f32 v[{o}:{o+1}], v[{o}:{o+1}], v[{t}:{t+1}]")
        if i % 2 == 0: prel()
    for c in range(4):
        b = VV + 4*c
        for d in range(4):
            e(f"v_cvt_pk_bf16_f32 v{b+d}, v{VKV+4*(7-2*d)+c}, v{VKV+4*(6-2*d)+c}")
        e(f"ds_write_b128 {'v8' if c < 2 else 'v7'}, v[{b}:{b+3}] offset:{(c%2)*CH}")
    while pre: prel()
    e(f"s_waitcnt lgkmcnt(0)\ns_barrier")
    if timing: stamp(e, 3, TS)
    lds = []
    def fread(m): e(f"ds_read_b128 {ffr(m)}, v10 offset:{64*m}"); lds.append(f"F{m}")
    def gread(q, r): e(f"ds_read_b128 {gfr(q,r)}, v11 offset:{512*(7-q) + 64*r}"); lds.append(f"G{r}")
    def lwait(tags):
        nonlocal lds
        need_ = [i_ for i_, t_ in enumerate(lds) if t_ in tags]
        if need_:
            e(f"s_waitcnt lgkmcnt({min(len(lds) - 1 - max(need_), 15)})")
            lds = lds[max(need_)+1:]
    fread(0)
    for q in range(8): gread(q, 0)
    fread(1)
    e(f"""
    s_mov_b32 s49, 0
    v_lshlrev_b32 v14, 5, v0
    v_xor_b32 v5, 15, v0
    v_lshlrev_b32 v5, 3, v5
    s_lshl_b32 s52, s3, 12
    s_add_u32 s52, s52, {WS_ST1}
    """)
    nextF = 2
    sched = {}
    if not nox:
        for n in range(32): sched.setdefault(x0 + xd*n, []).append(("X", n))
    sched.setdefault(215, []).append(("POLL",))
    sched.setdefault(262, []).append(("CHK",))
    if not nocs:
        for i in range(16): sched.setdefault(cm0 + cmd*i, []).append(("CM", i))
        for i in range(ncspre, 16): sched.setdefault(cs0 + csd*(i-ncspre), []).append(("CS", i))
    ep1 = []
    def ep1_ops(j):
        a = ACC + 4*j; kk = VK + 2*j; t = VV + 4*(j % 4)
        ops = [lambda: lwait([f"Y{j}"])]
        ops += [f"v_and_b32 v{t}, 0xffff0000, v{kk+1}", f"v_lshlrev_b32 v{t+1}, 16, v{kk+1}", f"v_and_b32 v{t+2}, 0xffff0000, v{kk}", f"v_lshlrev_b32 v{t+3}, 16, v{kk}"]
        ops += [f"v_fma_f32 v{a+i}, s48, v{t+i}, v{a+i}" for i in range(4)]
        ops += [f"v_cvt_pk_bf16_f32 v{kk}, v{a+3}, v{a+2}", f"v_cvt_pk_bf16_f32 v{kk+1}, v{a+1}, v{a}"]
        def wr(): e(f"ds_write_b64 v12, v[{kk}:{kk+1}] offset:{512*(7-j)}"); lds.append("W")
        ops.append(wr)
        return ops
    nm = 0
    xi = 0
    for m in range(64):
        p, r = m // 8, m % 8
        lwait([f"F{m}", f"G{m}"])
        fills = []
        if p == 0 and r < 7: fills += [("G", q, r + 1) for q in range(8)]
        lim = m + 2 if p == 0 and r < 6 else m + FD
        while nextF <= lim and nextF < 64 and len([f for f in fills if f[0] == "F"]) < 2:
            fills.append(("F", nextF)); nextF += 1
        if p == 1: fills.append(("Y", r))
        if r == 3 and p >= 2: ep1 += ep1_ops(p - 2)
        if m == 62: ep1 += ep1_ops(6)
        nq = 8 - p
        for q in range(nq):
            j = p + q
            c = "0" if m == 0 else acc(j)
            e(f"v_mfma_f32_16x16x32_bf16 {acc(j)}, {ffr(m)}, {gfr(q,r)}, {c}")
            nm += 1
            take = fills[:2] if p == 0 else fills[:1]
            if q == nq - 1: take = fills
            fills = fills[len(take):]
            for f in take:
                if f[0] == "G": gread(f[1], f[2])
                elif f[0] == "F": fread(f[1])
                else:
                    e(f"ds_read_b64 v[{VK+2*f[1]}:{VK+2*f[1]+1}], v12 offset:{512*(7-f[1])}"); lds.append(f"Y{f[1]}")
            for s_ in sched.get(nm, []):
                if s_[0] == "X":
                    n = s_[1]; i = n >> 2
                    e(f"s_cmp_lg_u32 s3, {n & 3}\ns_cbranch_scc1 L_k1_x{n}")
                    l = f"buffer_load_dwordx2 v[{VX+2*i}:{VX+2*i+1}], v3, s[4:7], s49 offen {xl}"
                    if n & 3 == 0: e.vmem(l, "X")
                    else: e(l)
                    e(f"L_k1_x{n}:")
                    if n & 3 == 3: e(f"s_add_u32 s49, s49, {64*2048}")
                elif s_[0] == "CS": csload(s_[1])
                elif s_[0] == "CM":
                    i = s_[1]
                    if i == 0: e(f"s_waitcnt vmcnt({max(0, e.need([('CS', 15)]) - 1)})")
                    for h_ in range(2):
                        cc = "0" if i == 0 else f"v[{VCA+4*h_}:{VCA+4*h_+3}]"
                        e(f"v_mfma_f32_16x16x32_bf16 v[{VCA+4*h_}:{VCA+4*h_+3}], v[{VSEL+4*h_}:{VSEL+4*h_+3}], v[{VC+4*i}:{VC+4*i+3}], {cc}")
                elif s_[0] == "POLL":
                    e.vmem("buffer_load_dword v15, v14, s[36:39], 0 offen sc1", "PL")
                elif s_[0] == "CHK":
                    e(f"""
                    s_waitcnt vmcnt({max(0, e.need(['PL']) - 1)})
                    s_mov_b32 s53, 0
                    L_k1_poll:
                    v_cmp_eq_u32 vcc, 32, v15
                    s_cmp_eq_u32 vcc_lo, 0xff
                    s_cbranch_scc1 L_k1_polled
                    s_add_u32 s53, s53, 1
                    s_cmp_gt_u32 s53, {POLL_MAX}
                    s_cbranch_scc1 L_k1_polled
                    s_sleep 2
                    buffer_load_dword v15, v14, s[36:39], 0 offen sc1
                    s_waitcnt vmcnt(0)
                    s_branch L_k1_poll
                    L_k1_polled:
                    """)
                    for i in range(8):
                        e.vmem(f"buffer_load_dwordx2 v[{VS+2*i}:{VS+2*i+1}], v5, s[20:23], s52 offen offset:{512*i} sc1", "ST")
            for _ in range(1 if p < 6 else 2):
                if ep1 and not take:
                    x = ep1.pop(0)
                    if callable(x): x()
                    else: e(x)
    if timing: stamp(e, 4, TS)
    e(f"""
    v_bfe_u32 v14, v0, 2, 2
    v_mul_u32_u24 v14, {CH}, v14
    v_lshrrev_b32 v15, 4, v0
    v_lshlrev_b32 v15, 5, v15
    v_sub_u32 v14, v14, v15
    v_and_b32 v15, 3, v0
    v_lshl_add_u32 v14, v15, 3, v14
    s_lshl_b32 s52, s3, 10
    s_sub_u32 s52, {XR + 4064 - 896}, s52
    v_add_u32 v14, s52, v14
    v_lshrrev_b32 v15, 5, v0
    v_lshlrev_b32 v15, 16, v15
    v_xor_b32 v9, 15, v0
    v_and_b32 v9, 31, v9
    v_lshl_add_u32 v15, v9, 4, v15
    """)
    if not nocs:
        e(f"""
        s_lshl_b32 s53, s3, 11
        s_add_u32 s53, s53, {CSL}
        v_lshlrev_b32 v9, 5, v0
        v_add_u32 v9, s53, v9
        ds_write_b128 v9, v[{VCA}:{VCA+3}]
        ds_write_b128 v9, v[{VCA+4}:{VCA+7}] offset:16
        """)
        lds += ["W", "W"]
    for x in ep1 + ep1_ops(7):
        if callable(x): x()
        else: e(x)
    e(f"""
    s_lshl_b32 s52, s3, 20
    s_lshr_b32 s53, s40, 2
    s_lshl_b32 s53, s53, 10
    s_add_u32 s52, s52, s53
    s_and_b32 s53, s40, 1
    s_lshl_b32 s53, s53, 9
    s_add_u32 s52, s52, s53
    s_and_b32 s53, s40, 2
    s_lshl_b32 s53, s53, 2
    s_add_u32 s52, s52, s53
    s_lshl_b32 s53, s3, 9
    v_lshlrev_b32 v9, 3, v0
    v_add_u32 v9, s53, v9
    v_add_u32 v8, {CSL}, v9
    s_waitcnt lgkmcnt(0)
    s_barrier
    """)
    for i in range(8): e(f"ds_read_b64_tr_b16 v[{VK+2*i}:{VK+2*i+1}], v14 offset:{128*(7-i)}")
    if not nocs:
        for i in range(4): e(f"ds_read_b64 v[{VC+2*i}:{VC+2*i+1}], v8 offset:{2048*i}")
    e("s_waitcnt vmcnt(0) lgkmcnt(4)" if not nocs else "s_waitcnt vmcnt(0) lgkmcnt(0)")
    for i in range(8):
        x = VX + 2*i; y = VK + 2*i; st = VS + 2*i; t = VU + 12*(i % 2)
        e(f"""
        v_lshlrev_b32 v{t}, 16, v{x}
        v_and_b32 v{t+1}, 0xffff0000, v{x}
        v_lshlrev_b32 v{t+2}, 16, v{x+1}
        v_and_b32 v{t+3}, 0xffff0000, v{x+1}
        v_mul_f32 v{st}, v{st}, v{st+1}
        v_lshlrev_b32 v{t+4}, 16, v{y}
        v_and_b32 v{t+5}, 0xffff0000, v{y}
        v_lshlrev_b32 v{t+6}, 16, v{y+1}
        v_and_b32 v{t+7}, 0xffff0000, v{y+1}
        v_pk_fma_f32 v[{t+8}:{t+9}], v[{t}:{t+1}], v[{st}:{st+1}], v[{st}:{st+1}] op_sel:[0,1,0] op_sel_hi:[1,1,0] neg_lo:[0,0,1] neg_hi:[0,0,1]
        v_pk_fma_f32 v[{t+10}:{t+11}], v[{t+2}:{t+3}], v[{st}:{st+1}], v[{st}:{st+1}] op_sel:[0,1,0] op_sel_hi:[1,1,0] neg_lo:[0,0,1] neg_hi:[0,0,1]
        v_pk_fma_f32 v[{t}:{t+1}], v[{t+8}:{t+9}], v[{t+4}:{t+5}], v[{t}:{t+1}]
        v_pk_fma_f32 v[{t+2}:{t+3}], v[{t+10}:{t+11}], v[{t+6}:{t+7}], v[{t+2}:{t+3}]
        v_cvt_pk_bf16_f32 v{x}, v{t}, v{t+1}
        v_cvt_pk_bf16_f32 v{x+1}, v{t+2}, v{t+3}
        buffer_store_dwordx2 v[{x}:{x+1}], v15, s[20:23], s52 offen {st_flags}
        s_add_u32 s52, s52, {2*65536}
        """)
    if not nocs: e(f"""
    s_waitcnt lgkmcnt(0)
    v_pk_add_f32 v[{VC}:{VC+1}], v[{VC}:{VC+1}], v[{VC+2}:{VC+3}]
    v_pk_add_f32 v[{VC+4}:{VC+5}], v[{VC+4}:{VC+5}], v[{VC+6}:{VC+7}]
    v_cmp_gt_u32 vcc, 1792, v9
    v_mov_b32 v8, 0x80000000
    v_pk_add_f32 v[{VC}:{VC+1}], v[{VC}:{VC+1}], v[{VC+4}:{VC+5}]
    v_cndmask_b32 v9, v8, v9, vcc
    s_lshr_b32 s52, s2, 3
    s_and_b32 s53, s52, 15
    s_mul_i32 s53, s53, {7168*4}
    s_lshr_b32 s52, s52, 4
    s_mul_i32 s52, s52, {3584*4}
    s_add_u32 s52, s52, s53
    s_and_b32 s53, s2, 7
    s_mul_i32 s53, s53, 1792
    s_add_u32 s52, s52, s53
    s_add_u32 s52, s52, {WS_CSP}
    buffer_store_dwordx2 v[{VC}:{VC+1}], v9, s[20:23], s52 offen {st_flags}
    """)

def gen(name="k1_kernel", timing=False, **kw):
    e = Em()
    e("s_cmp_ge_u32 s2, 256\ns_cbranch_scc1 L_k1_end")
    body(e, timing, **kw)
    if timing:
        e("s_waitcnt vmcnt(0)")
        stamp(e, 5, 24)
        e("s_waitcnt lgkmcnt(0)\ns_mov_b32 s84, s44\ns_mov_b32 s86, s46")
        timing_store(e, "s[20:23]", 6, 64)
    e("L_k1_end:\ns_endpgm")
    return kstart(name) + e.text(), kdesc(name, 512, 102, 256), f"; @launch kernel={name} grid=(256,1,1) block=(256,1,1) lds={LDS_K1}\n"

if __name__ == "__main__":
    import sys
    kw = dict(a.split("=") for a in sys.argv[2:])
    kw = {k: (v if k in ("st_flags","pfl","csl","xl","sll","xpfl") else int(v)) for k, v in kw.items()}
    code, desc, launch = gen(**kw)
    open(sys.argv[1], "w").write(launch + HEADER + code + RODATA + desc)
```

```python
from common import *
ROWB = 7168
MATB = 14336
STB  = 2 * MATB
R = 4
P = 7
RB = 8
NSTEP = 32
ACC0 = 32
def accb(tt, t): return ACC0 + (t * 4 + tt) * 4
def acc(tt, t): b = accb(tt, t); return f"v[{b}:{b+3}]"
def afr(t, j=None):
    b = t * 4
    return f"a[{b}:{b+3}]" if j is None else f"a[{b+2*j}:{b+2*j+1}]"
BF0 = 56
def bfr(slot, tt): b = BF0 + slot * 16 + tt * 4; return f"a[{b}:{b+3}]"
A_CSR, A_CSA, A_SEL, A_DUM = 184, 216, 224, 232
SK2 = 4
STB2 = SK2 * 8192
R2 = 4
RB2 = 8
P2 = 7
NSTEP2 = 56
NST2 = NSTEP2 // SK2
CS_LDS = R2 * STB2
LDS_G12 = CS_LDS + 8192
def accb2(tt, t): return 32 + (tt * 8 + t) * 4
def acc2(tt, t): b = accb2(tt, t); return f"v[{b}:{b+3}]"
def afr2(buf, t, j=None):
    b = buf * 32 + t * 4
    return f"a[{b}:{b+3}]" if j is None else f"a[{b+2*j}:{b+2*j+1}]"
def bfr2(slot, tt): b = 64 + slot * 8 + tt * 4; return f"a[{b}:{b+3}]"
TB = 96
RES = 112
VD0, VD1 = 28, 29

def k2_blocks(step):
    if step < 48: k = 7 * (step % 16) + 2 * (step // 16); return k, k + 1
    i = 2 * (step - 48); return 7 * i + 6, 7 * (i + 1) + 6

def roll(e, segs, label, ctr="s23"):
    txt = [e.text(a, b) for a, b in segs]
    out = ""; i = 0; nl = 0
    while i < len(txt):
        j = i
        while j + 1 < len(txt) and txt[j+1] == txt[i]: j += 1
        if j > i:
            out += f"s_mov_b32 {ctr}, 0\n{label}{nl}:\n" + txt[i] + f"s_add_u32 {ctr}, {ctr}, 1\ns_cmp_lt_u32 {ctr}, {j-i+1}\ns_cbranch_scc1 {label}{nl}\n"
            nl += 1
        else: out += txt[i]
        i = j + 1
    return out, nl

def gen(name="g12_kernel", timing=False, ldf="", wf="", w2pf=1, TL=0, nomfma2=False, noload2=False, dw=0, noex=0, rollx=0, nocs=0):
    e = Em()
    e(f"""
    s_cmp_ge_u32 s2, 256
    s_cbranch_scc1 L_g12_end
    s_load_dwordx4 s[44:47], s[0:1], {KA['dbg']}
    s_load_dwordx4 s[28:31], s[0:1], {KA['w1']}
    s_load_dwordx4 s[92:95], s[0:1], {KA['w2']}
    """)
    if timing: stamp(e, 0)
    e(f"""
    v_lshrrev_b32 v1, 6, v0
    v_and_b32 v0, 63, v0
    s_and_b32 s32, s2, 7
    v_readfirstlane_b32 s3, v1
    s_lshr_b32 s33, s2, 3
    s_and_b32 s34, s33, 7
    s_lshl_b32 s35, s32, 2
    s_lshr_b32 s36, s33, 3
    s_add_u32 s35, s35, s36
    s_lshl_b32 s36, s34, 3
    s_lshl_b32 s37, s3, 1
    s_add_u32 s36, s36, s37
    s_lshl_b32 s37, s36, 16
    s_and_b32 s38, s3, 1
    s_mul_i32 s38, s38, {32*ROWB}
    s_mul_i32 s39, s35, 224
    s_add_u32 s38, s38, s39
    """)
    for i in range(7):
        e(f"""
        v_add_u32 v11, {64*i}, v0
        v_mul_u32_u24 v12, 4682, v11
        v_lshrrev_b32 v12, 16, v12
        v_mul_u32_u24 v13, {ROWB - 224}, v12
        v_lshl_add_u32 v13, v11, 4, v13
        v_add_u32 v{4+i}, s38, v13
        """)
        if i % 4: e(f"v_subrev_u32 v{4+i}, {1024*(i%4)}, v{4+i}")
    e(f"""
    v_lshrrev_b32 v13, 5, v0
    v_lshlrev_b32 v2, 10, v13
    v_bfe_u32 v14, v0, 4, 1
    v_lshlrev_b32 v14, 9, v14
    v_and_b32 v15, 15, v0
    v_lshlrev_b32 v15, 4, v15
    v_add3_u32 v2, v2, v14, v15
    v_add_u32 v2, s37, v2
    v_add_u32 v3, 0x10000, v2
    s_lshr_b32 s40, s3, 1
    s_mul_i32 s40, s40, {MATB}
    s_and_b32 s41, s3, 1
    s_mul_i32 s41, s41, 7168
    s_add_u32 s40, s40, s41
    s_cmp_ge_u32 s3, 2
    s_waitcnt lgkmcnt(0)
    s_cselect_b32 s8, s30, s28
    s_cselect_b32 s9, s31, s29
    s_and_b32 s9, s9, 0xffff
    s_mov_b32 s10, {1024*ROWB}
    s_mov_b32 s11, 0x00020000
    s_mov_b32 s21, 0
    """)
    def dma(i, slot, soff, tag):
        if i % 4 == 0:
            e(f"s_add_u32 m0, s40, {slot*STB + (i//4)*4096}")
            e("s_nop 0")
        e.vmem(f"buffer_load_dwordx4 v{4+i}, s[8:11], {soff} offen offset:{1024*(i%4)} {wf} lds", tag)
    def tok1(step, tt, soff, imm):
        e.vmem(f"buffer_load_dwordx4 {bfr(step % RB, tt)}, v{2+(tt>>1)}, s[4:7], {soff} offen offset:{imm + 256*(tt&1)} {ldf}", ("T", step))
    def trread(step, t, j):
        st = step // 2; kp = step % 2; slot = st % R
        base = "v11" if slot < 2 else "v12"
        off = (slot % 2) * STB + (t & 1) * MATB + (32 * kp + 8 * j) * 224 + 32 * (t >> 1)
        e(f"ds_read_b64_tr_b16 {afr(t, j)}, {base} offset:{off}")
    def ptok(t):
        e(f"s_mov_b32 s20, {(t//2)*4096}")
        for tt in range(4): tok1(t, tt, "s20", (t % 2) * 2048)
    for i in range(7): dma(i, 0, "s21", ("D", 0))
    e(srd(4, 46, 0x400000))
    for t in range(2): ptok(t)
    if timing: stamp(e, 1)
    for st in range(1, R):
        e(f"s_mov_b32 s21, {st*64*ROWB}")
        for i in range(7): dma(i, st, "s21", ("D", st))
        for t in range(2*st, min(2*st+2, P)): ptok(t)
    e("s_lshl_b32 s41, s35, 11")
    for tt in range(4):
        e.vmem(f"buffer_load_dwordx4 v[{16+4*tt}:{19+4*tt}], v{2+(tt>>1)}, s[4:7], s41 offen offset:{256*(tt&1)} {ldf}", ("HS", 0))
    e(f"""
    v_lshrrev_b32 v13, 5, v0
    v_lshlrev_b32 v13, 4, v13
    v_bfe_u32 v14, v0, 2, 3
    v_add_u32 v13, v13, v14
    v_mul_u32_u24 v13, 224, v13
    v_and_b32 v14, 3, v0
    v_lshlrev_b32 v14, 3, v14
    v_add_u32 v11, v13, v14
    v_add_u32 v12, {2*STB}, v11
    s_add_u32 s12, s46, {WS_HHF}
    s_addc_u32 s13, s47, 0
    s_and_b32 s13, s13, 0xffff
    s_mov_b32 s14, {2048*3584*2}
    s_mov_b32 s15, 0x00020000
    {srd(16, 46, WS_SIZE)}
    {srd(48, 44, 256)}
    {srd(52, 92, 3584*2048)}
    {srd(88, 94, 2048*2048)}
    s_lshl_b32 s58, s2, 2
    s_add_u32 s58, s58, s3
    s_mul_i32 s58, s58, 7168
    v_lshlrev_b32 v1, 4, v0
    """)
    e(f"""
    v_bfe_u32 v13, v0, 2, 2
    v_lshrrev_b32 v14, 4, v0
    v_cmp_eq_u32 vcc, v13, v14
    v_and_b32 v13, 1, v0
    v_lshlrev_b32 v13, 4, v13
    v_mov_b32 v14, 0x3f80
    v_lshlrev_b32 v13, v13, v14
    v_cndmask_b32 v13, 0, v13, vcc
    v_and_b32 v14, 2, v0
    v_cmp_eq_u32 vcc, 0, v14
    v_accvgpr_write_b32 a{A_SEL+2}, 0
    v_accvgpr_write_b32 a{A_SEL+3}, 0
    v_cndmask_b32 v14, 0, v13, vcc
    v_cndmask_b32 v15, v13, 0, vcc
    v_accvgpr_write_b32 a{A_SEL+4}, 0
    v_accvgpr_write_b32 a{A_SEL+5}, 0
    v_accvgpr_write_b32 a{A_SEL}, v14
    v_accvgpr_write_b32 a{A_SEL+1}, v15
    v_accvgpr_write_b32 a{A_SEL+6}, v14
    v_accvgpr_write_b32 a{A_SEL+7}, v15
    """)
    e(f"s_mul_i32 s59, s34, {4*ROWB}")
    ex = []
    ex.append((3, lambda: e(f"s_waitcnt vmcnt({e.need([('HS',0)])})")))
    ex.append((1, "v_mov_b32 v15, 0x3f803f80"))
    for tt in range(4):
        x = 16 + 4*tt
        ex.append((1, f"v_dot2_f32_bf16 v14, v{x}, v{x}, 0"))
        for d in range(1, 4): ex.append((1, f"v_dot2_f32_bf16 v14, v{x+d}, v{x+d}, v14"))
        ex.append((1, f"v_dot2_f32_bf16 v13, v{x}, v15, 0"))
        for d in range(1, 4): ex.append((1, f"v_dot2_f32_bf16 v13, v{x+d}, v15, v13"))
        ex.append((1, f"s_nop 1\nv_mov_b32 v{x+1}, v14"))
        ex.append((1, f"s_nop 1\nv_mov_b32 v{x}, v13\ns_nop 1"))
    for o in (0, 1):
        ex.append((1, f"v_permlane32_swap_b32 v{16+o}, v{24+o}"))
        ex.append((1, f"v_permlane32_swap_b32 v{20+o}, v{28+o}"))
    for o in (0, 1):
        ex.append((1, f"v_add_f32 v{16+o}, v{16+o}, v{24+o}"))
        ex.append((1, f"v_add_f32 v{20+o}, v{20+o}, v{28+o}"))
    ex.append((1, f"s_lshl_b32 s41, s36, 7\ns_add_u32 s41, s41, {WS_ST2}\nv_lshlrev_b32 v14, 2, v0"))
    ex.append((1, "s_add_u32 s42, s41, 8192"))
    for o in (0, 1): ex.append((1, f"v_permlane16_swap_b32 v{16+o}, v{20+o}"))
    for o in (0, 1): ex.append((1, f"v_add_f32 v{16+o}, v{16+o}, v{20+o}"))
    ex.append((1, lambda: e.vmem("buffer_atomic_add_f32 v16, v14, s[16:19], s41 offen", ("AT", 0))))
    ex.append((1, lambda: e.vmem("buffer_atomic_add_f32 v17, v14, s[16:19], s42 offen", ("AT", 0))))
    ex.append((13, f"""
    s_lshl_b32 s57, s3, 11
    s_add_u32 s57, s57, {CS_LDS}
    v_lshl_add_u32 v13, v0, 5, s57
    ds_write_b128 v13, a[{A_CSA}:{A_CSA+3}]
    ds_write_b128 v13, a[{A_CSA+4}:{A_CSA+7}] offset:16
    v_lshl_add_u32 v13, v0, 2, s57
    """))
    for i in range(8): ex.append((13, f"ds_read_b32 v{18+i}, v13 offset:{(i >> 1)*448 + (i & 1)*224}"))
    ex.append((14, f"""
    s_lshr_b32 s56, s3, 1
    s_mul_i32 s56, s56, {3584*4}
    s_mul_i32 s57, s35, 448
    s_add_u32 s56, s56, s57
    s_add_u32 s56, s56, {WS_CS}
    v_lshlrev_b32 v13, 2, v0
    s_waitcnt lgkmcnt(12)
    """))
    ex.append((14, "v_pk_add_f32 v[18:19], v[18:19], v[20:21]"))
    ex.append((14, "v_pk_add_f32 v[22:23], v[22:23], v[24:25]"))
    ex.append((14, "v_pk_add_f32 v[18:19], v[18:19], v[22:23]"))
    def csat(i):
        def f():
            e("s_mov_b32 exec_hi, 0xffffff")
            e.vmem(f"buffer_atomic_add_f32 v{18+i}, v13, s[16:19], s56 offen offset:{224*i}", ("AT", 0))
            e("s_mov_b32 exec_hi, -1")
        return f
    for i in range(2): ex.append((14, csat(i)))
    ex.append((14, f"""
    s_lshl_b32 s43, s34, 7
    s_add_u32 s43, s43, s35
    s_lshl_b32 s43, s43, 7
    s_add_u32 s43, s43, {WS_FL + 32}
    s_lshl_b32 s56, s34, 7
    v_add_u32 v15, s56, v0
    v_and_b32 v13, 7, v0
    v_lshlrev_b32 v13, 7, v13
    v_add_u32 v13, s35, v13
    v_cmp_gt_u32 vcc, 32, v0
    v_and_b32 v14, 15, v0
    v_lshlrev_b32 v14, 2, v14
    v_cndmask_b32 v15, v13, v15, vcc
    v_lshlrev_b32 v15, 7, v15
    v_add_u32 v15, {WS_FL + 32}, v15
    v_mov_b32 v16, 0
    v_mov_b32 v17, 1
    """))
    ex.append((23, lambda: e.vmem("buffer_load_dword v16, v15, s[16:19], 0 offen sc1", ("PL", 0))))
    ex.append((24, f"""
    s_and_b32 s96, s32, 1
    s_bfe_u32 s97, s32, 0x10001
    s_lshl_b32 s97, s97, 3
    s_and_b32 s98, s33, 7
    s_add_u32 s97, s97, s98
    s_lshr_b32 s98, s32, 2
    s_lshl_b32 s98, s98, 2
    s_lshr_b32 s99, s33, 3
    s_add_u32 s98, s98, s99
    s_lshl_b32 s99, s97, 2
    s_add_u32 s99, s99, s3
    """))
    ex.append((24, f"""
    v_lshrrev_b32 v{VD1}, 4, v0
    v_lshlrev_b32 v30, 1, v{VD1}
    v_and_b32 v31, 15, v0
    v_xor_b32 v31, v30, v31
    v_lshlrev_b32 v31, 4, v31
    v_lshlrev_b32 v{VD1}, 11, v{VD1}
    s_and_b32 s100, s3, 1
    s_lshl_b32 s100, s100, 14
    s_lshl_b32 s101, s98, 8
    s_add_u32 s100, s100, s101
    v_add3_u32 v{VD0}, v{VD1}, v31, s100
    v_xor_b32 v{VD1}, 0x80, v{VD0}
    v_add_u32 v{VD1}, {4*2048 - 1024}, v{VD1}
    s_lshr_b32 s101, s3, 1
    s_mul_i32 s100, s96, 112
    s_add_u32 s100, s100, s101
    s_lshl_b32 s100, s100, 15
    s_mul_i32 s101, s101, {6*32768}
    s_lshl_b32 s26, s3, 11
    """))
    def chk():
        e(f"""
        s_waitcnt vmcnt({e.need([('PL',0)])})
        s_mov_b32 s57, 0
        L_g1_poll:
        v_cmp_eq_u32 vcc, 1, v16
        s_cmp_eq_u64 vcc, -1
        s_cbranch_scc1 L_g1_polled
        s_add_u32 s57, s57, 1
        s_cmp_gt_u32 s57, {POLL_MAX}
        s_cbranch_scc1 L_g1_polled
        s_sleep 1
        buffer_load_dword v16, v15, s[16:19], 0 offen sc1
        s_waitcnt vmcnt(0)
        s_branch L_g1_poll
        L_g1_polled:
        v_cmp_gt_u32 vcc, 28, v0
        v_mov_b32 v13, {WS_CS + 3584*4 - 448}
        v_mov_b32 v15, {WS_CS}
        s_mul_i32 s56, s35, 448
        v_cndmask_b32 v13, v13, v15, vcc
        s_lshl_b32 s57, s3, 11
        s_add_u32 m0, s57, {CS_LDS}
        v_add3_u32 v13, v13, v1, s56
        """)
        e.vmem("buffer_load_dwordx4 v13, s[16:19], 0 offen sc1 lds", ("S", 0))
        for tt in range(4):
            e.vmem(f"buffer_load_dword v{16+2*tt}, v14, s[16:19], s41 offen offset:{64*tt} sc1", ("S", 0))
            e.vmem(f"buffer_load_dword v{17+2*tt}, v14, s[16:19], s42 offen offset:{64*tt} sc1", ("S", 0))
    ex.append((27, chk))
    def pf2():
        e.vmem(f"buffer_load_dwordx4 a[{A_DUM}:{A_DUM+3}], v1, s[52:55], s58 offen", ("W2", 0))
        e("s_add_u32 s58, s58, 1024")
    cs_order = []
    for i in range(8): cs_order += [8 + i, i]
    def csload(n):
        e(f"s_add_u32 s56, s59, {cs_order[n]*64*ROWB}")
        b = A_CSR + 4 * (n % 8)
        e.vmem(f"buffer_load_dwordx4 a[{b}:{b+3}], v4, s[8:11], s56 offen", ("CS", n))
    def csmfma(n):
        b = A_CSR + 4 * (n % 8)
        e(f"s_waitcnt vmcnt({e.need([('CS', n)])})")
        for h_ in range(2):
            d = f"a[{A_CSA+4*h_}:{A_CSA+4*h_+3}]"
            e(f"v_mfma_f32_16x16x32_bf16 {d}, a[{A_SEL+4*h_}:{A_SEL+4*h_+3}], a[{b}:{b+3}], {'0' if n == 0 else d}")
    d2state = {"k": 0}
    def dma2(step):
        st = step // SK2; kp = step % SK2; slot = st % R2
        ka = k2_blocks(step)[0]
        if step > 0:
            dk = ka - d2state["k"]
            e(f"s_add_u32 s100, s100, {dk*32768}" if dk >= 0 else f"s_sub_u32 s100, s100, {-dk*32768}")
            if step == 48: e("s_add_u32 s100, s100, s101")
        d2state["k"] = ka
        e(f"s_add_u32 m0, s26, {slot*STB2 + kp*8192}")
        e("s_nop 0")
        e.vmem(f"buffer_load_dwordx4 v{VD0}, s[52:55], s100 offen lds", ("D2", st))
        e.vmem(f"buffer_load_dwordx4 v{VD1}, s[52:55], s100 offen offset:1024 lds", ("D2", st))
    e(f"s_mov_b32 s20, {P*2048}\ns_mov_b32 s22, {P*2048+4096}\ns_mov_b32 s21, {R*64*ROWB}")
    e(f"s_waitcnt vmcnt({e.need([('D',0)])})\ns_barrier")
    for t in range(14):
        for j in range(2): trread(0, t, j)
    if timing: stamp(e, 2)
    pend_dma = []
    d2pend = []
    if noex: ex = [x for x in ex if x[0] == 24]
    segs = []
    for step in range(NSTEP):
        if step % 8 == 0:
            if segs: segs[-1][1] = e.mark()
            segs.append([e.mark(), None])
        st = step // 2; kp = step % 2
        n = e.need([("T", step)])
        e(f"s_waitcnt vmcnt({n}) lgkmcnt(" + ("0" if step == 0 else "12") + ")")
        fill = [[] for _ in range(56)]
        if kp == 1 and st + R < 16: pend_dma += [(st + R, i) for i in range(7)]
        if step == 29: d2pend += list(range(8))
        if step + 1 < NSTEP:
            for t in range(14):
                fill[4*t + 3].append(("R", step + 1, t, 0))
                if t < 13: fill[4*t + 4].append(("R", step + 1, t, 1))
                else: fill[55].append(("R", step + 1, t, 1))
        if step + P < NSTEP:
            for tt in range(4): fill[5 + 4 * tt].append(("T", step + P, tt))
        nd = 4 if kp == 1 else 3
        for q in range(nd):
            if pend_dma: fill[21 + 4 * q].append(("D",) + pend_dma.pop(0))
        for q in range(3):
            if d2pend: fill[21 + 8 * q].append(("D2", d2pend.pop(0)))
        if 1 <= step <= 8 and not (noex or nocs):
            fill[37].append(("CSL", 2*(step-1))); fill[41].append(("CSL", 2*(step-1)+1))
        if 5 <= step <= 12 and not (noex or nocs):
            fill[1].append(("CSM", 2*(step-5))); fill[2].append(("CSM", 2*(step-5)+1))
        if w2pf and not noex and 9 <= step <= 21 and step % 2 == 1: fill[45].append(("PF2",))
        for i in range(56):
            t, tt = i // 4, i % 4
            if kp == 0 and step > 0 and i in (24, 48): e("s_waitcnt lgkmcnt(12)" if i == 24 else "s_waitcnt lgkmcnt(12)")
            c = "0" if step == 0 else acc(tt, t)
            e(f"v_mfma_f32_16x16x32_bf16 {acc(tt,t)}, {afr(t)}, {bfr(step%RB,tt)}, {c}")
            if kp == 1 and i == 2:
                n = e.need([("D", st + 1)] + ([("AT", 0)] if st == 8 else []))
                e(f"s_waitcnt vmcnt({n}) lgkmcnt(0)\ns_barrier" if st + 1 < 16 else "s_waitcnt lgkmcnt(0)\ns_barrier")
                if st == 8 and not noex:
                    assert not [x for x in ex if x[0] <= 14]
                    e("s_cmp_eq_u32 s3, 0\ns_cselect_b32 s56, s43, 0x80000000\ns_mov_b64 exec, 1")
                    e.vmem("buffer_store_dword v17, v16, s[16:19], s56 offen sc1", ("SG", 0))
                    e("s_mov_b64 exec, -1")
            for f in fill[i]:
                if f[0] == "R": trread(f[1], f[2], f[3])
                elif f[0] == "T":
                    j4 = step % 4
                    tok1(f[1], f[2], "s20" if j4 < 2 else "s22", (j4 % 2) * 2048)
                    if j4 == 3 and f[2] == 3: e("s_add_u32 s20, s20, 8192\ns_add_u32 s22, s22, 8192")
                elif f[0] == "D":
                    dma(f[2], f[1] % R, "s21", ("D", f[1]))
                    if f[2] == 6: e(f"s_add_u32 s21, s21, {64*ROWB}")
                elif f[0] == "D2": dma2(f[1])
                elif f[0] == "CSL": csload(f[1])
                elif f[0] == "CSM": csmfma(f[1])
                elif f[0] == "PF2": pf2()
            if not fill[i] and i >= 4 and ex and ex[0][0] <= step:
                x = ex.pop(0)[1]
                if callable(x): x()
                else: e(x)
    assert not ex and not d2pend
    segs[-1][1] = e.mark()
    if timing: stamp(e, 3)
    e(f"""
    s_waitcnt vmcnt({e.need([('S',0)])})
    v_lshrrev_b32 v13, 4, v0
    s_lshl_b32 s57, s3, 11
    s_add_u32 s57, s57, {CS_LDS}
    v_lshl_add_u32 v1, v13, 4, s57
    v_and_b32 v14, 1, v13
    v_lshlrev_b32 v14, 9, v14
    v_lshrrev_b32 v13, 1, v13
    v_lshlrev_b32 v13, 8, v13
    v_and_b32 v15, 15, v0
    v_lshlrev_b32 v15, 4, v15
    v_add3_u32 v2, v13, v14, v15
    s_mul_i32 s41, s36, {224*1024}
    s_mul_i32 s42, s35, {7*1024}
    s_add_u32 s41, s41, s42
    v_add_u32 v2, s41, v2
    v_add_u32 v3, {224*1024}, v2
    s_mov_b32 s43, 0xbfb8aa3b
    s_mov_b32 s44, 4096
    s_lshl_b32 s47, s34, 2
    s_add_u32 s47, s47, s3
    s_lshl_b32 s47, s47, 5
    s_add_u32 s47, s47, s35
    s_lshl_b32 s47, s47, 7
    s_add_u32 s47, s47, {WS_FL}
    v_mov_b32 v30, 0
    v_mov_b32 v24, v16
    v_mov_b32 v25, v17
    v_mov_b32 v26, v18
    v_mov_b32 v27, v19
    s_mov_b32 s45, 0xba800000
    s_mov_b32 s46, 0x3a800000
    """)
    src = {0: (24, 25), 1: (26, 27), 2: (20, 21), 3: (22, 23)}
    for tt in range(4):
        m, r = src[tt]; b = 4 + 4 * tt
        e(f"""
        v_mul_f32 v{b}, s45, v{m}
        v_mul_f32 v{b+2}, s46, v{r}
        v_fma_f32 v{b+2}, -v{b}, v{b}, v{b+2}
        v_max_f32 v{b+2}, 0, v{b+2}
        v_add_f32 v{b+2}, 0x3727c5ac, v{b+2}
        v_rsq_f32 v{b+1}, v{b+2}
        s_nop 0
        v_mul_f32 v{b+1}, s43, v{b+1}
        """)
    def cread(u): e(f"ds_read_b128 v[20:23], v1 offset:{u*64}\nds_read_b128 v[24:27], v1 offset:{448+u*64}")
    def hhflag(val, tags):
        e(f"s_waitcnt vmcnt({e.need(tags)})\nv_mov_b32 v31, {val}\ns_mov_b64 exec, 1")
        e.vmem("buffer_store_dword v31, v30, s[16:19], s47 offen sc1", ("HF", val))
        e("s_mov_b64 exec, -1")
    cread(0)
    d2pend = list(range(8, 16))
    for u in range(7):
        e("s_waitcnt lgkmcnt(0)")
        G = [accb(tt, 2*u) for tt in range(4)]; U = [accb(tt, 2*u+1) for tt in range(4)]
        for tt in range(4):
            b = 4 + 4 * tt
            for p in range(2):
                g = G[tt] + 2*p; up = U[tt] + 2*p
                e(f"v_pk_fma_f32 v[{g}:{g+1}], v[{b}:{b+1}], v[{20+2*p}:{21+2*p}], v[{g}:{g+1}] op_sel_hi:[0,1,1]")
                e(f"v_pk_fma_f32 v[{up}:{up+1}], v[{b}:{b+1}], v[{24+2*p}:{25+2*p}], v[{up}:{up+1}] op_sel_hi:[0,1,1]")
        if u < 6: cread(u + 1)
        for tt in range(4):
            b = 4 + 4 * tt
            for p in range(2):
                g = G[tt] + 2*p; up = U[tt] + 2*p
                e(f"v_pk_mul_f32 v[{up}:{up+1}], v[{g}:{g+1}], v[{up}:{up+1}]")
                e(f"v_pk_mul_f32 v[{g}:{g+1}], v[{g}:{g+1}], v[{b}:{b+1}] op_sel:[0,1] op_sel_hi:[1,1]")
        for tt in range(4):
            for p in range(4): e(f"v_exp_f32 v{G[tt]+p}, v{G[tt]+p}")
        if d2pend and u < 4:
            dma2(d2pend.pop(0)); dma2(d2pend.pop(0))
        for tt in range(4):
            b = 4 + 4 * tt
            for p in range(2):
                g = G[tt] + 2*p
                e(f"v_pk_fma_f32 v[{g}:{g+1}], v[{g}:{g+1}], v[{b+2}:{b+3}], v[{b+2}:{b+3}] op_sel_hi:[1,0,0]")
        for tt in range(4):
            for p in range(4): e(f"v_rcp_f32 v{G[tt]+p}, v{G[tt]+p}")
        for tt in range(4):
            for p in range(2):
                g = G[tt] + 2*p; up = U[tt] + 2*p
                e(f"v_pk_mul_f32 v[{up}:{up+1}], v[{g}:{g+1}], v[{up}:{up+1}]")
        for i in range(2):
            d = G[2*i]
            e(f"v_cvt_pk_bf16_f32 v{d}, v{U[2*i]}, v{U[2*i]+1}")
            e(f"v_cvt_pk_bf16_f32 v{d+1}, v{U[2*i]+2}, v{U[2*i]+3}")
            e(f"v_cvt_pk_bf16_f32 v{d+2}, v{U[2*i+1]}, v{U[2*i+1]+1}")
            e(f"v_cvt_pk_bf16_f32 v{d+3}, v{U[2*i+1]+2}, v{U[2*i+1]+3}")
        e("s_nop 0")
        for i in range(2):
            d = G[2*i]
            e(f"v_permlane32_swap_b32 v{d}, v{d+2}\nv_permlane32_swap_b32 v{d+1}, v{d+3}")
        for i in range(2):
            d = G[2*i]
            so = "0" if u < 4 else "s44"
            e.vmem(f"buffer_store_dwordx4 v[{d}:{d+3}], v{2+i}, s[12:15], {so} offen offset:{(u%4)*1024} sc1", ("HH", u))
        if u == 4: hhflag(1, [("HH", 1)])
        if u == 6: hhflag(2, [("HH", 3)])
    if timing: stamp(e, 4)
    e(f"""
    s_lshr_b32 s41, s99, 1
    s_lshl_b32 s41, s41, 5
    s_lshl_b32 s42, s96, 4
    s_add_u32 s41, s41, s42
    s_lshl_b32 s41, s41, 7
    s_add_u32 s41, s41, {WS_FL}
    v_and_b32 v9, 15, v0
    v_lshlrev_b32 v9, 7, v9
    v_add_u32 v9, s41, v9
    """)
    e.vmem("buffer_load_dword v10, v9, s[16:19], 0 offen sc1", ("PL2", 1))
    e(f"""
    s_mul_i32 s37, s99, {224*1024}
    s_mul_i32 s38, s96, {112*1024}
    s_add_u32 s37, s37, s38
    v_bfe_u32 v14, v0, 4, 1
    v_lshlrev_b32 v14, 9, v14
    v_and_b32 v15, 15, v0
    v_lshlrev_b32 v15, 4, v15
    v_add3_u32 v4, v14, v15, s37
    v_lshrrev_b32 v13, 5, v0
    v_lshl_add_u32 v2, v13, 10, v4
    v_mul_u32_u24 v5, 7168, v13
    v_add_u32 v3, v4, v5
    v_lshlrev_b32 v5, 3, v13
    v_add3_u32 v5, v5, v14, v15
    s_lshl_b32 s41, s99, 16
    s_lshl_b32 s42, s98, 13
    s_add_u32 s41, s41, s42
    s_lshl_b32 s42, s96, 12
    s_add_u32 s41, s41, s42
    """)
    for tt in range(2):
        for t in range(4):
            b = RES + (tt * 4 + t) * 2
            e.vmem(f"buffer_load_dwordx2 v[{b}:{b+1}], v5, s[4:7], s41 offen offset:{t*1024 + tt*256} {ldf}", ("H", 0))
    e(f"""
    v_lshlrev_b32 v13, 4, v13
    v_bfe_u32 v14, v0, 2, 3
    v_add_u32 v13, v13, v14
    v_lshlrev_b32 v13, 8, v13
    v_and_b32 v15, 3, v0
    v_lshlrev_b32 v15, 3, v15
    v_add_u32 v13, v13, v15
    s_lshl_b32 s40, s96, 2
    v_xor_b32 v14, s40, v14
    v_lshl_add_u32 v13, v14, 5, v13
    """)
    for t in range(8):
        e(f"v_xor_b32 v{TB+t}, {t*32}, v13\nv_add_u32 v{TB+8+t}, {2*STB2}, v{TB+t}")
    npoll = [0]
    def poll2(val):
        k = npoll[0]; npoll[0] += 1
        e(f"""
        s_waitcnt vmcnt({e.need([('PL2', val)])})
        s_mov_b32 s57, 0
        L_g2_pollA{k}:
        v_cmp_le_u32 vcc, {val}, v10
        s_cmp_eq_u64 vcc, -1
        s_cbranch_scc1 L_g2_polledA{k}
        s_add_u32 s57, s57, 1
        s_cmp_gt_u32 s57, {POLL_MAX}
        s_cbranch_scc1 L_g2_polledA{k}
        buffer_load_dword v10, v9, s[16:19], 0 offen sc1
        s_waitcnt vmcnt(0)
        s_branch L_g2_pollA{k}
        L_g2_polledA{k}:
        """)
    t2state = {"k": 0}
    def toks2(step):
        ka = k2_blocks(step)[0]
        if step == 0: e("s_mov_b32 s20, 0")
        else:
            dk = ka - t2state["k"]
            e(f"s_add_u32 s20, s20, {dk*1024}" if dk >= 0 else f"s_sub_u32 s20, s20, {-dk*1024}")
        t2state["k"] = ka
        for tt in range(2):
            e.vmem(f"buffer_load_dwordx4 {bfr2(step % RB2, tt)}, {'v2' if step < 48 else 'v3'}, s[12:15], s20 offen offset:{256*tt} sc1", ("T2", step))
    def trread2(step, t, j):
        st = step // SK2; kp = step % SK2; slot = st % R2
        base = f"v{TB+t}" if slot < 2 else f"v{TB+8+t}"
        off = (slot % 2) * STB2 + kp * 8192 + j * 2048
        e(f"ds_read_b64_tr_b16 {afr2(step % 2, t, j)}, {base} offset:{off}")
    e(f"s_waitcnt vmcnt({e.need([('D2',0)])})\ns_barrier")
    for t in range(8):
        for j in range(2): trread2(0, t, j)
    poll2(1)
    for t in range(P2): toks2(t)
    e(f"s_waitcnt vmcnt({e.need([('H',0)])})")
    for tt in range(2):
        for t in range(4):
            b = RES + (tt * 4 + t) * 2; a = accb2(tt, t)
            e(f"v_lshlrev_b32 v{a}, 16, v{b}\nv_and_b32 v{a+1}, 0xffff0000, v{b}\nv_lshlrev_b32 v{a+2}, 16, v{b+1}\nv_and_b32 v{a+3}, 0xffff0000, v{b+1}")
    e(f"""
    v_lshlrev_b32 v6, 4, v0
    s_lshl_b32 s43, s2, 2
    s_add_u32 s43, s43, s3
    s_xor_b32 s44, s43, 4
    s_lshl_b32 s45, s43, 7
    s_lshl_b32 s46, s44, 7
    s_add_u32 s45, s45, {WS_FL + 64}
    s_add_u32 s46, s46, {WS_FL + 64}
    s_lshl_b32 s43, s43, 13
    s_lshl_b32 s44, s44, 13
    s_add_u32 s43, s43, {WS_XB}
    s_add_u32 s44, s44, {WS_XB}
    s_add_u32 s58, s43, 4096
    s_add_u32 s59, s44, 4096
    """)
    if timing: stamp(e, 5)
    pend = []
    for step in range(NSTEP2):
        st = step // SK2; kp = step % SK2
        n = e.need([("T2", step)])
        e(f"s_waitcnt vmcnt({n}) lgkmcnt(0)")
        fill = [[] for _ in range(16)]
        g0 = 0
        if kp == SK2 - 1:
            g0 = 2
            if st + R2 < NST2: pend += [(st + R2) * SK2 + i for i in range(SK2)]
        if step + 1 < NSTEP2:
            k = 0
            for t in range(8):
                for j in range(2):
                    fill[g0 + (k * 3) // 4].append(("R", step + 1, t, j)); k += 1
        if step == 0: fill[14].append(("HF3",))
        if step in (4, 18): fill[14].append(("PL", 2 if step == 4 else 3))
        if step + P2 in (16, 32): fill[g0 + 12].append(("CK", 2 if step + P2 == 16 else 3))
        if step + P2 < NSTEP2 and not noload2: fill[g0 + 12].append(("T", step + P2))
        if pend: fill[g0 + 13].append(("D", pend.pop(0)))
        for i in range(16):
            tt, t = i // 8, i % 8
            c = "0" if (step == 0 and t >= 4) else acc2(tt, t)
            if not nomfma2: e(f"v_mfma_f32_16x16x32_bf16 {acc2(tt,t)}, {afr2(step%2,t)}, {bfr2(step%RB2,tt)}, {c}")
            if kp == SK2 - 1 and i == 1 and st + 1 < NST2:
                n = e.need([("D2", st + 1)])
                e(f"s_waitcnt vmcnt({n})\ns_barrier")
            for f in fill[i]:
                if f[0] == "R": trread2(f[1], f[2], f[3])
                elif f[0] == "T": toks2(f[1])
                elif f[0] == "D":
                    if not noload2: dma2(f[1])
                elif f[0] == "HF3": hhflag(3, [("HH", 6)])
                elif f[0] == "PL": e.vmem("buffer_load_dword v10, v9, s[16:19], 0 offen sc1", ("PL2", f[1]))
                elif f[0] == "CK": poll2(f[1])
    if timing: stamp(e, 6)
    e(f"""
    v_and_b32 v15, 15, v0
    v_lshlrev_b32 v15, 11, v15
    v_bfe_u32 v14, v0, 4, 1
    v_lshlrev_b32 v14, 5, v14
    v_lshrrev_b32 v13, 5, v0
    v_lshlrev_b32 v13, 4, v13
    v_add3_u32 v3, v13, v14, v15
    s_lshl_b32 s41, s99, 16
    s_lshl_b32 s42, s98, 8
    s_add_u32 s41, s41, s42
    s_lshl_b32 s42, s96, 7
    s_add_u32 s41, s41, s42
    s_add_u32 s42, s41, 32768
    v_mov_b32 v7, 0
    v_mov_b32 v8, 1
    """)
    for tt in range(2):
        for t in range(4):
            e(f"buffer_store_dwordx4 {acc2(tt, 4+t)}, v6, s[16:19], {'s43' if tt == 0 else 's58'} offen offset:{t*1024} sc1")
    e(f"""
    s_waitcnt vmcnt(0)
    s_mov_b64 exec, 1
    buffer_store_dword v8, v7, s[16:19], s45 offen sc1
    s_mov_b64 exec, -1
    s_mov_b32 s57, 0
    L_g2_poll:
    buffer_load_dword v9, v7, s[16:19], s46 offen sc1
    s_waitcnt vmcnt(0)
    v_readfirstlane_b32 s56, v9
    s_cmp_eq_u32 s56, 1
    s_cbranch_scc1 L_g2_polled
    s_add_u32 s57, s57, 1
    s_cmp_gt_u32 s57, {POLL_MAX}
    s_cbranch_scc1 L_g2_polled
    s_branch L_g2_poll
    L_g2_polled:
    """)
    for tt in range(2):
        for t in range(4):
            b = RES + (tt * 4 + t) * 4
            e(f"buffer_load_dwordx4 v[{b}:{b+3}], v6, s[16:19], {'s44' if tt == 0 else 's59'} offen offset:{t*1024} sc1")
    for tt in range(2):
        for tp in range(2):
            e(f"s_waitcnt vmcnt({6 - (tt*2+tp)})")
            a0 = accb2(tt, 2*tp); a1 = accb2(tt, 2*tp+1); d = 16 + (tt*2+tp)*4
            r0 = RES + (tt*4 + 2*tp)*4; r1 = r0 + 4
            for (a, r) in ((a0, r0), (a1, r1)):
                e(f"v_pk_add_f32 v[{a}:{a+1}], v[{a}:{a+1}], v[{r}:{r+1}]\nv_pk_add_f32 v[{a+2}:{a+3}], v[{a+2}:{a+3}], v[{r+2}:{r+3}]")
            e(f"v_cvt_pk_bf16_f32 v{d}, v{a0}, v{a0+1}\nv_cvt_pk_bf16_f32 v{d+1}, v{a0+2}, v{a0+3}\nv_cvt_pk_bf16_f32 v{d+2}, v{a1}, v{a1+1}\nv_cvt_pk_bf16_f32 v{d+3}, v{a1+2}, v{a1+3}")
            e("s_nop 1")
            e(f"v_permlane16_swap_b32 v{d}, v{d+2}\nv_permlane16_swap_b32 v{d+1}, v{d+3}")
            e(f"buffer_store_dwordx4 v[{d}:{d+3}], v3, s[88:91], {'s41' if tt==0 else 's42'} offen offset:{tp*64}")
    if timing:
        e("s_waitcnt vmcnt(0)")
        stamp(e, 7, 4)
        e("s_waitcnt lgkmcnt(0)\ns_mov_b32 s88, s32\ns_mov_b32 s90, s34")
        timing_store(e, "s[16:19]", 8, 60, 1)
        e(f"""
        s_cmp_lg_u32 s2, {dw}
        s_cbranch_scc1 L_g12_end
        s_cmp_lg_u32 s3, 0
        s_cbranch_scc1 L_g12_end
        s_waitcnt vmcnt(0)
        v_lshlrev_b32 v4, 10, v0
        v_add_u32 v4, {WS_TM + 4*dw}, v4
        buffer_load_dword v5, v4, s[16:19], 0 offen sc1
        v_add_u32 v4, 0x10000, v4
        buffer_load_dword v6, v4, s[16:19], 0 offen sc1
        s_waitcnt vmcnt(0)
        v_readlane_b32 s41, v5, 10
        v_readlane_b32 s42, v6, 14
        s_sub_u32 s41, s42, s41
        v_lshlrev_b32 v7, 2, v0
        v_subrev_u32 v8, 16, v7
        v_cmp_le_u32 vcc, 4, v0
        v_mov_b32 v9, 0x1000
        s_nop 1
        v_cndmask_b32 v8, v9, v8, vcc
        v_cmp_gt_u32 vcc, 10, v0
        s_nop 1
        v_cndmask_b32 v8, v9, v8, vcc
        buffer_store_dword v5, v8, s[48:51], 0 offen
        v_add_u32 v8, 4, v7
        v_cmp_le_u32 vcc, 6, v0
        s_nop 1
        v_cndmask_b32 v8, v9, v8, vcc
        v_cmp_gt_u32 vcc, 14, v0
        s_nop 1
        v_cndmask_b32 v8, v9, v8, vcc
        buffer_store_dword v6, v8, s[48:51], 0 offen
        v_mov_b32 v5, s41
        v_mov_b32 v8, 24
        buffer_store_dword v5, v8, s[48:51], 0 offen
        """)
    e("L_g12_end:\ns_endpgm")
    if rollx:
        mid, nl = roll(e, segs, "L_g1_loop")
        print("; g1 loops", nl)
        txt = e.text(0, segs[0][0]) + mid + e.text(segs[-1][1])
    else: txt = e.text()
    return kstart(name) + txt, kdesc(name, 512, 102, 256), f"; @launch kernel={name} grid=(256,1,1) block=(256,1,1) lds={LDS_G12}\n"
```

```python
from common import *
CPS = 4160
XR = 8 * CPS
CH = XR + 4608 + 64
CSL = 4 * CH
CNT = CSL + 8192
LDS_K1 = CNT + 64
VK = 16
VV = 38
VX = 54
VS = 70
VU = 86
VKV = 130
VC = 162
VW = 86
VCA = 226
VSEL = 234
VT = 242
VF = 130
FR = 8
FD = 6
ACC = 86
def gfr(q, r): b = 4 * (q * 8 + r); return f"a[{b}:{b+3}]"
def ffr(m): b = VF + 4 * (m % FR); return f"v[{b}:{b+3}]"
def acc(j): b = ACC + 4 * j; return f"v[{b}:{b+3}]"

class Col:
    def __init__(self): self.l = []
    def __call__(self, t):
        for l in t.strip("\n").split("\n"):
            if l.strip(): self.l.append(l.strip())

def body(e, timing=False, st_flags="", nox=False, nocs=True, wpf=1, pfm=2, cpf=1, code_end='L_g12_end', pfl="", csl="", xl="", sll="", xpfl="", x0=4, xd=8, cm0=256, cmd=2, TS=64, sw=1, xpf=0, ncspre=4, cs0=2, csd=4, slpos=1):
    e(f"""
    s_load_dwordx8 s[24:31], s[0:1], 0
    s_load_dwordx4 s[32:35], s[0:1], 32
    s_load_dwordx4 s[36:39], s[0:1], {KA['w1']}
    s_load_dwordx4 s[44:47], s[0:1], {KA['dbg']}
    """)
    if timing: stamp(e, 0, TS)
    e(f"""
    v_lshrrev_b32 v1, 6, v0
    v_and_b32 v0, 63, v0
    s_and_b32 s40, s2, 7
    v_readfirstlane_b32 s3, v1
    s_lshl_b32 s40, s40, 5
    s_lshr_b32 s41, s2, 3
    s_add_u32 s40, s40, s41
    s_lshl_b32 s41, s40, 3
    s_lshl_b32 s42, s3, 20
    s_add_u32 s42, s42, s41
    v_lshlrev_b32 v2, 14, v0
    v_add_u32 v2, s42, v2
    v_lshlrev_b32 v4, 4, v0
    s_lshl_b32 s61, s40, 2
    s_add_u32 s61, s61, s3
    s_lshl_b32 s61, s61, 12
    v_add_u32 v6, s61, v4
    v_subrev_u32 v7, 16, v6
    v_cmp_eq_u32 vcc, 0, v0
    v_mov_b32 v8, 0x80000000
    s_mul_i32 s62, s3, {CH}
    v_cndmask_b32 v8, v7, v8, vcc
    """)
    if cpf: e(f"""
    s_cmp_ge_u32 s2, 24
    s_cbranch_scc1 L_k1_nocpf
    s_getpc_b64 s[48:49]
    L_k1_pc:
    s_lshr_b32 s50, s2, 3
    s_lshl_b32 s50, s50, 2
    s_add_u32 s50, s50, s3
    s_lshl_b32 s50, s50, 13
    v_lshlrev_b32 v250, 7, v0
    v_add_u32 v250, s50, v250
    v_min_u32 v250, {code_end} - L_k1_pc, v250
    v_mov_b32 v251, s49
    v_add_co_u32 v250, vcc, s48, v250
    v_addc_co_u32 v251, vcc, 0, v251, vcc
    global_load_dword v255, v[250:251], off
    L_k1_nocpf:
    """)
    e(f"""
    s_bfe_u32 s63, s40, 0x30001
    s_lshl_b32 s63, s63, 11
    s_bitcmp1_b32 s40, 0
    s_waitcnt lgkmcnt(0)
    s_cselect_b32 s12, s28, s26
    s_cselect_b32 s13, s29, s27
    s_and_b32 s13, s13, 0xffff
    s_mov_b32 s14, 4194304
    s_mov_b32 s15, 0x00020000
    """)
    if pfm == 0: e.vmem(f"buffer_load_dword v255, v2, s[12:15], s63 offen {pfl}", "PF")
    elif pfm == 1:
        e("v_lshlrev_b32 v253, 11, v0\nv_add_u32 v253, s42, v253\ns_lshl_b32 s48, s63, 6")
        e.vmem(f"buffer_load_dword v255, v253, s[12:15], s48 offen {pfl}", "PF")
    elif pfm == 2:
        e(f"""
        v_lshrrev_b32 v253, 4, v0
        v_lshlrev_b32 v253, 11, v253
        v_and_b32 v252, 15, v0
        v_lshl_add_u32 v253, v252, 4, v253
        s_lshr_b32 s48, s2, 3
        s_lshl_b32 s48, s48, 2
        s_add_u32 s48, s48, s3
        s_lshl_b32 s48, s48, 15
        s_and_b32 s49, s2, 7
        s_lshl_b32 s49, s49, 8
        s_add_u32 s48, s48, s49
        {srd(8, 26, 4194304)}
        {srd(12, 28, 4194304)}
        """)
        for sr in (8, 12):
            for i in range(4):
                e(f"s_add_u32 s49, s48, {i*8192}")
                e.vmem(f"buffer_load_dwordx4 v[248:251], v253, s[{sr}:{sr+3}], s49 offen {pfl}", "PF")
    e(srd(16, 32, 4194304))
    for c in range(4):
        e.vmem(f"buffer_load_dwordx4 v[{VW+8*c}:{VW+8*c+3}], {'v8' if c == 0 else 'v7'}, s[16:19], 0 offen offset:{1024*c} {pfl}", ("KW", c))
        e.vmem(f"buffer_load_dwordx4 v[{VW+8*c+4}:{VW+8*c+7}], v6, s[16:19], 0 offen offset:{1024*c} {pfl}", ("KW", c))
    e(f"""
    s_lshl_b32 s48, s40, 5
    s_add_u32 s30, s30, s48
    s_addc_u32 s31, s31, 0
    s_load_dwordx8 s[52:59], s[30:31], 0
    s_add_u32 s34, s34, s41
    s_addc_u32 s35, s35, 0
    s_load_dwordx2 s[50:51], s[34:35], 0
    {srd(4, 24, 4194304)}
    {srd(8, 26, 4194304)}
    {srd(12, 28, 4194304)}
    {srd(20, 46, WS_SIZE)}
    s_lshl_b32 s43, s2, 14
    s_lshl_b32 s48, s3, 12
    s_add_u32 s43, s43, s48
    v_add_u32 v5, s43, v4
    v_xor_b32 v3, 15, v0
    v_lshlrev_b32 v3, 11, v3
    v_add_u32 v3, s42, v3
    v_mov_b32 v{VC}, 0
    v_mov_b32 v{VC+1}, 0
    v_mov_b32 v{VC+2}, 0
    v_mov_b32 v{VC+3}, 0
    v_add_u32 v9, s62, v4
    v_mul_u32_u24 v10, {CPS}, v0
    v_add_u32 v10, s62, v10
    s_mov_b32 exec_hi, 0
    ds_write_b128 v9, v[{VC}:{VC+3}] offset:{XR+4096}
    s_mov_b32 exec_lo, 0xff
    ds_write_b128 v10, v[{VC}:{VC+3}]
    v_mov_b32 v10, {CNT}
    ds_write_b32 v10, v{VC}
    s_mov_b32 exec_lo, 15
    s_lshl_b32 s43, s2, 6
    s_add_u32 s43, s43, {WS_ST2}
    s_cmp_eq_u32 s3, 0
    s_cselect_b32 s43, s43, 0x80000000
    """)
    e.vmem(f"buffer_store_dwordx4 v[{VC}:{VC+3}], v4, s[20:23], s43 offen sc1", "Z")
    e(f"s_lshl_b32 s43, s2, 7\ns_add_u32 s43, s43, {WS_CS}\ns_mov_b32 exec_lo, 0xff\ns_cmp_eq_u32 s3, 1\ns_cselect_b32 s43, s43, 0x80000000")
    e.vmem(f"buffer_store_dwordx4 v[{VC}:{VC+3}], v4, s[20:23], s43 offen sc1", "Z")
    e(f"s_lshl_b32 s43, s2, 9\ns_lshl_b32 s48, s3, 7\ns_add_u32 s43, s43, s48\ns_add_u32 s43, s43, {WS_FL}\ns_mov_b32 exec_lo, 0xff\ns_cmp_eq_u32 s3, 0")
    e.vmem(f"buffer_store_dwordx4 v[{VC}:{VC+3}], v4, s[20:23], s43 offen sc1", "Z")
    e(f"""
    s_mov_b64 exec, -1
    v_subrev_u32 v6, {3*2048}, v2
    s_cselect_b32 s43, 0x80000000, 0
    v_or_b32 v6, s43, v6
    s_mov_b32 s48, 4096
    s_mov_b32 s49, 8192
    s_mov_b32 s60, 12288
    """)
    e(f"""
    v_bfe_u32 v11, v0, 2, 2
    v_lshrrev_b32 v12, 4, v0
    v_cmp_eq_u32 vcc, v11, v12
    v_and_b32 v11, 1, v0
    v_lshlrev_b32 v11, 4, v11
    v_mov_b32 v12, 0x3f80
    v_lshlrev_b32 v11, v11, v12
    v_cndmask_b32 v11, 0, v11, vcc
    v_and_b32 v12, 2, v0
    v_cmp_eq_u32 vcc, 0, v12
    v_mov_b32 v{VSEL+2}, 0
    v_mov_b32 v{VSEL+3}, 0
    v_cndmask_b32 v{VSEL}, 0, v11, vcc
    v_cndmask_b32 v{VSEL+1}, v11, 0, vcc
    v_mov_b32 v{VSEL+4}, 0
    v_mov_b32 v{VSEL+5}, 0
    v_mov_b32 v{VSEL+6}, v{VSEL}
    v_mov_b32 v{VSEL+7}, v{VSEL+1}
    """)
    e("s_waitcnt lgkmcnt(0)\ns_barrier")
    e(f"s_waitcnt vmcnt({e.need(['PF'] + ([('KW', 3)] if sw else []))})")
    if timing: stamp(e, 1, TS)
    c_ = Col()
    nt = 0
    for c in range(2):
        W = VW + 8*c
        c_(f"@W{c}")
        for s in range(8):
            sh = s + 1
            off = s*CPS + 16 + 1024*c
            if sh % 4 == 0:
                b = W + sh // 2
                c_(f"ds_write_b128 v9, v[{b}:{b+3}] offset:{off}")
            else:
                t = VW + 32 + 4 * (nt % 8); nt += 1
                for d in range(4):
                    if sh % 2 == 0: c_(f"v_mov_b32 v{t+d}, v{W + sh//2 + d}")
                    else: c_(f"v_alignbit_b32 v{t+d}, v{W + sh//2 + d + 1}, v{W + sh//2 + d}, 16")
                c_(f"ds_write_b128 v9, v[{t}:{t+3}] offset:{off}")
    T = VT
    c_(f"@SLW\ns_mov_b32 s43, 0x3f803f80\nv_mov_b32 v{T}, 0\nv_mov_b32 v{T+1}, 0\nv_mov_b32 v{T+2}, 0\nv_mov_b32 v{T+3}, 0\nv_mov_b32 v{T+4}, s43")
    for i in range(8):
        for r in range(2):
            x = VS + 8*r + i
            c_(f"v_dot2_f32_bf16 v{T+2*r}, v{x}, v{T+4}, v{T+2*r}\nv_dot2_f32_bf16 v{T+1+2*r}, v{x}, v{x}, v{T+1+2*r}")
    c_("s_nop 2")
    for op in ["row_shr:1", "row_shr:2", "row_shr:4", "row_shr:8"]:
        for r in range(4): c_(f"v_add_f32_dpp v{T+r}, v{T+r}, v{T+r} {op} row_mask:0xf bank_mask:0xf bound_ctrl:0")
    for op, m in [("row_bcast:15", "0xa"), ("row_bcast:31", "0xc")]:
        for r in range(4): c_(f"v_add_f32_dpp v{T+r}, v{T+r}, v{T+r} {op} row_mask:{m} bank_mask:0xf")
    c_(f"""
    s_mov_b32 s43, 0x3a800000
    v_mul_f32 v{T}, s43, v{T}
    v_mul_f32 v{T+2}, s43, v{T+2}
    v_mul_f32 v{T+1}, s43, v{T+1}
    v_mul_f32 v{T+3}, s43, v{T+3}
    v_fma_f32 v{T+1}, -v{T}, v{T}, v{T+1}
    v_fma_f32 v{T+3}, -v{T+2}, v{T+2}, v{T+3}
    v_max_f32 v{T+1}, 0, v{T+1}
    v_max_f32 v{T+3}, 0, v{T+3}
    v_add_f32 v{T+1}, 0x3727c5ac, v{T+1}
    v_add_f32 v{T+3}, 0x3727c5ac, v{T+3}
    v_rsq_f32 v{T+1}, v{T+1}
    v_rsq_f32 v{T+3}, v{T+3}
    s_lshl_b32 s43, s2, 6
    s_lshl_b32 s61, s3, 4
    s_add_u32 s43, s43, s61
    s_add_u32 s43, s43, {WS_ST1}
    v_mov_b32 v12, 0
    @SS
    """)
    for c in range(2, 4):
        W = VW + 8*c
        c_(f"@W{c}")
        for s in range(8):
            sh = s + 1
            off = s*CPS + 16 + 1024*c
            if sh % 4 == 0:
                b = W + sh // 2
                c_(f"ds_write_b128 v9, v[{b}:{b+3}] offset:{off}")
            else:
                t = VW + 32 + 4 * (nt % 8); nt += 1
                for d in range(4):
                    if sh % 2 == 0: c_(f"v_mov_b32 v{t+d}, v{W + sh//2 + d}")
                    else: c_(f"v_alignbit_b32 v{t+d}, v{W + sh//2 + d + 1}, v{W + sh//2 + d}, 16")
                c_(f"ds_write_b128 v9, v[{t}:{t+3}] offset:{off}")
    so = ["0", "s48", "s49", "s60"]
    loads = []
    for j in range(8):
        loads.append(("K", f"buffer_load_dwordx2 v[{VK+6+2*j}:{VK+7+2*j}], v2, s[8:11], {so[j//2]} offen offset:{(j%2)*2048}"))
        if j == slpos: loads.append(("SL", None))
    loads.append(("H", None))
    for j in range(8): loads.append(("V", f"buffer_load_dwordx2 v[{VV+2*j}:{VV+1+2*j}], v2, s[12:15], {so[j//2]} offen offset:{(j%2)*2048}"))
    va = c_.l
    every = len(va) // len(loads)
    def issue(ld):
        if ld[0] == "H":
            e("s_mov_b64 exec, 1")
            for j in range(3):
                e.vmem(f"buffer_load_dwordx2 v[{VK+2*j}:{VK+1+2*j}], v6, s[8:11], {so[j//2]} offen offset:{(j%2)*2048}", "K")
            e("s_mov_b64 exec, -1")
        elif ld[0] == "SL":
            for i in range(4):
                e.vmem(f"buffer_load_dwordx4 v[{VS+4*i}:{VS+4*i+3}], v5, s[4:7], 0 offen offset:{i*1024} {sll}", "SL")
        else: e.vmem(ld[1], ld[0])
    for n_, l in enumerate(va):
        if n_ % every == 0 and loads: issue(loads.pop(0))
        if l == "@SS":
            e("s_mov_b32 exec_lo, 0\ns_mov_b32 exec_hi, 0x80000000")
            e.vmem(f"buffer_store_dwordx4 v[{T}:{T+3}], v12, s[20:23], s43 offen sc1", "SS")
            e("s_mov_b64 exec, -1")
        elif l == "@SLW": e(f"s_waitcnt vmcnt({e.need(['SL'])})")
        elif l.startswith("@W"): e(f"s_waitcnt vmcnt({e.need([('KW', int(l[2:]))])})")
        else: e(l)
    assert not loads
    e(f"""
    s_lshr_b32 s49, s2, 3
    s_cmp_ge_u32 s49, 16
    s_cselect_b32 s16, s38, s36
    s_cselect_b32 s17, s39, s37
    s_and_b32 s17, s17, 0xffff
    s_mov_b32 s18, {1024*7168}
    s_mov_b32 s19, 0x00020000
    s_and_b32 s49, s49, 15
    s_lshl_b32 s49, s49, 2
    s_add_u32 s49, s49, s3
    s_mul_i32 s60, s49, {16*7168}
    s_and_b32 s49, s2, 7
    s_mul_i32 s49, s49, 896
    s_add_u32 s60, s60, s49
    v_cmp_gt_u32 vcc, 56, v0
    v_mov_b32 v9, 0x80000000
    s_nop 0
    v_cndmask_b32 v9, v9, v4, vcc
    """)
    e(f"""
    v_mul_u32_u24 v252, 9363, v0
    v_lshrrev_b32 v252, 16, v252
    v_mul_u32_u24 v252, {7168 - 896}, v252
    v_lshl_add_u32 v254, v0, 7, v252
    v_cndmask_b32 v254, v9, v254, vcc
    s_lshr_b32 s49, s2, 3
    s_and_b32 s49, s49, 15
    s_lshl_b32 s49, s49, 2
    s_add_u32 s49, s49, s3
    s_mul_i32 s61, s49, {8*7168}
    s_and_b32 s49, s2, 7
    s_mul_i32 s49, s49, 896
    s_add_u32 s61, s61, s49
    """)
    def csload(i):
        e.vmem(f"buffer_load_dwordx4 v[{VC+4*i}:{VC+4*i+3}], v9, s[16:19], s60 offen {csl}", ("CS", i))
        e(f"s_add_u32 s60, s60, 7168")
    e("s_waitcnt lgkmcnt(0)")
    for j in range(4):
        for c in range(4):
            src = 52 + 2*c + (j >> 1); d = 84 + 4*j + c
            e(f"s_lshl_b32 s{d}, s{src}, 16" if j % 2 == 0 else f"s_and_b32 s{d}, s{src}, 0xffff0000")
    e(f"""
    s_cmp_ge_u32 s3, 2
    s_cselect_b32 s48, s51, s50
    s_bitcmp1_b32 s3, 0
    s_cselect_b32 s49, 0, 16
    s_lshl_b32 s48, s48, s49
    s_and_b32 s48, s48, 0xffff0000
    {srd(36, 44, 256)}
    v_and_b32 v12, 7, v0
    v_mul_u32_u24 v10, {CPS}, v12
    v_bfe_u32 v12, v0, 3, 1
    v_lshrrev_b32 v13, 4, v0
    v_add_u32 v12, v12, v13
    v_lshl_add_u32 v10, v12, 4, v10
    v_add_u32 v10, s62, v10
    v_and_b32 v12, 15, v0
    v_lshlrev_b32 v12, 5, v12
    v_lshlrev_b32 v13, 4, v13
    v_sub_u32 v11, v13, v12
    s_add_u32 s52, s62, {XR + 4064 - 3584}
    v_add_u32 v11, s52, v11
    v_lshrrev_b32 v13, 1, v13
    v_add_u32 v12, v12, v13
    s_add_u32 s52, s62, {XR + 4088 - 3584}
    v_sub_u32 v12, s52, v12
    s_lshl_b32 s49, s3, 10
    s_sub_u32 s49, {XR + 4080}, s49
    v_sub_u32 v8, s49, v4
    v_add_u32 v7, {2*CH}, v8
    """)
    e(f"s_waitcnt vmcnt({e.need(['K', 'SS', 'Z'])})")
    e(f"""
    v_mov_b32 v13, {CNT}
    v_mov_b32 v14, 1
    s_mov_b64 exec, 1
    ds_add_rtn_u32 v15, v13, v14
    s_waitcnt lgkmcnt(0)
    v_readfirstlane_b32 s52, v15
    s_and_b32 s53, s2, 7
    s_lshl_b32 s53, s53, 5
    s_cmp_eq_u32 s52, 3
    s_cselect_b32 s52, s53, 0x1000
    v_mov_b32 v15, 0
    """)
    e.vmem("buffer_atomic_add v14, v15, s[36:39], s52 offen sc1", "SIG")
    e("s_mov_b64 exec, -1")
    for j in range(3):
        for d in range(2):
            e(f"v_mov_b32_dpp v{VK+2*j+d}, v{VK+6+2*(5+j)+d} wave_shr:1 row_mask:0xf bank_mask:0xf")
    for r in list(range(3, 11)) + [0, 1, 2]:
        for d in range(2):
            e(f"v_lshlrev_b32 v{VU+4*r+2*d}, 16, v{VK+2*r+d}\nv_and_b32 v{VU+4*r+2*d+1}, 0xffff0000, v{VK+2*r+d}")
    for i in range(8):
        for j in range(4):
            for cp in range(2):
                o = VKV + 4*i + 2*cp
                kr = VU + 4*(i + 3 - j) + 2*cp
                w = 84 + 4*j + 2*cp
                if j == 0: e(f"v_pk_mul_f32 v[{o}:{o+1}], v[{kr}:{kr+1}], s[{w}:{w+1}]")
                else: e(f"v_pk_fma_f32 v[{o}:{o+1}], v[{kr}:{kr+1}], s[{w}:{w+1}], v[{o}:{o+1}]")
    e(f"s_waitcnt vmcnt({e.need(['V', 'SS', 'Z'])})")
    if timing: stamp(e, 2, TS)
    pre = ([("WPF",)] if wpf else []) + ([("XPF",)] if xpf else []) + ([] if nocs else [("CS", i) for i in range(ncspre)])
    def prel():
        if pre:
            x = pre.pop(0)
            if x[0] == "XPF": e.vmem(f"buffer_load_dword v255, v2, s[4:7], s63 offen {xpfl}", "XPF")
            elif x[0] == "WPF": e.vmem(f"buffer_load_dword v255, v254, s[16:19], s61 offen", "WPF")
            else: csload(x[1])
    for i in range(8):
        for cp in range(2):
            o = VKV + 4*i + 2*cp; sv = VV + 2*i + cp; t = VK + 2*((2*i+cp) % 8)
            e(f"v_lshlrev_b32 v{t}, 16, v{sv}\nv_and_b32 v{t+1}, 0xffff0000, v{sv}\nv_pk_mul_f32 v[{o}:{o+1}], v[{o}:{o+1}], v[{t}:{t+1}]")
        if i % 2 == 0: prel()
    for c in range(4):
        b = VV + 4*c
        for d in range(4):
            e(f"v_cvt_pk_bf16_f32 v{b+d}, v{VKV+4*(7-2*d)+c}, v{VKV+4*(6-2*d)+c}")
        e(f"ds_write_b128 {'v8' if c < 2 else 'v7'}, v[{b}:{b+3}] offset:{(c%2)*CH}")
    while pre: prel()
    e(f"s_waitcnt lgkmcnt(0)\ns_barrier")
    if timing: stamp(e, 3, TS)
    lds = []
    def fread(m): e(f"ds_read_b128 {ffr(m)}, v10 offset:{64*m}"); lds.append(f"F{m}")
    def gread(q, r): e(f"ds_read_b128 {gfr(q,r)}, v11 offset:{512*(7-q) + 64*r}"); lds.append(f"G{r}")
    def lwait(tags):
        nonlocal lds
        need_ = [i_ for i_, t_ in enumerate(lds) if t_ in tags]
        if need_:
            e(f"s_waitcnt lgkmcnt({min(len(lds) - 1 - max(need_), 15)})")
            lds = lds[max(need_)+1:]
    fread(0)
    for q in range(8): gread(q, 0)
    fread(1)
    e(f"""
    s_mov_b32 s49, 0
    v_lshlrev_b32 v14, 5, v0
    v_xor_b32 v5, 15, v0
    v_lshlrev_b32 v5, 3, v5
    s_lshl_b32 s52, s3, 12
    s_add_u32 s52, s52, {WS_ST1}
    """)
    nextF = 2
    sched = {}
    if not nox:
        for n in range(32): sched.setdefault(x0 + xd*n, []).append(("X", n))
    sched.setdefault(215, []).append(("POLL",))
    sched.setdefault(262, []).append(("CHK",))
    if not nocs:
        for i in range(16): sched.setdefault(cm0 + cmd*i, []).append(("CM", i))
        for i in range(ncspre, 16): sched.setdefault(cs0 + csd*(i-ncspre), []).append(("CS", i))
    ep1 = []
    def ep1_ops(j):
        a = ACC + 4*j; kk = VK + 2*j; t = VV + 4*(j % 4)
        ops = [lambda: lwait([f"Y{j}"])]
        ops += [f"v_and_b32 v{t}, 0xffff0000, v{kk+1}", f"v_lshlrev_b32 v{t+1}, 16, v{kk+1}", f"v_and_b32 v{t+2}, 0xffff0000, v{kk}", f"v_lshlrev_b32 v{t+3}, 16, v{kk}"]
        ops += [f"v_fma_f32 v{a+i}, s48, v{t+i}, v{a+i}" for i in range(4)]
        ops += [f"v_cvt_pk_bf16_f32 v{kk}, v{a+3}, v{a+2}", f"v_cvt_pk_bf16_f32 v{kk+1}, v{a+1}, v{a}"]
        def wr(): e(f"ds_write_b64 v12, v[{kk}:{kk+1}] offset:{512*(7-j)}"); lds.append("W")
        ops.append(wr)
        return ops
    nm = 0
    xi = 0
    for m in range(64):
        p, r = m // 8, m % 8
        lwait([f"F{m}", f"G{m}"])
        fills = []
        if p == 0 and r < 7: fills += [("G", q, r + 1) for q in range(8)]
        lim = m + 2 if p == 0 and r < 6 else m + FD
        while nextF <= lim and nextF < 64 and len([f for f in fills if f[0] == "F"]) < 2:
            fills.append(("F", nextF)); nextF += 1
        if p == 1: fills.append(("Y", r))
        if r == 3 and p >= 2: ep1 += ep1_ops(p - 2)
        if m == 62: ep1 += ep1_ops(6)
        nq = 8 - p
        for q in range(nq):
            j = p + q
            c = "0" if m == 0 else acc(j)
            e(f"v_mfma_f32_16x16x32_bf16 {acc(j)}, {ffr(m)}, {gfr(q,r)}, {c}")
            nm += 1
            take = fills[:2] if p == 0 else fills[:1]
            if q == nq - 1: take = fills
            fills = fills[len(take):]
            for f in take:
                if f[0] == "G": gread(f[1], f[2])
                elif f[0] == "F": fread(f[1])
                else:
                    e(f"ds_read_b64 v[{VK+2*f[1]}:{VK+2*f[1]+1}], v12 offset:{512*(7-f[1])}"); lds.append(f"Y{f[1]}")
            for s_ in sched.get(nm, []):
                if s_[0] == "X":
                    n = s_[1]; i = n >> 2
                    e(f"s_cmp_lg_u32 s3, {n & 3}\ns_cbranch_scc1 L_k1_x{n}")
                    l = f"buffer_load_dwordx2 v[{VX+2*i}:{VX+2*i+1}], v3, s[4:7], s49 offen {xl}"
                    if n & 3 == 0: e.vmem(l, "X")
                    else: e(l)
                    e(f"L_k1_x{n}:")
                    if n & 3 == 3: e(f"s_add_u32 s49, s49, {64*2048}")
                elif s_[0] == "CS": csload(s_[1])
                elif s_[0] == "CM":
                    i = s_[1]
                    if i == 0: e(f"s_waitcnt vmcnt({max(0, e.need([('CS', 15)]) - 1)})")
                    for h_ in range(2):
                        cc = "0" if i == 0 else f"v[{VCA+4*h_}:{VCA+4*h_+3}]"
                        e(f"v_mfma_f32_16x16x32_bf16 v[{VCA+4*h_}:{VCA+4*h_+3}], v[{VSEL+4*h_}:{VSEL+4*h_+3}], v[{VC+4*i}:{VC+4*i+3}], {cc}")
                elif s_[0] == "POLL":
                    e.vmem("buffer_load_dword v15, v14, s[36:39], 0 offen sc1", "PL")
                elif s_[0] == "CHK":
                    e(f"""
                    s_waitcnt vmcnt({max(0, e.need(['PL']) - 1)})
                    s_mov_b32 s53, 0
                    L_k1_poll:
                    v_cmp_eq_u32 vcc, 32, v15
                    s_cmp_eq_u32 vcc_lo, 0xff
                    s_cbranch_scc1 L_k1_polled
                    s_add_u32 s53, s53, 1
                    s_cmp_gt_u32 s53, {POLL_MAX}
                    s_cbranch_scc1 L_k1_polled
                    s_sleep 2
                    buffer_load_dword v15, v14, s[36:39], 0 offen sc1
                    s_waitcnt vmcnt(0)
                    s_branch L_k1_poll
                    L_k1_polled:
                    """)
                    for i in range(8):
                        e.vmem(f"buffer_load_dwordx2 v[{VS+2*i}:{VS+2*i+1}], v5, s[20:23], s52 offen offset:{512*i} sc1", "ST")
            for _ in range(1 if p < 6 else 2):
                if ep1 and not take:
                    x = ep1.pop(0)
                    if callable(x): x()
                    else: e(x)
    if timing: stamp(e, 4, TS)
    e(f"""
    v_bfe_u32 v14, v0, 2, 2
    v_mul_u32_u24 v14, {CH}, v14
    v_lshrrev_b32 v15, 4, v0
    v_lshlrev_b32 v15, 5, v15
    v_sub_u32 v14, v14, v15
    v_and_b32 v15, 3, v0
    v_lshl_add_u32 v14, v15, 3, v14
    s_lshl_b32 s52, s3, 10
    s_sub_u32 s52, {XR + 4064 - 896}, s52
    v_add_u32 v14, s52, v14
    v_lshrrev_b32 v15, 5, v0
    v_lshlrev_b32 v15, 16, v15
    v_xor_b32 v9, 15, v0
    v_and_b32 v9, 31, v9
    v_lshl_add_u32 v15, v9, 4, v15
    """)
    if not nocs:
        e(f"""
        s_lshl_b32 s53, s3, 11
        s_add_u32 s53, s53, {CSL}
        v_lshlrev_b32 v9, 5, v0
        v_add_u32 v9, s53, v9
        ds_write_b128 v9, v[{VCA}:{VCA+3}]
        ds_write_b128 v9, v[{VCA+4}:{VCA+7}] offset:16
        """)
        lds += ["W", "W"]
    for x in ep1 + ep1_ops(7):
        if callable(x): x()
        else: e(x)
    e(f"""
    s_lshl_b32 s52, s3, 20
    s_lshr_b32 s53, s40, 2
    s_lshl_b32 s53, s53, 10
    s_add_u32 s52, s52, s53
    s_and_b32 s53, s40, 1
    s_lshl_b32 s53, s53, 9
    s_add_u32 s52, s52, s53
    s_and_b32 s53, s40, 2
    s_lshl_b32 s53, s53, 2
    s_add_u32 s52, s52, s53
    s_lshl_b32 s53, s3, 9
    v_lshlrev_b32 v9, 3, v0
    v_add_u32 v9, s53, v9
    v_add_u32 v8, {CSL}, v9
    s_waitcnt lgkmcnt(0)
    s_barrier
    """)
    for i in range(8): e(f"ds_read_b64_tr_b16 v[{VK+2*i}:{VK+2*i+1}], v14 offset:{128*(7-i)}")
    if not nocs:
        for i in range(4): e(f"ds_read_b64 v[{VC+2*i}:{VC+2*i+1}], v8 offset:{2048*i}")
    e("s_waitcnt vmcnt(0) lgkmcnt(4)" if not nocs else "s_waitcnt vmcnt(0) lgkmcnt(0)")
    for i in range(8):
        x = VX + 2*i; y = VK + 2*i; st = VS + 2*i; t = VU + 12*(i % 2)
        e(f"""
        v_lshlrev_b32 v{t}, 16, v{x}
        v_and_b32 v{t+1}, 0xffff0000, v{x}
        v_lshlrev_b32 v{t+2}, 16, v{x+1}
        v_and_b32 v{t+3}, 0xffff0000, v{x+1}
        v_mul_f32 v{st}, v{st}, v{st+1}
        v_lshlrev_b32 v{t+4}, 16, v{y}
        v_and_b32 v{t+5}, 0xffff0000, v{y}
        v_lshlrev_b32 v{t+6}, 16, v{y+1}
        v_and_b32 v{t+7}, 0xffff0000, v{y+1}
        v_pk_fma_f32 v[{t+8}:{t+9}], v[{t}:{t+1}], v[{st}:{st+1}], v[{st}:{st+1}] op_sel:[0,1,0] op_sel_hi:[1,1,0] neg_lo:[0,0,1] neg_hi:[0,0,1]
        v_pk_fma_f32 v[{t+10}:{t+11}], v[{t+2}:{t+3}], v[{st}:{st+1}], v[{st}:{st+1}] op_sel:[0,1,0] op_sel_hi:[1,1,0] neg_lo:[0,0,1] neg_hi:[0,0,1]
        v_pk_fma_f32 v[{t}:{t+1}], v[{t+8}:{t+9}], v[{t+4}:{t+5}], v[{t}:{t+1}]
        v_pk_fma_f32 v[{t+2}:{t+3}], v[{t+10}:{t+11}], v[{t+6}:{t+7}], v[{t+2}:{t+3}]
        v_cvt_pk_bf16_f32 v{x}, v{t}, v{t+1}
        v_cvt_pk_bf16_f32 v{x+1}, v{t+2}, v{t+3}
        buffer_store_dwordx2 v[{x}:{x+1}], v15, s[20:23], s52 offen {st_flags}
        s_add_u32 s52, s52, {2*65536}
        """)
    if not nocs: e(f"""
    s_waitcnt lgkmcnt(0)
    v_pk_add_f32 v[{VC}:{VC+1}], v[{VC}:{VC+1}], v[{VC+2}:{VC+3}]
    v_pk_add_f32 v[{VC+4}:{VC+5}], v[{VC+4}:{VC+5}], v[{VC+6}:{VC+7}]
    v_cmp_gt_u32 vcc, 1792, v9
    v_mov_b32 v8, 0x80000000
    v_pk_add_f32 v[{VC}:{VC+1}], v[{VC}:{VC+1}], v[{VC+4}:{VC+5}]
    v_cndmask_b32 v9, v8, v9, vcc
    s_lshr_b32 s52, s2, 3
    s_and_b32 s53, s52, 15
    s_mul_i32 s53, s53, {7168*4}
    s_lshr_b32 s52, s52, 4
    s_mul_i32 s52, s52, {3584*4}
    s_add_u32 s52, s52, s53
    s_and_b32 s53, s2, 7
    s_mul_i32 s53, s53, 1792
    s_add_u32 s52, s52, s53
    s_add_u32 s52, s52, {WS_CSP}
    buffer_store_dwordx2 v[{VC}:{VC+1}], v9, s[20:23], s52 offen {st_flags}
    """)

def gen(name="k1_kernel", timing=False, **kw):
    e = Em()
    e("s_cmp_ge_u32 s2, 256\ns_cbranch_scc1 L_k1_end")
    body(e, timing, **kw)
    if timing:
        e("s_waitcnt vmcnt(0)")
        stamp(e, 5, 24)
        e("s_waitcnt lgkmcnt(0)\ns_mov_b32 s84, s44\ns_mov_b32 s86, s46")
        timing_store(e, "s[20:23]", 6, 64)
    e("L_k1_end:\ns_endpgm")
    return kstart(name) + e.text(), kdesc(name, 512, 102, 256), f"; @launch kernel={name} grid=(256,1,1) block=(256,1,1) lds={LDS_K1}\n"

if __name__ == "__main__":
    import sys
    kw = dict(a.split("=") for a in sys.argv[2:])
    kw = {k: (v if k in ("st_flags","pfl","csl","xl","sll","xpfl") else int(v)) for k, v in kw.items()}
    code, desc, launch = gen(**kw)
    open(sys.argv[1], "w").write(launch + HEADER + code + RODATA + desc)
```

```python
from common import *
ROWB = 7168
MATB = 14336
STB  = 2 * MATB
R = 4
NSTEP = 32
ACC0 = 32
def accb(tt, t): return ACC0 + (t * 4 + tt) * 4
def acc(tt, t): b = accb(tt, t); return f"v[{b}:{b+3}]"
CFG = dict(ab=1)
def afr(t, j=None, step=0):
    b = t * 4 + (56 * (step % 2) if CFG["ab"] == 2 else 0)
    return f"a[{b}:{b+3}]" if j is None else f"a[{b+2*j}:{b+2*j+1}]"
def bfr(slot, tt): b = 56 * CFG["ab"] + slot * 16 + tt * 4; return f"a[{b}:{b+3}]"
A_CSR, A_CSA, A_SEL = 208, 240, 248
SK2 = 4
STB2 = SK2 * 8192
R2 = 4
NSTEP2 = 56
NST2 = NSTEP2 // SK2
CS_LDS = R2 * STB2
LDS_G12 = CS_LDS + 8192
def accb2(tt, t): return 32 + (tt * 8 + t) * 4
def acc2(tt, t): b = accb2(tt, t); return f"v[{b}:{b+3}]"
def afr2(buf, t, j=None):
    b = buf * 32 + t * 4
    return f"a[{b}:{b+3}]" if j is None else f"a[{b+2*j}:{b+2*j+1}]"
def bfr2(slot, tt): b = 64 + slot * 8 + tt * 4; return f"a[{b}:{b+3}]"
TB = 96
RES = 112
VD0, VD1 = 28, 29

def k2_blocks(step):
    if step < 48: k = 7 * (step % 16) + 2 * (step // 16); return k, k + 1
    i = 2 * (step - 48); return 7 * i + 6, 7 * (i + 1) + 6

def roll(e, segs, label, ctr="s23"):
    txt = [e.text(a, b) for a, b in segs]
    out = ""; i = 0; nl = 0
    while i < len(txt):
        j = i
        while j + 1 < len(txt) and txt[j+1] == txt[i]: j += 1
        if j > i:
            out += f"s_mov_b32 {ctr}, 0\n{label}{nl}:\n" + txt[i] + f"s_add_u32 {ctr}, {ctr}, 1\ns_cmp_lt_u32 {ctr}, {j-i+1}\ns_cbranch_scc1 {label}{nl}\n"
            nl += 1
        else: out += txt[i]
        i = j + 1
    return out, nl

W2A = {0: """s_lshl_b32 s58, s2, 2
    s_add_u32 s58, s58, s3
    s_mul_i32 s58, s58, 7168""", 1: """s_and_b32 s58, s32, 1
    s_lshl_b32 s58, s58, 5
    s_add_u32 s58, s58, s33
    s_lshl_b32 s58, s58, 2
    s_add_u32 s58, s58, s3
    s_mul_i32 s58, s58, 28672
    s_lshr_b32 s59, s32, 2
    s_lshl_b32 s59, s59, 10
    s_add_u32 s58, s58, s59"""}
def gen(name="g12_kernel", timing=False, ldf="", wf="", w2pf=1, TL=0, nomfma2=False, noload2=False, dw=0, noex=0, rollx=0, nocs=0, ab=2, P=5, RB=6, t2f='sc1', split=1, noload1=0, g2o=1, w2x=0, w2s=12, nohs=0, nochk=0, w2l=0, xb16=1, noT2=0, noD2=0, noR2=0, P2=7, RB2=8):
    CFG['ab'] = ab
    assert 56*ab + 16*RB <= 208
    e = Em()
    e(f"""
    s_cmp_ge_u32 s2, 256
    s_cbranch_scc1 L_g12_end
    s_load_dwordx4 s[44:47], s[0:1], {KA['dbg']}
    s_load_dwordx4 s[28:31], s[0:1], {KA['w1']}
    s_load_dwordx4 s[92:95], s[0:1], {KA['w2']}
    """)
    if timing: stamp(e, 0)
    e(f"""
    v_lshrrev_b32 v1, 6, v0
    v_and_b32 v0, 63, v0
    s_and_b32 s32, s2, 7
    v_readfirstlane_b32 s3, v1
    s_lshr_b32 s33, s2, 3
    s_and_b32 s34, s33, 7
    s_lshl_b32 s35, s32, 2
    s_lshr_b32 s36, s33, 3
    s_add_u32 s35, s35, s36
    s_lshl_b32 s36, s34, 3
    s_lshl_b32 s37, s3, 1
    s_add_u32 s36, s36, s37
    s_lshl_b32 s37, s36, 16
    s_and_b32 s38, s3, 1
    s_mul_i32 s38, s38, {32*ROWB}
    s_mul_i32 s39, s35, 224
    s_add_u32 s38, s38, s39
    """)
    for i in range(7):
        e(f"""
        v_add_u32 v11, {64*i}, v0
        v_mul_u32_u24 v12, 4682, v11
        v_lshrrev_b32 v12, 16, v12
        v_mul_u32_u24 v13, {ROWB - 224}, v12
        v_lshl_add_u32 v13, v11, 4, v13
        v_add_u32 v{4+i}, s38, v13
        """)
        if i % 4: e(f"v_subrev_u32 v{4+i}, {1024*(i%4)}, v{4+i}")
    e(f"""
    v_lshrrev_b32 v13, 5, v0
    v_lshlrev_b32 v2, 10, v13
    v_bfe_u32 v14, v0, 4, 1
    v_lshlrev_b32 v14, 9, v14
    v_and_b32 v15, 15, v0
    v_lshlrev_b32 v15, 4, v15
    v_add3_u32 v2, v2, v14, v15
    v_add_u32 v2, s37, v2
    v_add_u32 v3, 0x10000, v2
    s_lshr_b32 s40, s3, 1
    s_mul_i32 s40, s40, {MATB}
    s_and_b32 s41, s3, 1
    s_mul_i32 s41, s41, 7168
    s_add_u32 s40, s40, s41
    s_cmp_ge_u32 s3, 2
    s_waitcnt lgkmcnt(0)
    s_cselect_b32 s8, s30, s28
    s_cselect_b32 s9, s31, s29
    s_and_b32 s9, s9, 0xffff
    s_mov_b32 s10, {1024*ROWB}
    s_mov_b32 s11, 0x00020000
    s_mov_b32 s21, 0
    """)
    def dma(i, slot, soff, tag):
        if i % 4 == 0:
            e(f"s_add_u32 m0, s40, {slot*STB + (i//4)*4096}")
            e("s_nop 0")
        e.vmem(f"buffer_load_dwordx4 v{4+i}, s[8:11], {soff} offen offset:{1024*(i%4)} {wf} lds", tag)
    def tok1(step, tt, soff, imm):
        e.vmem(f"buffer_load_dwordx4 {bfr(step % RB, tt)}, v{2+(tt>>1)}, s[4:7], {soff} offen offset:{imm + 256*(tt&1)} {ldf}", ("T", step))
    def trread(step, t, j):
        st = step // 2; kp = step % 2; slot = st % R
        base = "v11" if slot < 2 else "v12"
        off = (slot % 2) * STB + (t & 1) * MATB + (32 * kp + 8 * j) * 224 + 32 * (t >> 1)
        e(f"ds_read_b64_tr_b16 {afr(t, j, step)}, {base} offset:{off}")
    def ptok(t):
        e(f"s_mov_b32 s20, {(t//2)*4096}")
        for tt in range(4): tok1(t, tt, "s20", (t % 2) * 2048)
    for i in range(7): dma(i, 0, "s21", ("D", 0))
    e(srd(4, 46, 0x400000))
    for t in range(2): ptok(t)
    if timing: stamp(e, 1)
    for st in range(1, R):
        e(f"s_mov_b32 s21, {st*64*ROWB}")
        for i in range(7): dma(i, st, "s21", ("D", st))
        for t in range(2*st, min(2*st+2, P)): ptok(t)
    e("s_lshl_b32 s41, s35, 11")
    for tt in range(4):
        e.vmem(f"buffer_load_dwordx4 v[{16+4*tt}:{19+4*tt}], v{2+(tt>>1)}, s[4:7], s41 offen offset:{256*(tt&1)} {ldf}", ("HS", 0))
    e(f"""
    v_lshrrev_b32 v13, 5, v0
    v_lshlrev_b32 v13, 4, v13
    v_bfe_u32 v14, v0, 2, 3
    v_add_u32 v13, v13, v14
    v_mul_u32_u24 v13, 224, v13
    v_and_b32 v14, 3, v0
    v_lshlrev_b32 v14, 3, v14
    v_add_u32 v11, v13, v14
    v_add_u32 v12, {2*STB}, v11
    s_add_u32 s12, s46, {WS_HHF}
    s_addc_u32 s13, s47, 0
    s_and_b32 s13, s13, 0xffff
    s_mov_b32 s14, {2048*3584*2}
    s_mov_b32 s15, 0x00020000
    {srd(16, 46, WS_SIZE)}
    {srd(48, 44, 256)}
    {srd(52, 92, 3584*2048)}
    {srd(88, 94, 2048*2048)}
    {W2A[w2x]}
    v_lshlrev_b32 v1, 4, v0
    """)
    e(f"""
    v_bfe_u32 v13, v0, 2, 2
    v_lshrrev_b32 v14, 4, v0
    v_cmp_eq_u32 vcc, v13, v14
    v_and_b32 v13, 1, v0
    v_lshlrev_b32 v13, 4, v13
    v_mov_b32 v14, 0x3f80
    v_lshlrev_b32 v13, v13, v14
    v_cndmask_b32 v13, 0, v13, vcc
    v_and_b32 v14, 2, v0
    v_cmp_eq_u32 vcc, 0, v14
    v_accvgpr_write_b32 a{A_SEL+2}, 0
    v_accvgpr_write_b32 a{A_SEL+3}, 0
    v_cndmask_b32 v14, 0, v13, vcc
    v_cndmask_b32 v15, v13, 0, vcc
    v_accvgpr_write_b32 a{A_SEL+4}, 0
    v_accvgpr_write_b32 a{A_SEL+5}, 0
    v_accvgpr_write_b32 a{A_SEL}, v14
    v_accvgpr_write_b32 a{A_SEL+1}, v15
    v_accvgpr_write_b32 a{A_SEL+6}, v14
    v_accvgpr_write_b32 a{A_SEL+7}, v15
    """)
    e(f"s_mul_i32 s59, s34, {4*ROWB}")
    ex = []
    ex.append((3, lambda: e(f"s_waitcnt vmcnt({e.need([('HS',0)])})")))
    ex.append((1, "v_mov_b32 v15, 0x3f803f80"))
    for tt in range(4):
        x = 16 + 4*tt
        ex.append((1, f"v_dot2_f32_bf16 v14, v{x}, v{x}, 0"))
        for d in range(1, 4): ex.append((1, f"v_dot2_f32_bf16 v14, v{x+d}, v{x+d}, v14"))
        ex.append((1, f"v_dot2_f32_bf16 v13, v{x}, v15, 0"))
        for d in range(1, 4): ex.append((1, f"v_dot2_f32_bf16 v13, v{x+d}, v15, v13"))
        ex.append((1, f"s_nop 1\nv_mov_b32 v{x+1}, v14"))
        ex.append((1, f"s_nop 1\nv_mov_b32 v{x}, v13\ns_nop 1"))
    for o in (0, 1):
        ex.append((1, f"v_permlane32_swap_b32 v{16+o}, v{24+o}"))
        ex.append((1, f"v_permlane32_swap_b32 v{20+o}, v{28+o}"))
    for o in (0, 1):
        ex.append((1, f"v_add_f32 v{16+o}, v{16+o}, v{24+o}"))
        ex.append((1, f"v_add_f32 v{20+o}, v{20+o}, v{28+o}"))
    ex.append((1, f"s_lshl_b32 s41, s36, 7\ns_add_u32 s41, s41, {WS_ST2}\nv_lshlrev_b32 v14, 2, v0"))
    ex.append((1, "s_add_u32 s42, s41, 8192"))
    for o in (0, 1): ex.append((1, f"v_permlane16_swap_b32 v{16+o}, v{20+o}"))
    for o in (0, 1): ex.append((1, f"v_add_f32 v{16+o}, v{16+o}, v{20+o}"))
    ex.append((1, lambda: e.vmem("buffer_atomic_add_f32 v16, v14, s[16:19], s41 offen", ("AT", 0))))
    ex.append((1, lambda: e.vmem("buffer_atomic_add_f32 v17, v14, s[16:19], s42 offen", ("AT", 0))))
    ex.append((13, f"""
    s_lshl_b32 s57, s3, 11
    s_add_u32 s57, s57, {CS_LDS}
    v_lshl_add_u32 v13, v0, 5, s57
    ds_write_b128 v13, a[{A_CSA}:{A_CSA+3}]
    ds_write_b128 v13, a[{A_CSA+4}:{A_CSA+7}] offset:16
    v_lshl_add_u32 v13, v0, 2, s57
    """))
    for i in range(8): ex.append((13, f"ds_read_b32 v{18+i}, v13 offset:{(i >> 1)*448 + (i & 1)*224}"))
    ex.append((15, f"""
    s_lshr_b32 s56, s3, 1
    s_mul_i32 s56, s56, {3584*4}
    s_mul_i32 s57, s35, 448
    s_add_u32 s56, s56, s57
    s_add_u32 s56, s56, {WS_CS}
    v_lshlrev_b32 v13, 2, v0
    """))
    ex.append((15, "v_pk_add_f32 v[18:19], v[18:19], v[20:21]"))
    ex.append((15, "v_pk_add_f32 v[22:23], v[22:23], v[24:25]"))
    ex.append((15, "v_pk_add_f32 v[18:19], v[18:19], v[22:23]"))
    def csat(i):
        def f():
            e("s_mov_b32 exec_hi, 0xffffff")
            e.vmem(f"buffer_atomic_add_f32 v{18+i}, v13, s[16:19], s56 offen offset:{224*i}", ("AT", 0))
            e("s_mov_b32 exec_hi, -1")
        return f
    for i in range(2): ex.append((15, csat(i)))
    ex.append((15, f"""
    s_lshl_b32 s43, s34, 7
    s_add_u32 s43, s43, s35
    s_lshl_b32 s43, s43, 7
    s_add_u32 s43, s43, {WS_FL + 32}
    s_lshl_b32 s56, s34, 7
    v_add_u32 v15, s56, v0
    v_and_b32 v13, 7, v0
    v_lshlrev_b32 v13, 7, v13
    v_add_u32 v13, s35, v13
    v_cmp_gt_u32 vcc, 32, v0
    v_and_b32 v14, 15, v0
    v_lshlrev_b32 v14, 2, v14
    v_cndmask_b32 v15, v13, v15, vcc
    v_lshlrev_b32 v15, 7, v15
    v_add_u32 v15, {WS_FL + 32}, v15
    v_mov_b32 v16, 0
    v_mov_b32 v17, 1
    """))
    ex.append((24, lambda: e.vmem("buffer_load_dword v16, v15, s[16:19], 0 offen sc1", ("PL", 0))))
    ex.append((24, f"""
    s_and_b32 s96, s32, 1
    s_bfe_u32 s97, s32, 0x10001
    s_lshl_b32 s97, s97, 3
    s_and_b32 s98, s33, 7
    s_add_u32 s97, s97, s98
    s_lshr_b32 s98, s32, 2
    s_lshl_b32 s98, s98, 2
    s_lshr_b32 s99, s33, 3
    s_add_u32 s98, s98, s99
    s_lshl_b32 s99, s97, 2
    s_add_u32 s99, s99, s3
    """))
    ex.append((24, f"""
    v_lshrrev_b32 v{VD1}, 4, v0
    v_lshlrev_b32 v30, 1, v{VD1}
    v_and_b32 v31, 15, v0
    v_xor_b32 v31, v30, v31
    v_lshlrev_b32 v31, 4, v31
    v_lshlrev_b32 v{VD1}, 11, v{VD1}
    s_and_b32 s100, s3, 1
    s_lshl_b32 s100, s100, 14
    s_lshl_b32 s101, s98, 8
    s_add_u32 s100, s100, s101
    v_add3_u32 v{VD0}, v{VD1}, v31, s100
    v_xor_b32 v{VD1}, 0x80, v{VD0}
    v_add_u32 v{VD1}, {4*2048 - 1024}, v{VD1}
    s_lshr_b32 s101, s3, 1
    s_mul_i32 s100, s96, 112
    s_add_u32 s100, s100, s101
    s_lshl_b32 s100, s100, 15
    s_mul_i32 s101, s101, {6*32768}
    s_lshl_b32 s26, s3, 11
    """))
    def chk():
        e(f"""
        s_waitcnt vmcnt({e.need([('PL',0)])})
        s_mov_b32 s57, 0
        L_g1_poll:
        v_cmp_eq_u32 vcc, 1, v16
        s_cmp_eq_u64 vcc, -1
        s_cbranch_scc1 L_g1_polled
        s_add_u32 s57, s57, 1
        s_cmp_gt_u32 s57, {POLL_MAX}
        s_cbranch_scc1 L_g1_polled
        s_sleep 1
        buffer_load_dword v16, v15, s[16:19], 0 offen sc1
        s_waitcnt vmcnt(0)
        s_branch L_g1_poll
        L_g1_polled:
        v_cmp_gt_u32 vcc, 28, v0
        v_mov_b32 v13, {WS_CS + 3584*4 - 448}
        v_mov_b32 v15, {WS_CS}
        s_mul_i32 s56, s35, 448
        v_cndmask_b32 v13, v13, v15, vcc
        s_lshl_b32 s57, s3, 11
        s_add_u32 m0, s57, {CS_LDS}
        v_add3_u32 v13, v13, v1, s56
        """)
        e.vmem("buffer_load_dwordx4 v13, s[16:19], 0 offen sc1 lds", ("S", 0))
        for tt in range(4):
            e.vmem(f"buffer_load_dword v{16+2*tt}, v14, s[16:19], s41 offen offset:{64*tt} sc1", ("S", 0))
            e.vmem(f"buffer_load_dword v{17+2*tt}, v14, s[16:19], s42 offen offset:{64*tt} sc1", ("S", 0))
    ex.append((27, chk))
    def pf2():
        e.vmem(f"buffer_load_dword v27, v1, s[52:55], s58 offen", ("W2", 0))
        e(f"s_add_u32 s58, s58, {2048 if w2x else 1024}")
    cs_order = []
    for i in range(8): cs_order += [8 + i, i]
    def csload(n):
        e(f"s_add_u32 s56, s59, {cs_order[n]*64*ROWB}")
        b = A_CSR + 4 * (n % 8)
        e.vmem(f"buffer_load_dwordx4 a[{b}:{b+3}], v4, s[8:11], s56 offen", ("CS", n))
    def csmfma(n):
        b = A_CSR + 4 * (n % 8)
        e(f"s_waitcnt vmcnt({e.need([('CS', n)])})")
        for h_ in range(2):
            d = f"a[{A_CSA+4*h_}:{A_CSA+4*h_+3}]"
            e(f"v_mfma_f32_16x16x32_bf16 {d}, a[{A_SEL+4*h_}:{A_SEL+4*h_+3}], a[{b}:{b+3}], {'0' if n == 0 else d}")
    d2state = {"k": 0}
    def dma2(step):
        st = step // SK2; kp = step % SK2; slot = st % R2
        ka = k2_blocks(step)[0]
        if step > 0:
            dk = ka - d2state["k"]
            e(f"s_add_u32 s100, s100, {dk*32768}" if dk >= 0 else f"s_sub_u32 s100, s100, {-dk*32768}")
            if step == 48: e("s_add_u32 s100, s100, s101")
        d2state["k"] = ka
        e(f"s_add_u32 m0, s26, {slot*STB2 + kp*8192}")
        e("s_nop 0")
        e.vmem(f"buffer_load_dwordx4 v{VD0}, s[52:55], s100 offen lds", ("D2", st))
        e.vmem(f"buffer_load_dwordx4 v{VD1}, s[52:55], s100 offen offset:1024 lds", ("D2", st))
    e(f"s_mov_b32 s20, {P*2048}\ns_mov_b32 s21, {R*64*ROWB}")
    e(f"s_waitcnt vmcnt({e.need([('D',0)])})\ns_barrier")
    for t in range(14):
        for j in range(2): trread(0, t, j)
    if timing: stamp(e, 2)
    pend_dma = []
    d2pend = []
    if noex: ex = [x for x in ex if x[0] == 24 and not callable(x[1])]
    if nohs: ex = [x for x in ex if x[0] > 3 or (not callable(x[1]) and "s41" in x[1])]
    if nochk: ex = [x for x in ex if x[0] != 27]
    if split:
        ex2 = []
        for (st_, x) in ex:
            if callable(x) or "s_nop" in x: ex2.append((st_, x)); continue
            ls = [l.strip() for l in x.strip().split("\n") if l.strip()]
            for i_ in range(0, len(ls), 2): ex2.append((st_, "\n".join(ls[i_:i_+2])))
        ex = ex2
    segs = []
    for step in range(NSTEP):
        if step % 8 == 0:
            if segs: segs[-1][1] = e.mark()
            segs.append([e.mark(), None])
        st = step // 2; kp = step % 2
        n = e.need([("T", step)])
        e(f"s_waitcnt vmcnt({n}) lgkmcnt(" + ("0" if step == 0 or ab == 2 else "12") + ")")
        fill = [[] for _ in range(56)]
        if kp == 1 and st + R < 16: pend_dma += [(st + R, i) for i in range(7)]
        if step == 29: d2pend += list(range(8))
        if ab == 1: pT, pD, pD2 = [5, 9, 13, 17], [21, 25, 29, 33], [21, 29, 37]
        else: pT, pD, pD2 = [4, 8, 12, 16], [20, 24, 28, 32], [20, 28, 36]
        if step + 1 < NSTEP:
            for t in range(14):
                if ab == 1:
                    fill[4*t + 3].append(("R", step + 1, t, 0))
                    fill[min(4*t + 4, 55)].append(("R", step + 1, t, 1))
                else:
                    k_ = 2*t
                    fill[3 + (k_*3)//2].append(("R", step + 1, t, 0)); fill[3 + ((k_+1)*3)//2].append(("R", step + 1, t, 1))
        def free_from(p):
            while fill[p]: p += 1
            return p
        if step + P < NSTEP and not noload1:
            for tt in range(4): fill[free_from(pT[tt])].append(("T", step + P, tt))
        nd = 4 if kp == 1 else 3
        for q in range(nd):
            if pend_dma: fill[free_from(pD[q])].append(("D",) + pend_dma.pop(0))
        for q in range(3):
            if d2pend: fill[free_from(pD2[q])].append(("D2", d2pend.pop(0)))
        if 1 <= step <= 8 and not (noex or nocs):
            fill[free_from(37)].append(("CSL", 2*(step-1))); fill[free_from(41)].append(("CSL", 2*(step-1)+1))
        if 5 <= step <= 12 and not (noex or nocs):
            fill[1].append(("CSM", 2*(step-5))); fill[2].append(("CSM", 2*(step-5)+1))
        if w2pf and not noex and ((w2s <= step < w2s + 14) if w2x else (9 <= step <= 21 and step % 2 == 1)): fill[free_from(45)].append(("PF2",))
        for i in range(56):
            t, tt = (i // 4, i % 4) if ab == 1 else (i % 14, i // 14)
            if ab == 1 and kp == 0 and step > 0 and i in (24, 48): e("s_waitcnt lgkmcnt(12)")
            c = "0" if step == 0 else acc(tt, t)
            e(f"v_mfma_f32_16x16x32_bf16 {acc(tt,t)}, {afr(t, None, step)}, {bfr(step%RB,tt)}, {c}")
            if kp == 1 and i == 2:
                n = e.need([("D", st + 1)] + ([("AT", 0)] if st == 9 else []))
                e(f"s_waitcnt vmcnt({n}) lgkmcnt(0)\ns_barrier" if st + 1 < 16 else "s_waitcnt lgkmcnt(0)\ns_barrier")
                if st == 9 and not noex:
                    assert not [x for x in ex if x[0] <= 15]
                    e("s_cmp_eq_u32 s3, 0\ns_cselect_b32 s56, s43, 0x80000000\ns_mov_b64 exec, 1")
                    e.vmem("buffer_store_dword v17, v16, s[16:19], s56 offen sc1", ("SG", 0))
                    e("s_mov_b64 exec, -1")
            for f in fill[i]:
                if f[0] == "R": trread(f[1], f[2], f[3])
                elif f[0] == "T":
                    tok1(f[1], f[2], "s20", (step % 2) * 2048)
                    if step % 2 == 1 and f[2] == 3: e("s_add_u32 s20, s20, 4096")
                elif f[0] == "D":
                    if not noload1: dma(f[2], f[1] % R, "s21", ("D", f[1]))
                    if f[2] == 6: e(f"s_add_u32 s21, s21, {64*ROWB}")
                elif f[0] == "D2": dma2(f[1])
                elif f[0] == "CSL": csload(f[1])
                elif f[0] == "CSM": csmfma(f[1])
                elif f[0] == "PF2": pf2()
            if not fill[i] and i >= 4 and ex and ex[0][0] <= step:
                x = ex.pop(0)[1]
                if callable(x): x()
                else: e(x)
    assert not ex and not d2pend
    segs[-1][1] = e.mark()
    if timing: stamp(e, 3)
    e(f"""
    s_waitcnt vmcnt({e.need([('S',0)])})
    v_lshrrev_b32 v13, 4, v0
    s_lshl_b32 s57, s3, 11
    s_add_u32 s57, s57, {CS_LDS}
    v_lshl_add_u32 v1, v13, 4, s57
    v_and_b32 v14, 1, v13
    v_lshlrev_b32 v14, 9, v14
    v_lshrrev_b32 v13, 1, v13
    v_lshlrev_b32 v13, 8, v13
    v_and_b32 v15, 15, v0
    v_lshlrev_b32 v15, 4, v15
    v_add3_u32 v2, v13, v14, v15
    s_mul_i32 s41, s36, {224*1024}
    s_mul_i32 s42, s35, {7*1024}
    s_add_u32 s41, s41, s42
    v_add_u32 v2, s41, v2
    v_add_u32 v3, {224*1024}, v2
    s_mov_b32 s43, 0xbfb8aa3b
    s_mov_b32 s44, 4096
    s_lshl_b32 s47, s34, 2
    s_add_u32 s47, s47, s3
    s_lshl_b32 s47, s47, 5
    s_add_u32 s47, s47, s35
    s_lshl_b32 s47, s47, 7
    s_add_u32 s47, s47, {WS_FL}
    v_mov_b32 v30, 0
    v_mov_b32 v24, v16
    v_mov_b32 v25, v17
    v_mov_b32 v26, v18
    v_mov_b32 v27, v19
    s_mov_b32 s45, 0xba800000
    s_mov_b32 s46, 0x3a800000
    """)
    src = {0: (24, 25), 1: (26, 27), 2: (20, 21), 3: (22, 23)}
    for tt in range(4):
        m, r = src[tt]; b = 4 + 4 * tt
        e(f"""
        v_mul_f32 v{b}, s45, v{m}
        v_mul_f32 v{b+2}, s46, v{r}
        v_fma_f32 v{b+2}, -v{b}, v{b}, v{b+2}
        v_max_f32 v{b+2}, 0, v{b+2}
        v_add_f32 v{b+2}, 0x3727c5ac, v{b+2}
        v_rsq_f32 v{b+1}, v{b+2}
        s_nop 0
        v_mul_f32 v{b+1}, s43, v{b+1}
        """)
    def cread(u): e(f"ds_read_b128 v[20:23], v1 offset:{u*64}\nds_read_b128 v[24:27], v1 offset:{448+u*64}")
    def hhflag(val, tags):
        e(f"s_waitcnt vmcnt({e.need(tags)})\nv_mov_b32 v31, {val}\ns_mov_b64 exec, 1")
        e.vmem("buffer_store_dword v31, v30, s[16:19], s47 offen sc1", ("HF", val))
        e("s_mov_b64 exec, -1")
    if w2l: e(W2A[1] + "\nv_lshlrev_b32 v31, 4, v0\nv_accvgpr_write_b32 a254, v31")
    def pf2l():
        e("v_accvgpr_read_b32 v31, a254")
        for _ in range(2):
            e.vmem(f"buffer_load_dword a255, v31, s[52:55], s58 offen", ("W2", 1))
            e("s_add_u32 s58, s58, 2048")
    cread(0)
    d2pend = list(range(8, 16))
    for u in range(7):
        e("s_waitcnt lgkmcnt(0)")
        G = [accb(tt, 2*u) for tt in range(4)]; U = [accb(tt, 2*u+1) for tt in range(4)]
        for tt in range(4):
            b = 4 + 4 * tt
            for p in range(2):
                g = G[tt] + 2*p; up = U[tt] + 2*p
                e(f"v_pk_fma_f32 v[{g}:{g+1}], v[{b}:{b+1}], v[{20+2*p}:{21+2*p}], v[{g}:{g+1}] op_sel_hi:[0,1,1]")
                e(f"v_pk_fma_f32 v[{up}:{up+1}], v[{b}:{b+1}], v[{24+2*p}:{25+2*p}], v[{up}:{up+1}] op_sel_hi:[0,1,1]")
        if u < 6: cread(u + 1)
        for tt in range(4):
            b = 4 + 4 * tt
            for p in range(2):
                g = G[tt] + 2*p; up = U[tt] + 2*p
                e(f"v_pk_mul_f32 v[{up}:{up+1}], v[{g}:{g+1}], v[{up}:{up+1}]")
                e(f"v_pk_mul_f32 v[{g}:{g+1}], v[{g}:{g+1}], v[{b}:{b+1}] op_sel:[0,1] op_sel_hi:[1,1]")
        for tt in range(4):
            for p in range(4): e(f"v_exp_f32 v{G[tt]+p}, v{G[tt]+p}")
        if d2pend and u < 4:
            dma2(d2pend.pop(0)); dma2(d2pend.pop(0))
        if w2l: pf2l()
        for tt in range(4):
            b = 4 + 4 * tt
            for p in range(2):
                g = G[tt] + 2*p
                e(f"v_pk_fma_f32 v[{g}:{g+1}], v[{g}:{g+1}], v[{b+2}:{b+3}], v[{b+2}:{b+3}] op_sel_hi:[1,0,0]")
        for tt in range(4):
            for p in range(4): e(f"v_rcp_f32 v{G[tt]+p}, v{G[tt]+p}")
        for tt in range(4):
            for p in range(2):
                g = G[tt] + 2*p; up = U[tt] + 2*p
                e(f"v_pk_mul_f32 v[{up}:{up+1}], v[{g}:{g+1}], v[{up}:{up+1}]")
        for i in range(2):
            d = G[2*i]
            e(f"v_cvt_pk_bf16_f32 v{d}, v{U[2*i]}, v{U[2*i]+1}")
            e(f"v_cvt_pk_bf16_f32 v{d+1}, v{U[2*i]+2}, v{U[2*i]+3}")
            e(f"v_cvt_pk_bf16_f32 v{d+2}, v{U[2*i+1]}, v{U[2*i+1]+1}")
            e(f"v_cvt_pk_bf16_f32 v{d+3}, v{U[2*i+1]+2}, v{U[2*i+1]+3}")
        e("s_nop 0")
        for i in range(2):
            d = G[2*i]
            e(f"v_permlane32_swap_b32 v{d}, v{d+2}\nv_permlane32_swap_b32 v{d+1}, v{d+3}")
        for i in range(2):
            d = G[2*i]
            so = "0" if u < 4 else "s44"
            e.vmem(f"buffer_store_dwordx4 v[{d}:{d+3}], v{2+i}, s[12:15], {so} offen offset:{(u%4)*1024} sc1", ("HH", u))
        if u == 4: hhflag(1, [("HH", 1)])
        if u == 6: hhflag(2, [("HH", 3)])
    if timing: stamp(e, 4)
    e(f"""
    s_lshr_b32 s41, s99, 1
    s_lshl_b32 s41, s41, 5
    s_lshl_b32 s42, s96, 4
    s_add_u32 s41, s41, s42
    s_lshl_b32 s41, s41, 7
    s_add_u32 s41, s41, {WS_FL}
    v_and_b32 v9, 15, v0
    v_lshlrev_b32 v9, 7, v9
    v_add_u32 v9, s41, v9
    """)
    e.vmem("buffer_load_dword v10, v9, s[16:19], 0 offen sc1", ("PL2", 1))
    e(f"""
    s_mul_i32 s37, s99, {224*1024}
    s_mul_i32 s38, s96, {112*1024}
    s_add_u32 s37, s37, s38
    v_bfe_u32 v14, v0, 4, 1
    v_lshlrev_b32 v14, 9, v14
    v_and_b32 v15, 15, v0
    v_lshlrev_b32 v15, 4, v15
    v_add3_u32 v4, v14, v15, s37
    v_lshrrev_b32 v13, 5, v0
    v_lshl_add_u32 v2, v13, 10, v4
    v_mul_u32_u24 v5, 7168, v13
    v_add_u32 v3, v4, v5
    v_lshlrev_b32 v5, 3, v13
    v_add3_u32 v5, v5, v14, v15
    s_lshl_b32 s41, s99, 16
    s_lshl_b32 s42, s98, 13
    s_add_u32 s41, s41, s42
    s_lshl_b32 s42, s96, 12
    s_add_u32 s41, s41, s42
    """)
    for tt in range(2):
        for t in range(4):
            b = RES + (tt * 4 + t) * 2
            e.vmem(f"buffer_load_dwordx2 v[{b}:{b+1}], v5, s[4:7], s41 offen offset:{t*1024 + tt*256} {ldf}", ("H", 0))
    e(f"""
    v_lshlrev_b32 v13, 4, v13
    v_bfe_u32 v14, v0, 2, 3
    v_add_u32 v13, v13, v14
    v_lshlrev_b32 v13, 8, v13
    v_and_b32 v15, 3, v0
    v_lshlrev_b32 v15, 3, v15
    v_add_u32 v13, v13, v15
    s_lshl_b32 s40, s96, 2
    v_xor_b32 v14, s40, v14
    v_lshl_add_u32 v13, v14, 5, v13
    """)
    for t in range(8):
        e(f"v_xor_b32 v{TB+t}, {t*32}, v13\nv_add_u32 v{TB+8+t}, {2*STB2}, v{TB+t}")
    l2q = []
    npoll = [0]
    def poll2(val):
        k = npoll[0]; npoll[0] += 1
        e(f"""
        s_waitcnt vmcnt({e.need([('PL2', val)])})
        s_mov_b32 s57, 0
        L_g2_pollA{k}:
        v_cmp_le_u32 vcc, {val}, v10
        s_cmp_eq_u64 vcc, -1
        s_cbranch_scc1 L_g2_polledA{k}
        s_add_u32 s57, s57, 1
        s_cmp_gt_u32 s57, {POLL_MAX}
        s_cbranch_scc1 L_g2_polledA{k}
        buffer_load_dword v10, v9, s[16:19], 0 offen sc1
        s_waitcnt vmcnt(0)
        s_branch L_g2_pollA{k}
        L_g2_polledA{k}:
        """)
    t2state = {"k": 0}
    def toks2(step):
        ka = k2_blocks(step)[0]
        if step == 0: e("s_mov_b32 s20, 0")
        else:
            dk = ka - t2state["k"]
            e(f"s_add_u32 s20, s20, {dk*1024}" if dk >= 0 else f"s_sub_u32 s20, s20, {-dk*1024}")
        t2state["k"] = ka
        for tt in range(2):
            e.vmem(f"buffer_load_dwordx4 {bfr2(step % RB2, tt)}, {'v2' if step < 48 else 'v3'}, s[12:15], s20 offen offset:{256*tt} {t2f}", ("T2", step))
    def trread2(step, t, j):
        st = step // SK2; kp = step % SK2; slot = st % R2
        base = f"v{TB+t}" if slot < 2 else f"v{TB+8+t}"
        off = (slot % 2) * STB2 + kp * 8192 + j * 2048
        e(f"ds_read_b64_tr_b16 {afr2(step % 2, t, j)}, {base} offset:{off}"); l2q.append((step, t))
    def lw2(tag):
        idx = [i_ for i_, x in enumerate(l2q) if x == tag]
        if idx:
            n_ = len(l2q) - 1 - max(idx)
            e(f"s_waitcnt lgkmcnt({min(n_, 15)})")
            keep = min(n_, 15)
            del l2q[:len(l2q) - keep]
    e(f"s_waitcnt vmcnt({e.need([('D2',0)])})\ns_barrier")
    for t in range(8):
        for j in range(2): trread2(0, t, j)
    poll2(1)
    for t in range(P2): toks2(t)
    e(f"s_waitcnt vmcnt({e.need([('H',0)])})")
    for tt in range(2):
        for t in range(4):
            b = RES + (tt * 4 + t) * 2; a = accb2(tt, t)
            e(f"v_lshlrev_b32 v{a}, 16, v{b}\nv_and_b32 v{a+1}, 0xffff0000, v{b}\nv_lshlrev_b32 v{a+2}, 16, v{b+1}\nv_and_b32 v{a+3}, 0xffff0000, v{b+1}")
    e(f"""
    v_lshlrev_b32 v6, 4, v0
    s_lshl_b32 s43, s2, 2
    s_add_u32 s43, s43, s3
    s_xor_b32 s44, s43, 4
    s_lshl_b32 s45, s43, 7
    s_lshl_b32 s46, s44, 7
    s_add_u32 s45, s45, {WS_FL + 64}
    s_add_u32 s46, s46, {WS_FL + 64}
    s_lshl_b32 s43, s43, 13
    s_lshl_b32 s44, s44, 13
    s_add_u32 s43, s43, {WS_XB}
    s_add_u32 s44, s44, {WS_XB}
    s_add_u32 s58, s43, 4096
    s_add_u32 s59, s44, 4096
    """)
    if timing: stamp(e, 5)
    pend = []
    def toks2_ops(step):
        ka = k2_blocks(step)[0]; dk = ka - t2state["k"]; t2state["k"] = ka
        ops = [lambda: e(f"s_add_u32 s20, s20, {dk*1024}" if dk >= 0 else f"s_sub_u32 s20, s20, {-dk*1024}")]
        for tt in range(2):
            ops.append(lambda tt=tt: e.vmem(f"buffer_load_dwordx4 {bfr2(step % RB2, tt)}, {'v2' if step < 48 else 'v3'}, s[12:15], s20 offen offset:{256*tt} {t2f}", ("T2", step)))
        return ops
    def dma2_ops(step):
        st = step // SK2; kp = step % SK2; slot = st % R2
        ka = k2_blocks(step)[0]; dk = ka - d2state["k"]; d2state["k"] = ka
        ops = [lambda: e((f"s_add_u32 s100, s100, {dk*32768}" if dk >= 0 else f"s_sub_u32 s100, s100, {-dk*32768}") + ("\ns_add_u32 s100, s100, s101" if step == 48 else ""))]
        ops.append(lambda: e(f"s_add_u32 m0, s26, {slot*STB2 + kp*8192}"))
        ops.append(lambda: e.vmem(f"buffer_load_dwordx4 v{VD0}, s[52:55], s100 offen lds", ("D2", st)))
        ops.append(lambda: e.vmem(f"buffer_load_dwordx4 v{VD1}, s[52:55], s100 offen offset:1024 lds", ("D2", st)))
        return ops
    BP = 7
    for step in range(NSTEP2):
        st = step // SK2; kp = step % SK2
        bar = kp == SK2 - 1 and st + 1 < NST2
        e(f"s_waitcnt vmcnt({e.need([('T2', step)])})")
        fill = [[] for _ in range(16)]
        if step + 1 < NSTEP2 and not noR2:
            for k in range(16):
                fill[k if not bar else BP + 1 + k // 2].append(lambda k=k: trread2(step + 1, k // 2, k % 2))
        misc = []
        if step == 0: misc.append(lambda: hhflag(3, [("HH", 6)]))
        if step in (4, 18): misc.append(lambda: e.vmem("buffer_load_dword v10, v9, s[16:19], 0 offen sc1", ("PL2", 2 if step == 4 else 3)))
        if step + P2 in (16, 32): misc.append(lambda: poll2(2 if step + P2 == 16 else 3))
        if step + P2 < NSTEP2 and not (noload2 or noT2): misc += toks2_ops(step + P2)
        if pend and not (noload2 or noD2): misc += dma2_ops(pend.pop(0))
        pos = list(range(0, BP + 1)) if bar else [1, 3, 5, 7, 9, 11, 13, 15, 14]
        for p_, m_ in zip(pos, misc): fill[p_].append(m_)
        assert len(misc) <= len(pos)
        if bar and st + R2 < NST2: pend += [(st + R2) * SK2 + i for i in range(SK2)]
        for i in range(16):
            tt, t = i % 2, i // 2
            if tt == 0 and t % 2 == 0: lw2((step, t + 1))
            c = "0" if (step == 0 and t >= 4) else acc2(tt, t)
            if not nomfma2: e(f"v_mfma_f32_16x16x32_bf16 {acc2(tt,t)}, {afr2(step%2,t)}, {bfr2(step%RB2,tt)}, {c}")
            for f in fill[i]: f()
            if bar and i == BP:
                e(f"s_waitcnt vmcnt({e.need([('D2', st + 1)])}) lgkmcnt(0)\ns_barrier"); l2q.clear()
    if timing: stamp(e, 6)
    e(f"""
    v_and_b32 v15, 15, v0
    v_lshlrev_b32 v15, 11, v15
    v_bfe_u32 v14, v0, 4, 1
    v_lshlrev_b32 v14, 5, v14
    v_lshrrev_b32 v13, 5, v0
    v_lshlrev_b32 v13, 4, v13
    v_add3_u32 v3, v13, v14, v15
    s_lshl_b32 s41, s99, 16
    s_lshl_b32 s42, s98, 8
    s_add_u32 s41, s41, s42
    s_lshl_b32 s42, s96, 7
    s_add_u32 s41, s41, s42
    s_add_u32 s42, s41, 32768
    v_mov_b32 v7, 0
    v_mov_b32 v8, 1
    """)
    if xb16:
        for tt in range(2):
            for tp in range(2):
                a0 = accb2(tt, 4+2*tp); a1 = a0 + 4
                e(f"v_cvt_pk_bf16_f32 v{a0}, v{a0}, v{a0+1}\nv_cvt_pk_bf16_f32 v{a0+1}, v{a0+2}, v{a0+3}\nv_cvt_pk_bf16_f32 v{a0+2}, v{a1}, v{a1+1}\nv_cvt_pk_bf16_f32 v{a0+3}, v{a1+2}, v{a1+3}")
                e(f"buffer_store_dwordx4 v[{a0}:{a0+3}], v6, s[16:19], s43 offen offset:{(tt*2+tp)*1024} sc1")
    else:
        for tt in range(2):
            for t in range(4):
                e(f"buffer_store_dwordx4 {acc2(tt, 4+t)}, v6, s[16:19], {'s43' if tt == 0 else 's58'} offen offset:{t*1024} sc1")
    e(f"""
    s_waitcnt vmcnt(0)
    s_mov_b64 exec, 1
    buffer_store_dword v8, v7, s[16:19], s45 offen sc1
    s_mov_b64 exec, -1
    s_mov_b32 s57, 0
    L_g2_poll:
    buffer_load_dword v9, v7, s[16:19], s46 offen sc1
    s_waitcnt vmcnt(0)
    v_readfirstlane_b32 s56, v9
    s_cmp_eq_u32 s56, 1
    s_cbranch_scc1 L_g2_polled
    s_add_u32 s57, s57, 1
    s_cmp_gt_u32 s57, {POLL_MAX}
    s_cbranch_scc1 L_g2_polled
    s_branch L_g2_poll
    L_g2_polled:
    """)
    if xb16:
        for q in range(4): e(f"buffer_load_dwordx4 v[{RES+4*q}:{RES+4*q+3}], v6, s[16:19], s44 offen offset:{q*1024} sc1")
    else:
        for tt in range(2):
            for t in range(4):
                b = RES + (tt * 4 + t) * 4
                e(f"buffer_load_dwordx4 v[{b}:{b+3}], v6, s[16:19], {'s44' if tt == 0 else 's59'} offen offset:{t*1024} sc1")
    for tt in range(2):
        for tp in range(2):
            q = tt*2+tp
            a0 = accb2(tt, 2*tp); a1 = accb2(tt, 2*tp+1); d = 16 + q*4
            if xb16:
                e("s_waitcnt vmcnt(3)")
                for w_ in range(4):
                    a = a0 + 2*w_; r = RES + 4*q + w_; t_ = RES + 16 + 2*w_
                    e(f"v_lshlrev_b32 v{t_}, 16, v{r}\nv_and_b32 v{t_+1}, 0xffff0000, v{r}\nv_pk_add_f32 v[{a}:{a+1}], v[{a}:{a+1}], v[{t_}:{t_+1}]")
            else:
                e(f"s_waitcnt vmcnt({6 - q})")
                r0 = RES + (tt*4 + 2*tp)*4; r1 = r0 + 4
                for (a, r) in ((a0, r0), (a1, r1)):
                    e(f"v_pk_add_f32 v[{a}:{a+1}], v[{a}:{a+1}], v[{r}:{r+1}]\nv_pk_add_f32 v[{a+2}:{a+3}], v[{a+2}:{a+3}], v[{r+2}:{r+3}]")
            e(f"v_cvt_pk_bf16_f32 v{d}, v{a0}, v{a0+1}\nv_cvt_pk_bf16_f32 v{d+1}, v{a0+2}, v{a0+3}\nv_cvt_pk_bf16_f32 v{d+2}, v{a1}, v{a1+1}\nv_cvt_pk_bf16_f32 v{d+3}, v{a1+2}, v{a1+3}")
            e("s_nop 1")
            e(f"v_permlane16_swap_b32 v{d}, v{d+2}\nv_permlane16_swap_b32 v{d+1}, v{d+3}")
            e(f"buffer_store_dwordx4 v[{d}:{d+3}], v3, s[88:91], {'s41' if tt==0 else 's42'} offen offset:{tp*64}")
    if timing:
        e("s_waitcnt vmcnt(0)")
        stamp(e, 7, 4)
        e("s_waitcnt lgkmcnt(0)\ns_mov_b32 s88, s32\ns_mov_b32 s90, s34")
        timing_store(e, "s[16:19]", 8, 60, 1)
        e(f"""
        s_cmp_lg_u32 s2, {dw}
        s_cbranch_scc1 L_g12_end
        s_cmp_lg_u32 s3, 0
        s_cbranch_scc1 L_g12_end
        s_waitcnt vmcnt(0)
        v_lshlrev_b32 v4, 10, v0
        v_add_u32 v4, {WS_TM + 4*dw}, v4
        buffer_load_dword v5, v4, s[16:19], 0 offen sc1
        v_add_u32 v4, 0x10000, v4
        buffer_load_dword v6, v4, s[16:19], 0 offen sc1
        s_waitcnt vmcnt(0)
        v_readlane_b32 s41, v5, 10
        v_readlane_b32 s42, v6, 14
        s_sub_u32 s41, s42, s41
        v_lshlrev_b32 v7, 2, v0
        v_subrev_u32 v8, 16, v7
        v_cmp_le_u32 vcc, 4, v0
        v_mov_b32 v9, 0x1000
        s_nop 1
        v_cndmask_b32 v8, v9, v8, vcc
        v_cmp_gt_u32 vcc, 10, v0
        s_nop 1
        v_cndmask_b32 v8, v9, v8, vcc
        buffer_store_dword v5, v8, s[48:51], 0 offen
        v_add_u32 v8, 4, v7
        v_cmp_le_u32 vcc, 6, v0
        s_nop 1
        v_cndmask_b32 v8, v9, v8, vcc
        v_cmp_gt_u32 vcc, 14, v0
        s_nop 1
        v_cndmask_b32 v8, v9, v8, vcc
        buffer_store_dword v6, v8, s[48:51], 0 offen
        v_mov_b32 v5, s41
        v_mov_b32 v8, 24
        buffer_store_dword v5, v8, s[48:51], 0 offen
        """)
    e("L_g12_end:\ns_endpgm")
    if rollx:
        mid, nl = roll(e, segs, "L_g1_loop")
        print("; g1 loops", nl)
        txt = e.text(0, segs[0][0]) + mid + e.text(segs[-1][1])
    else: txt = e.text()
    return kstart(name) + txt, kdesc(name, 512, 102, 256), f"; @launch kernel={name} grid=(256,1,1) block=(256,1,1) lds={LDS_G12}\n"
```

```python
from common import *
CPS = 4160
XR = 8 * CPS
CH = XR + 4608 + 64
CSL = 4 * CH
CNT = CSL + 8192
LDS_K1 = CNT + 64
VK = 16
VV = 38
VX = 54
VS = 70
VU = 86
VKV = 130
VC = 162
VW = 86
VCA = 226
VSEL = 234
VT = 242
VF = 130
FR = 8
FD = 6
ACC = 86
def gfr(q, r): b = 4 * (q * 8 + r); return f"a[{b}:{b+3}]"
def ffr(m): b = VF + 4 * (m % FR); return f"v[{b}:{b+3}]"
def acc(j): b = ACC + 4 * j; return f"v[{b}:{b+3}]"

class Col:
    def __init__(self): self.l = []
    def __call__(self, t):
        for l in t.strip("\n").split("\n"):
            if l.strip(): self.l.append(l.strip())

def body(e, timing=False, st_flags="", nox=False, wpf=1, cpf=1, code_end='L_g12_end', xl="", x0=4, xd=8, TS=64, fl1=30, slp=0, st0=240, kwd=1):
    nocs = True
    VWT = 162
    VW = 186
    e(f"""
    s_load_dwordx8 s[24:31], s[0:1], 0
    s_load_dwordx4 s[32:35], s[0:1], 32
    s_load_dwordx4 s[36:39], s[0:1], {KA['w1']}
    s_load_dwordx4 s[44:47], s[0:1], {KA['dbg']}
    """)
    if timing: stamp(e, 0, TS)
    e(f"""
    v_lshrrev_b32 v1, 6, v0
    v_and_b32 v0, 63, v0
    s_and_b32 s40, s2, 7
    v_readfirstlane_b32 s3, v1
    s_lshl_b32 s40, s40, 5
    s_lshr_b32 s41, s2, 3
    s_add_u32 s40, s40, s41
    s_lshl_b32 s41, s40, 3
    s_lshr_b32 s50, s40, 4
    s_and_b32 s51, s40, 15
    s_lshl_b32 s52, s51, 2
    s_add_u32 s52, s52, s3
    s_lshl_b32 s52, s52, 16
    s_lshl_b32 s53, s50, 7
    s_add_u32 s52, s52, s53
    v_lshrrev_b32 v5, 4, v0
    v_and_b32 v6, 15, v0
    v_lshlrev_b32 v2, 14, v5
    v_lshl_add_u32 v2, v6, 3, v2
    v_add_u32 v2, s52, v2
    v_subrev_u32 v3, {3*2048}, v2
    v_cmp_gt_u32 vcc, 2048, v2
    v_mov_b32 v8, 0x80000000
    s_lshl_b32 s53, s50, 9
    v_cndmask_b32 v3, v3, v8, vcc
    v_lshl_add_u32 v7, v6, 5, s53
    v_lshlrev_b32 v4, 4, v0
    v_mov_b32 v{VT}, 0
    v_mov_b32 v{VT+1}, 0
    v_mov_b32 v{VT+2}, 0
    v_mov_b32 v{VT+3}, 0
    s_mul_i32 s62, s3, {CH}
    s_mov_b32 s48, 4096
    s_mov_b32 s49, 8192
    s_mov_b32 s60, 12288
    s_lshl_b32 s43, s2, 9
    s_lshl_b32 s63, s3, 7
    s_add_u32 s43, s43, s63
    s_add_u32 s43, s43, {WS_FL}
    s_waitcnt lgkmcnt(0)
    s_add_u32 s100, s46, {WS_EP}
    s_addc_u32 s101, s47, 0
    s_load_dword s42, s[100:101], 0
    {srd(20, 46, WS_SIZE)}
    {srd(8, 26, 4194304)}
    s_mov_b64 exec, 0xff
    """)
    e.vmem(f"buffer_store_dwordx4 v[{VT}:{VT+3}], v4, s[20:23], s43 offen sc1", "Z")
    e("s_mov_b64 exec, -1")
    so = ["0", "s48", "s49", "s60"]
    for j in range(3): e.vmem(f"buffer_load_dwordx2 v[{VK+2*j}:{VK+1+2*j}], v3, s[8:11], {so[j//2]} offen offset:{(j%2)*2048}", "K")
    for j in range(8): e.vmem(f"buffer_load_dwordx2 v[{VK+6+2*j}:{VK+7+2*j}], v2, s[8:11], {so[j//2]} offen offset:{(j%2)*2048}", "K")
    e(srd(4, 30, 8192))
    for i in range(2): e.vmem(f"buffer_load_dwordx4 v[{VWT+4*i}:{VWT+4*i+3}], v7, s[4:7], 0 offen offset:{16*i}", "K")
    e(srd(12, 28, 4194304))
    for j in range(8): e.vmem(f"buffer_load_dwordx2 v[{VV+2*j}:{VV+1+2*j}], v2, s[12:15], {so[j//2]} offen offset:{(j%2)*2048}", "V")
    e(f"""
    {srd(16, 32, 4194304)}
    s_lshl_b32 s61, s40, 2
    s_add_u32 s61, s61, s3
    s_lshl_b32 s61, s61, 12
    v_add_u32 v6, s61, v4
    v_subrev_u32 v7, 16, v6
    v_cmp_eq_u32 vcc, 0, v0
    s_add_u32 s34, s34, s41
    s_addc_u32 s35, s35, 0
    v_cndmask_b32 v8, v7, v8, vcc
    s_load_dwordx2 s[54:55], s[34:35], 0
    """)
    def kwl(a_, b_, c_):
        for c in range(4):
            e.vmem(f"buffer_load_dwordx4 v[{VW+8*c}:{VW+8*c+3}], {a_ if c == 0 else b_}, s[16:19], 0 offen offset:{1024*c}", ("KW", c))
            e.vmem(f"buffer_load_dwordx4 v[{VW+8*c+4}:{VW+8*c+7}], {c_}, s[16:19], 0 offen offset:{1024*c}", ("KW", c))
    if not kwd: kwl("v8", "v7", "v6")
    else: e("v_mov_b32 v252, v8\nv_mov_b32 v253, v7\nv_mov_b32 v254, v6")
    if cpf: e(f"""
    s_cmp_ge_u32 s2, 24
    s_cbranch_scc1 L_k1_nocpf
    s_getpc_b64 s[52:53]
    L_k1_pc:
    s_lshr_b32 s56, s2, 3
    s_lshl_b32 s56, s56, 2
    s_add_u32 s56, s56, s3
    s_lshl_b32 s56, s56, 13
    v_lshlrev_b32 v250, 7, v0
    v_add_u32 v250, s56, v250
    v_min_u32 v250, {code_end} - L_k1_pc, v250
    v_mov_b32 v251, s53
    v_add_co_u32 v250, vcc, s52, v250
    v_addc_co_u32 v251, vcc, 0, v251, vcc
    global_load_dword v255, v[250:251], off
    L_k1_nocpf:
    """)
    e(f"""
    v_add_u32 v9, s62, v4
    v_mul_u32_u24 v10, {CPS}, v0
    v_add_u32 v10, s62, v10
    s_mov_b32 exec_hi, 0
    ds_write_b128 v9, v[{VT}:{VT+3}] offset:{XR+4096}
    s_mov_b32 exec_lo, 0xff
    ds_write_b128 v10, v[{VT}:{VT+3}]
    s_lshl_b32 s52, s2, 7
    s_add_u32 s52, s52, {WS_CS}
    s_cmp_eq_u32 s3, 1
    s_cselect_b32 s52, s52, 0x80000000
    """)
    e.vmem(f"buffer_store_dwordx4 v[{VT}:{VT+3}], v4, s[20:23], s52 offen sc1", "Z2")
    e(f"""
    s_mov_b32 exec_lo, 15
    s_lshl_b32 s52, s2, 6
    s_add_u32 s52, s52, {WS_ST2}
    s_cmp_eq_u32 s3, 0
    s_cselect_b32 s52, s52, 0x80000000
    """)
    e.vmem(f"buffer_store_dwordx4 v[{VT}:{VT+3}], v4, s[20:23], s52 offen sc1", "Z2")
    e(f"""
    s_mov_b64 exec, -1
    {srd(4, 24, 4194304)}
    """)
    e(f"""
    s_mov_b32 s56, s36
    s_mov_b32 s57, s37
    s_mov_b32 s58, s38
    s_mov_b32 s59, s39
    s_waitcnt lgkmcnt(0)
    s_mul_i32 s44, s42, 0x9E3779B1
    s_add_u32 s44, s44, 0x7F4A7C15
    s_or_b32 s44, s44, 1
    s_add_u32 s45, s42, 1
    v_mov_b32 v14, s44
    v_mov_b32 v15, 0
    s_cmp_ge_u32 s3, 2
    s_cselect_b32 s48, s55, s54
    s_bitcmp1_b32 s3, 0
    s_cselect_b32 s49, 0, 16
    s_lshl_b32 s48, s48, s49
    s_and_b32 s48, s48, 0xffff0000
    """)
    e(f"""
    v_and_b32 v6, 15, v0
    v_lshrrev_b32 v7, 2, v6
    v_mul_u32_u24 v8, {CH}, v7
    v_and_b32 v7, 3, v6
    v_lshl_add_u32 v8, v7, 10, v8
    s_lshl_b32 s49, s3, 2
    s_sub_u32 s49, 15, s49
    v_sub_u32 v5, s49, v5
    v_xor_b32 v5, v5, v7
    v_lshl_add_u32 v8, v5, 4, v8
    v_add_u32 v8, {XR}, v8
    v_lshrrev_b32 v5, 4, v0
    v_lshlrev_b32 v7, 8, v5
    v_lshl_add_u32 v7, v6, 4, v7
    s_add_u32 s49, s62, {XR}
    v_add_u32 v7, s49, v7
    v_lshlrev_b32 v5, 12, v5
    v_lshl_add_u32 v5, v6, 4, v5
    s_lshl_b32 s49, s50, 2
    s_add_u32 s49, s49, s3
    s_lshl_b32 s49, s49, 16
    s_sub_u32 s53, 15, s51
    s_lshl_b32 s53, s53, 8
    s_add_u32 s49, s49, s53
    s_add_u32 s49, s49, {WS_KVT}
    """)
    e(f"s_waitcnt vmcnt({e.need(['K'])})")
    if timing: stamp(e, 1, TS)
    if kwd: kwl("v252", "v253", "v254")
    WV = VWT + 8
    for j in range(4):
        for c in range(4):
            src = VWT + 2*c + (j >> 1); d = WV + 4*j + c
            e(f"v_lshlrev_b32 v{d}, 16, v{src}" if j % 2 == 0 else f"v_and_b32 v{d}, 0xffff0000, v{src}")
    for r in range(11):
        for d in range(2):
            e(f"v_lshlrev_b32 v{VU+4*r+2*d}, 16, v{VK+2*r+d}\nv_and_b32 v{VU+4*r+2*d+1}, 0xffff0000, v{VK+2*r+d}")
    for i in range(8):
        for j in range(4):
            for cp in range(2):
                o = VKV + 4*i + 2*cp
                kr = VU + 4*(i + 3 - j) + 2*cp
                w = WV + 4*j + 2*cp
                if j == 0: e(f"v_pk_mul_f32 v[{o}:{o+1}], v[{kr}:{kr+1}], v[{w}:{w+1}]")
                else: e(f"v_pk_fma_f32 v[{o}:{o+1}], v[{kr}:{kr+1}], v[{w}:{w+1}], v[{o}:{o+1}]")
    e(f"s_waitcnt vmcnt({e.need(['V'])})")
    for i in range(8):
        for cp in range(2):
            o = VKV + 4*i + 2*cp; sv = VV + 2*i + cp; t = VK + 2*((2*i+cp) % 8)
            e(f"v_lshlrev_b32 v{t}, 16, v{sv}\nv_and_b32 v{t+1}, 0xffff0000, v{sv}\nv_pk_mul_f32 v[{o}:{o+1}], v[{o}:{o+1}], v[{t}:{t+1}]")
    for c in range(4):
        b = VV + 4*c
        for d in range(4):
            e(f"v_cvt_pk_bf16_f32 v{b+d}, v{VKV+4*(7-2*d)+c}, v{VKV+4*(6-2*d)+c}")
        e(f"ds_write_b128 v8, v[{b}:{b+3}] offset:{c*256}")
    for i in range(1, 4): e(f"v_xor_b32 v{10+i}, {16*i}, v7")
    e(f"s_waitcnt lgkmcnt(0)\ns_barrier")
    for i in range(4): e(f"ds_read_b128 v[{VV+4*i}:{VV+4*i+3}], v{7 if i == 0 else 10+i} offset:{1024*i}")
    for i in range(4):
        e(f"s_waitcnt lgkmcnt({3-i})")
        e.vmem(f"buffer_store_dwordx4 v[{VV+4*i}:{VV+4*i+3}], v5, s[20:23], s49 offen sc1", "KS")
        if i < 3: e("s_add_u32 s49, s49, 16384")
    if timing: stamp(e, 2, TS)
    e(f"""
    s_lshl_b32 s53, s2, 14
    s_lshl_b32 s49, s3, 12
    s_add_u32 s53, s53, s49
    v_add_u32 v5, s53, v4
    """)
    for i in range(4):
        e.vmem(f"buffer_load_dwordx4 v[{VS+4*i}:{VS+4*i+3}], v5, s[4:7], 0 offen offset:{i*1024}", "SL")
    c_ = Col()
    nt = 0
    for c in range(4):
        W = VW + 8*c
        c_(f"@W{c}")
        for s in range(8):
            sh = s + 1
            off = s*CPS + 16 + 1024*c
            if sh % 4 == 0:
                b = W + sh // 2
                c_(f"ds_write_b128 v9, v[{b}:{b+3}] offset:{off}")
            else:
                t = VW + 32 + 4 * (nt % 6); nt += 1
                for d in range(4):
                    if sh % 2 == 0: c_(f"v_mov_b32 v{t+d}, v{W + sh//2 + d}")
                    else: c_(f"v_alignbit_b32 v{t+d}, v{W + sh//2 + d + 1}, v{W + sh//2 + d}, 16")
                c_(f"ds_write_b128 v9, v[{t}:{t+3}] offset:{off}")
    for n_, l in enumerate(c_.l):
        if n_ == fl1:
            e(f"s_waitcnt vmcnt({e.need(['KS', 'Z2'])})\ns_mov_b64 exec, 1")
            e.vmem("buffer_store_dword v14, v15, s[20:23], s43 offen offset:96 sc1", "KF")
            e("s_mov_b64 exec, -1")
            if timing: stamp(e, 3, TS)
        if l.startswith("@W"): e(f"s_waitcnt vmcnt({e.need([('KW', int(l[2:]))])})")
        else: e(l)
    e(f"""
    s_lshl_b32 s53, s50, 4
    v_and_b32 v10, 15, v0
    v_add_u32 v10, s53, v10
    v_and_b32 v11, 31, v10
    v_lshrrev_b32 v10, 5, v10
    v_lshl_add_u32 v10, v11, 3, v10
    v_lshlrev_b32 v10, 9, v10
    s_lshr_b32 s53, s51, 2
    s_lshl_b32 s53, s53, 7
    s_add_u32 s53, s53, {WS_FL + 96}
    s_mov_b32 s49, 0
    buffer_load_dword v13, v10, s[20:23], s53 offen sc1
    """)
    if timing: stamp(e, 4, TS)
    T = VT
    e(f"s_waitcnt vmcnt({e.need(['SL']) + 1})\ns_mov_b32 s63, 0x3f803f80\nv_mov_b32 v{T}, 0\nv_mov_b32 v{T+1}, 0\nv_mov_b32 v{T+2}, 0\nv_mov_b32 v{T+3}, 0\nv_mov_b32 v{T+4}, s63")
    for i in range(8):
        for r in range(2):
            x = VS + 8*r + i
            e(f"v_dot2_f32_bf16 v{T+2*r}, v{x}, v{T+4}, v{T+2*r}\nv_dot2_f32_bf16 v{T+1+2*r}, v{x}, v{x}, v{T+1+2*r}")
    e(f"""
    s_add_u32 m0, s62, {XR}
    s_add_u32 s61, s61, {WS_KVT}
    s_branch L_k1_p2c
    L_k1_p2:
    {f"s_sleep {slp}" if slp else ""}
    buffer_load_dword v13, v10, s[20:23], s53 offen sc1
    L_k1_p2c:
    s_waitcnt vmcnt(0)
    v_cmp_eq_u32 vcc, s44, v13
    s_cmp_eq_u64 vcc, -1
    s_cbranch_scc1 L_k1_p3
    s_add_u32 s49, s49, 1
    s_cmp_gt_u32 s49, {POLL_MAX}
    s_cbranch_scc0 L_k1_p2
    L_k1_p3:
    """)
    if timing: stamp(e, 5, TS)
    e.vm = []
    for i in range(4): e.vmem(f"buffer_load_dwordx4 v4, s[20:23], s61 offen offset:{1024*i} sc1 lds", "KD")
    for op in ["row_shr:1", "row_shr:2", "row_shr:4", "row_shr:8"]:
        for r in range(4): e(f"v_add_f32_dpp v{T+r}, v{T+r}, v{T+r} {op} row_mask:0xf bank_mask:0xf bound_ctrl:0")
    for op, m in [("row_bcast:15", "0xa"), ("row_bcast:31", "0xc")]:
        for r in range(4): e(f"v_add_f32_dpp v{T+r}, v{T+r}, v{T+r} {op} row_mask:{m} bank_mask:0xf")
    e(f"""
    s_mov_b32 s63, 0x3a800000
    v_mul_f32 v{T}, s63, v{T}
    v_mul_f32 v{T+2}, s63, v{T+2}
    v_mul_f32 v{T+1}, s63, v{T+1}
    v_mul_f32 v{T+3}, s63, v{T+3}
    v_fma_f32 v{T+1}, -v{T}, v{T}, v{T+1}
    v_fma_f32 v{T+3}, -v{T+2}, v{T+2}, v{T+3}
    v_max_f32 v{T+1}, 0, v{T+1}
    v_max_f32 v{T+3}, 0, v{T+3}
    v_add_f32 v{T+1}, 0x3727c5ac, v{T+1}
    v_add_f32 v{T+3}, 0x3727c5ac, v{T+3}
    v_rsq_f32 v{T+1}, v{T+1}
    v_rsq_f32 v{T+3}, v{T+3}
    s_lshl_b32 s63, s2, 7
    s_lshl_b32 s49, s3, 5
    s_add_u32 s63, s63, s49
    s_add_u32 s63, s63, {WS_ST1}
    v_mov_b32 v{T+4}, v{T+2}
    v_mov_b32 v{T+5}, v{T+3}
    v_mov_b32 v{T+2}, s44
    v_mov_b32 v{T+6}, s44
    s_mov_b32 exec_lo, 0
    s_mov_b32 exec_hi, 0x80000000
    """)
    e.vmem(f"buffer_store_dwordx4 v[{T}:{T+3}], v15, s[20:23], s63 offen sc1", "SS")
    e.vmem(f"buffer_store_dwordx4 v[{T+4}:{T+7}], v15, s[20:23], s63 offen offset:16 sc1", "SS")
    e(f"""
    s_mov_b64 exec, -1
    s_lshr_b32 s49, s2, 3
    s_cmp_ge_u32 s49, 16
    s_cselect_b32 s16, s58, s56
    s_cselect_b32 s17, s59, s57
    s_and_b32 s17, s17, 0xffff
    s_mov_b32 s18, {1024*7168}
    s_mov_b32 s19, 0x00020000
    v_cmp_gt_u32 vcc, 56, v0
    v_mov_b32 v9, 0x80000000
    v_mul_u32_u24 v252, 9363, v0
    v_lshrrev_b32 v252, 16, v252
    v_mul_u32_u24 v252, {7168 - 896}, v252
    v_lshl_add_u32 v254, v0, 7, v252
    v_cndmask_b32 v254, v9, v254, vcc
    s_and_b32 s49, s49, 15
    s_lshl_b32 s49, s49, 2
    s_add_u32 s49, s49, s3
    s_mul_i32 s61, s49, {8*7168}
    s_and_b32 s49, s2, 7
    s_mul_i32 s49, s49, 896
    s_add_u32 s61, s61, s49
    v_and_b32 v12, 7, v0
    v_mul_u32_u24 v10, {CPS}, v12
    v_bfe_u32 v12, v0, 3, 1
    v_lshrrev_b32 v13, 4, v0
    v_add_u32 v12, v12, v13
    v_lshl_add_u32 v10, v12, 4, v10
    v_add_u32 v10, s62, v10
    v_and_b32 v12, 15, v0
    v_lshlrev_b32 v12, 5, v12
    v_lshlrev_b32 v13, 4, v13
    v_sub_u32 v11, v13, v12
    s_add_u32 s52, s62, {XR + 4064 - 3584}
    v_add_u32 v11, s52, v11
    v_lshrrev_b32 v13, 1, v13
    v_add_u32 v12, v12, v13
    s_add_u32 s52, s62, {XR + 4088 - 3584}
    v_sub_u32 v12, s52, v12
    v_xor_b32 v3, 15, v0
    v_lshlrev_b32 v3, 11, v3
    s_lshl_b32 s42, s3, 20
    s_add_u32 s42, s42, s41
    v_add_u32 v3, s42, v3
    """)
    e(f"s_waitcnt vmcnt({e.need(['KD'])}) lgkmcnt(0)")
    if timing: stamp(e, 6, TS)
    lds = []
    def fread(m): e(f"ds_read_b128 {ffr(m)}, v10 offset:{64*m}"); lds.append(f"F{m}")
    def gread(q, r): e(f"ds_read_b128 {gfr(q,r)}, v11 offset:{512*(7-q) + 64*r}"); lds.append(f"G{r}")
    def lwait(tags):
        nonlocal lds
        need_ = [i_ for i_, t_ in enumerate(lds) if t_ in tags]
        if need_:
            e(f"s_waitcnt lgkmcnt({min(len(lds) - 1 - max(need_), 15)})")
            lds = lds[max(need_)+1:]
    fread(0)
    for q in range(8): gread(q, 0)
    fread(1)
    e(f"""
    s_mov_b32 s49, 0
    v_xor_b32 v5, 15, v0
    v_lshlrev_b32 v5, 4, v5
    s_lshl_b32 s50, s3, 13
    s_add_u32 s50, s50, {WS_ST1}
    s_add_u32 s51, s50, 4096
    """)
    VR = 162
    def stl(i): return f"buffer_load_dwordx3 v[{VR+4*i}:{VR+4*i+2}], v5, s[20:23], {'s50' if i < 4 else 's51'} offen offset:{1024*(i%4)} sc1"
    nextF = 2
    sched = {}
    if not nox:
        for n in range(32): sched.setdefault(x0 + xd*n, []).append(("X", n))
    if wpf: sched.setdefault(100, []).append(("WPF",))
    for i in range(8): sched.setdefault(st0 + 3*i, []).append(("ST", i))
    ep1 = []
    def ep1_ops(j):
        a = ACC + 4*j; kk = VK + 2*j; t = VV + 4*(j % 4)
        ops = [lambda: lwait([f"Y{j}"])]
        ops += [f"v_and_b32 v{t}, 0xffff0000, v{kk+1}", f"v_lshlrev_b32 v{t+1}, 16, v{kk+1}", f"v_and_b32 v{t+2}, 0xffff0000, v{kk}", f"v_lshlrev_b32 v{t+3}, 16, v{kk}"]
        ops += [f"v_fma_f32 v{a+i}, s48, v{t+i}, v{a+i}" for i in range(4)]
        ops += [f"v_cvt_pk_bf16_f32 v{kk}, v{a+3}, v{a+2}", f"v_cvt_pk_bf16_f32 v{kk+1}, v{a+1}, v{a}"]
        def wr(): e(f"ds_write_b64 v12, v[{kk}:{kk+1}] offset:{512*(7-j)}"); lds.append("W")
        ops.append(wr)
        return ops
    nm = 0
    xi = 0
    for m in range(64):
        p, r = m // 8, m % 8
        lwait([f"F{m}", f"G{m}"])
        fills = []
        if p == 0 and r < 7: fills += [("G", q, r + 1) for q in range(8)]
        lim = m + 2 if p == 0 and r < 6 else m + FD
        while nextF <= lim and nextF < 64 and len([f for f in fills if f[0] == "F"]) < 2:
            fills.append(("F", nextF)); nextF += 1
        if p == 1: fills.append(("Y", r))
        if r == 3 and p >= 2: ep1 += ep1_ops(p - 2)
        if m == 62: ep1 += ep1_ops(6)
        nq = 8 - p
        for q in range(nq):
            j = p + q
            c = "0" if m == 0 else acc(j)
            e(f"v_mfma_f32_16x16x32_bf16 {acc(j)}, {ffr(m)}, {gfr(q,r)}, {c}")
            nm += 1
            take = fills[:2] if p == 0 else fills[:1]
            if q == nq - 1: take = fills
            fills = fills[len(take):]
            for f in take:
                if f[0] == "G": gread(f[1], f[2])
                elif f[0] == "F": fread(f[1])
                else:
                    e(f"ds_read_b64 v[{VK+2*f[1]}:{VK+2*f[1]+1}], v12 offset:{512*(7-f[1])}"); lds.append(f"Y{f[1]}")
            for s_ in sched.get(nm, []):
                if s_[0] == "X":
                    n = s_[1]; i = n >> 2
                    e(f"s_cmp_lg_u32 s3, {n & 3}\ns_cbranch_scc1 L_k1_x{n}")
                    l = f"buffer_load_dwordx2 v[{VX+2*i}:{VX+2*i+1}], v3, s[4:7], s49 offen {xl}"
                    if n & 3 == 0: e.vmem(l, "X")
                    else: e(l)
                    e(f"L_k1_x{n}:")
                    if n & 3 == 3: e(f"s_add_u32 s49, s49, {64*2048}")
                elif s_[0] == "WPF": e.vmem(f"buffer_load_dword v255, v254, s[16:19], s61 offen", "WPF")
                elif s_[0] == "ST":
                    i = s_[1]
                    e.vmem(stl(i), "ST")
            for _ in range(1 if p < 6 else 2):
                if ep1 and not take:
                    x = ep1.pop(0)
                    if callable(x): x()
                    else: e(x)
    if timing: stamp(e, 7, TS)
    e(f"""
    v_bfe_u32 v14, v0, 2, 2
    v_mul_u32_u24 v14, {CH}, v14
    v_lshrrev_b32 v15, 4, v0
    v_lshlrev_b32 v15, 5, v15
    v_sub_u32 v14, v14, v15
    v_and_b32 v15, 3, v0
    v_lshl_add_u32 v14, v15, 3, v14
    s_lshl_b32 s52, s3, 10
    s_sub_u32 s52, {XR + 4064 - 896}, s52
    v_add_u32 v14, s52, v14
    v_lshrrev_b32 v15, 5, v0
    v_lshlrev_b32 v15, 16, v15
    v_xor_b32 v9, 15, v0
    v_and_b32 v9, 31, v9
    v_lshl_add_u32 v15, v9, 4, v15
    """)
    if not nocs:
        e(f"""
        s_lshl_b32 s53, s3, 11
        s_add_u32 s53, s53, {CSL}
        v_lshlrev_b32 v9, 5, v0
        v_add_u32 v9, s53, v9
        ds_write_b128 v9, v[{VCA}:{VCA+3}]
        ds_write_b128 v9, v[{VCA+4}:{VCA+7}] offset:16
        """)
        lds += ["W", "W"]
    for x in ep1 + ep1_ops(7):
        if callable(x): x()
        else: e(x)
    e(f"""
    s_lshl_b32 s52, s3, 20
    s_lshr_b32 s53, s40, 2
    s_lshl_b32 s53, s53, 10
    s_add_u32 s52, s52, s53
    s_and_b32 s53, s40, 1
    s_lshl_b32 s53, s53, 9
    s_add_u32 s52, s52, s53
    s_and_b32 s53, s40, 2
    s_lshl_b32 s53, s53, 2
    s_add_u32 s52, s52, s53
    s_lshl_b32 s53, s3, 9
    v_lshlrev_b32 v9, 3, v0
    v_add_u32 v9, s53, v9
    v_add_u32 v8, {CSL}, v9
    s_waitcnt lgkmcnt(0)
    s_barrier
    """)
    for i in range(8): e(f"ds_read_b64_tr_b16 v[{VK+2*i}:{VK+2*i+1}], v14 offset:{128*(7-i)}")
    if not nocs:
        for i in range(4): e(f"ds_read_b64 v[{VC+2*i}:{VC+2*i+1}], v8 offset:{2048*i}")
    e("s_mov_b32 s53, 0\nL_k1_stc:\ns_waitcnt vmcnt(0)")
    e(f"v_xor_b32 v13, s44, v{VR+2}")
    for i in range(1, 8): e(f"v_xor_b32 v12, s44, v{VR+4*i+2}\nv_or_b32 v13, v13, v12")
    e(f"""
    v_cmp_eq_u32 vcc, 0, v13
    s_cmp_eq_u64 vcc, -1
    s_cbranch_scc1 L_k1_stok
    s_add_u32 s53, s53, 1
    s_cmp_gt_u32 s53, {POLL_MAX}
    s_cbranch_scc1 L_k1_stok
    """)
    for i in range(8): e(stl(i))
    e(f"""
    s_branch L_k1_stc
    L_k1_stok:
    s_waitcnt lgkmcnt(0)
    """)
    for i in range(8):
        x = VX + 2*i; y = VK + 2*i; st = VR + 4*i; t = VU + 12*(i % 2)
        e(f"""
        v_lshlrev_b32 v{t}, 16, v{x}
        v_and_b32 v{t+1}, 0xffff0000, v{x}
        v_lshlrev_b32 v{t+2}, 16, v{x+1}
        v_and_b32 v{t+3}, 0xffff0000, v{x+1}
        v_mul_f32 v{st}, v{st}, v{st+1}
        v_lshlrev_b32 v{t+4}, 16, v{y}
        v_and_b32 v{t+5}, 0xffff0000, v{y}
        v_lshlrev_b32 v{t+6}, 16, v{y+1}
        v_and_b32 v{t+7}, 0xffff0000, v{y+1}
        v_pk_fma_f32 v[{t+8}:{t+9}], v[{t}:{t+1}], v[{st}:{st+1}], v[{st}:{st+1}] op_sel:[0,1,0] op_sel_hi:[1,1,0] neg_lo:[0,0,1] neg_hi:[0,0,1]
        v_pk_fma_f32 v[{t+10}:{t+11}], v[{t+2}:{t+3}], v[{st}:{st+1}], v[{st}:{st+1}] op_sel:[0,1,0] op_sel_hi:[1,1,0] neg_lo:[0,0,1] neg_hi:[0,0,1]
        v_pk_fma_f32 v[{t}:{t+1}], v[{t+8}:{t+9}], v[{t+4}:{t+5}], v[{t}:{t+1}]
        v_pk_fma_f32 v[{t+2}:{t+3}], v[{t+10}:{t+11}], v[{t+6}:{t+7}], v[{t+2}:{t+3}]
        v_cvt_pk_bf16_f32 v{x}, v{t}, v{t+1}
        v_cvt_pk_bf16_f32 v{x+1}, v{t+2}, v{t+3}
        buffer_store_dwordx2 v[{x}:{x+1}], v15, s[20:23], s52 offen {st_flags}
        s_add_u32 s52, s52, {2*65536}
        """)
    e(f"""
    s_cmp_lg_u32 s2, 0
    s_cbranch_scc1 L_k1_nobump
    s_barrier
    s_cmp_lg_u32 s3, 0
    s_cbranch_scc1 L_k1_nobump
    v_mov_b32 v12, s45
    v_mov_b32 v13, {WS_EP}
    s_mov_b64 exec, 1
    buffer_store_dword v12, v13, s[20:23], 0 offen sc1
    s_mov_b64 exec, -1
    L_k1_nobump:
    """)
    if not nocs: e(f"""
    s_waitcnt lgkmcnt(0)
    v_pk_add_f32 v[{VC}:{VC+1}], v[{VC}:{VC+1}], v[{VC+2}:{VC+3}]
    v_pk_add_f32 v[{VC+4}:{VC+5}], v[{VC+4}:{VC+5}], v[{VC+6}:{VC+7}]
    v_cmp_gt_u32 vcc, 1792, v9
    v_mov_b32 v8, 0x80000000
    v_pk_add_f32 v[{VC}:{VC+1}], v[{VC}:{VC+1}], v[{VC+4}:{VC+5}]
    v_cndmask_b32 v9, v8, v9, vcc
    s_lshr_b32 s52, s2, 3
    s_and_b32 s53, s52, 15
    s_mul_i32 s53, s53, {7168*4}
    s_lshr_b32 s52, s52, 4
    s_mul_i32 s52, s52, {3584*4}
    s_add_u32 s52, s52, s53
    s_and_b32 s53, s2, 7
    s_mul_i32 s53, s53, 1792
    s_add_u32 s52, s52, s53
    s_add_u32 s52, s52, {WS_CSP}
    buffer_store_dwordx2 v[{VC}:{VC+1}], v9, s[20:23], s52 offen {st_flags}
    """)

def gen(name="k1_kernel", timing=False, **kw):
    e = Em()
    e("s_cmp_ge_u32 s2, 256\ns_cbranch_scc1 L_k1_end")
    body(e, timing, **kw)
    if timing:
        e("s_waitcnt vmcnt(0)")
        stamp(e, 8, 64)
        timing_store(e, "s[20:23]", 9, 64)
    e("L_k1_end:\ns_endpgm")
    return kstart(name) + e.text(), kdesc(name, 512, 102, 256), f"; @launch kernel={name} grid=(256,1,1) block=(256,1,1) lds={LDS_K1}\n"

if __name__ == "__main__":
    import sys
    kw = dict(a.split("=") for a in sys.argv[2:])
    kw = {k: (v if k in ("st_flags","pfl","csl","xl","sll","xpfl") else int(v)) for k, v in kw.items()}
    code, desc, launch = gen(**kw)
    open(sys.argv[1], "w").write(launch + HEADER + code + RODATA + desc)
```

```python
from ag import *
WS_HF   = 0x0000000
WS_HHF  = 0x0400000
WS_KVT  = 0x1200000
WS_XT   = 0x1600000
WS_ST1  = 0x1A00000
WS_ST2  = 0x1A10000
WS_CS   = 0x1A20000
WS_CSP  = 0x1A30000
WS_FL   = 0x1AC0000
WS_EP   = 0x1AB0000
WS_XB   = 0x1C00000
WS_TM   = 0x1B00000
WS_SIZE = 268435456

class Em:
    def __init__(self):
        self.lines = []
        self.strict = True
        self.vm = []
    def __call__(self, s):
        for l in s.strip("\n").split("\n"):
            l = l.strip()
            if l: self.lines.append(l)
    def vmem(self, s, tag):
        self(s); self.vm.append(tag)
    def need(self, tags):
        last = -1
        for i, t in enumerate(self.vm):
            if t in tags: last = i
        if last < 0:
            if self.strict: raise Exception(f'need: none of {tags} issued')
            return 63
        return min(63, len(self.vm) - 1 - last)
    def mark(self): return len(self.lines)
    def text(self, a=0, b=None): return "\n".join(self.lines[a:b]) + "\n"

def timing_store(e, srd, pts, sbase=60, region=0):
    e("s_waitcnt vmcnt(0) lgkmcnt(0)")
    e(f"s_lshl_b32 s41, s2, 2\ns_add_u32 s41, s41, {WS_TM + region*0x10000}\nv_mov_b32 v7, s41")
    for i in range(1, pts):
        e(f"s_sub_u32 s42, s{sbase+4*i}, s{sbase}\nv_mov_b32 v4, s42\nbuffer_store_dword v4, v7, {srd}, 0 offen\nv_add_u32 v7, 1024, v7")
    for i in range(1, pts):
        e(f"s_sub_u32 s42, s{sbase+4*i+2}, s{sbase+2}\nv_mov_b32 v4, s42\nbuffer_store_dword v4, v7, {srd}, 0 offen\nv_add_u32 v7, 1024, v7")
    e(f"v_mov_b32 v4, s{sbase+2}\nbuffer_store_dword v4, v7, {srd}, 0 offen")
def stamp(e, i, sbase=60):
    e(f"s_memtime s[{sbase+4*i}:{sbase+4*i+1}]\ns_memrealtime s[{sbase+4*i+2}:{sbase+4*i+3}]")

POLL_MAX = 20000
```

```python
from common import *
ROWB = 7168
MATB = 14336
STB  = 2 * MATB
R = 4
NSTEP = 32
ACC0 = 32
def accb(tt, t): return ACC0 + (t * 4 + tt) * 4
def acc(tt, t): b = accb(tt, t); return f"v[{b}:{b+3}]"
CFG = dict(ab=1)
def afr(t, j=None, step=0):
    b = t * 4 + (56 * (step % 2) if CFG["ab"] == 2 else 0)
    return f"a[{b}:{b+3}]" if j is None else f"a[{b+2*j}:{b+2*j+1}]"
def bfr(slot, tt): b = 56 * CFG["ab"] + slot * 16 + tt * 4; return f"a[{b}:{b+3}]"
A_CSR, A_CSA, A_SEL = 208, 240, 248
SK2 = 4
STB2 = SK2 * 8192
R2 = 4
NSTEP2 = 56
NST2 = NSTEP2 // SK2
CS_LDS = R2 * STB2
LDS_G12 = CS_LDS + 8192
def accb2(tt, t): return 32 + (tt * 8 + t) * 4
def acc2(tt, t): b = accb2(tt, t); return f"v[{b}:{b+3}]"
def afr2(buf, t, j=None):
    b = buf * 32 + t * 4
    return f"a[{b}:{b+3}]" if j is None else f"a[{b+2*j}:{b+2*j+1}]"
def bfr2(slot, tt): b = 64 + slot * 8 + tt * 4; return f"a[{b}:{b+3}]"
TB = 96
RES = 112
VD0, VD1 = 28, 29

def k2_blocks(step):
    if step < 48: k = 7 * (step % 16) + 2 * (step // 16); return k, k + 1
    i = 2 * (step - 48); return 7 * i + 6, 7 * (i + 1) + 6

def roll(e, segs, label, ctr="s23"):
    txt = [e.text(a, b) for a, b in segs]
    out = ""; i = 0; nl = 0
    while i < len(txt):
        j = i
        while j + 1 < len(txt) and txt[j+1] == txt[i]: j += 1
        if j > i:
            out += f"s_mov_b32 {ctr}, 0\n{label}{nl}:\n" + txt[i] + f"s_add_u32 {ctr}, {ctr}, 1\ns_cmp_lt_u32 {ctr}, {j-i+1}\ns_cbranch_scc1 {label}{nl}\n"
            nl += 1
        else: out += txt[i]
        i = j + 1
    return out, nl

W2A = {0: """s_lshl_b32 s58, s2, 2
    s_add_u32 s58, s58, s3
    s_mul_i32 s58, s58, 7168""", 1: """s_and_b32 s58, s32, 1
    s_lshl_b32 s58, s58, 5
    s_add_u32 s58, s58, s33
    s_lshl_b32 s58, s58, 2
    s_add_u32 s58, s58, s3
    s_mul_i32 s58, s58, 28672
    s_lshr_b32 s59, s32, 2
    s_lshl_b32 s59, s59, 10
    s_add_u32 s58, s58, s59"""}
def gen(name="g12_kernel", timing=False, ldf="", wf="", w2pf=1, TL=0, nomfma2=False, noload2=False, dw=0, noex=0, rollx=0, nocs=0, ab=2, P=4, RB=5, rot=1, csd=0, t2f='sc1', split=1, noload1=0, g2o=1, w2x=0, w2s=12, nohs=0, nochk=0, w2l=0, xb16=1, noT2=0, noD2=0, noR2=0, pro=1, vrate=12, hse=6, P2=7, RB2=8):
    CFG['ab'] = ab
    assert 56*ab + 16*RB <= 192
    e = Em()
    e.strict = not (noload1 or noload2 or noT2 or noD2 or noex or nohs or nochk or nocs)
    e(f"""
    s_cmp_ge_u32 s2, 256
    s_cbranch_scc1 L_g12_end
    s_load_dwordx4 s[44:47], s[0:1], {KA['dbg']}
    s_load_dwordx4 s[28:31], s[0:1], {KA['w1']}
    s_load_dwordx4 s[92:95], s[0:1], {KA['w2']}
    """)
    if timing: stamp(e, 0)
    e(f"""
    v_lshrrev_b32 v1, 6, v0
    v_and_b32 v0, 63, v0
    s_and_b32 s32, s2, 7
    v_readfirstlane_b32 s3, v1
    s_lshr_b32 s33, s2, 3
    s_and_b32 s34, s33, 7
    s_lshl_b32 s35, s32, 2
    s_lshr_b32 s36, s33, 3
    s_add_u32 s35, s35, s36
    s_lshl_b32 s36, s34, 3
    s_lshl_b32 s37, s3, 1
    s_add_u32 s36, s36, s37
    s_lshl_b32 s37, s36, 16
    s_and_b32 s38, s3, 1
    s_mul_i32 s38, s38, {32*ROWB}
    s_mul_i32 s39, s35, 224
    s_add_u32 s38, s38, s39
    """)
    for i in range(7):
        e(f"""
        v_add_u32 v11, {64*i}, v0
        v_mul_u32_u24 v12, 4682, v11
        v_lshrrev_b32 v12, 16, v12
        v_mul_u32_u24 v13, {ROWB - 224}, v12
        v_lshl_add_u32 v13, v11, 4, v13
        v_add_u32 v{4+i}, s38, v13
        """)
        if i % 4: e(f"v_subrev_u32 v{4+i}, {1024*(i%4)}, v{4+i}")
    e(f"""
    v_lshrrev_b32 v13, 5, v0
    v_lshlrev_b32 v2, 10, v13
    v_bfe_u32 v14, v0, 4, 1
    v_lshlrev_b32 v14, 9, v14
    v_and_b32 v15, 15, v0
    v_lshlrev_b32 v15, 4, v15
    v_add3_u32 v2, v2, v14, v15
    v_add_u32 v2, s37, v2
    v_add_u32 v3, 0x10000, v2
    s_lshr_b32 s40, s3, 1
    s_mul_i32 s40, s40, {MATB}
    s_and_b32 s41, s3, 1
    s_mul_i32 s41, s41, 7168
    s_add_u32 s40, s40, s41
    s_cmp_ge_u32 s3, 2
    s_waitcnt lgkmcnt(0)
    s_cselect_b32 s8, s30, s28
    s_cselect_b32 s9, s31, s29
    s_and_b32 s9, s9, 0xffff
    s_mov_b32 s10, {1024*ROWB}
    s_mov_b32 s11, 0x00020000
    {"s_lshl_b32 s22, s32, 1" if rot else "s_mov_b32 s22, 0"}
    s_mul_i32 s21, s22, {64*ROWB}
    s_lshl_b32 s20, s22, 12
    s_mov_b32 s24, s22
    """)
    def dnext(): e(f"s_add_u32 s22, s22, 1\ns_and_b32 s22, s22, 15\ns_mul_i32 s21, s22, {64*ROWB}")
    def tnext(): e("s_add_u32 s20, s20, 4096\ns_and_b32 s20, s20, 0xffff")
    def dma(i, slot, soff, tag):
        if i % 4 == 0:
            e(f"s_add_u32 m0, s40, {slot*STB + (i//4)*4096}")
            e("s_nop 0")
        e.vmem(f"buffer_load_dwordx4 v{4+i}, s[8:11], {soff} offen offset:{1024*(i%4)} {wf} lds", tag)
    def tok1(step, tt, soff, imm):
        e.vmem(f"buffer_load_dwordx4 {bfr(step % RB, tt)}, v{2+(tt>>1)}, s[4:7], {soff} offen offset:{imm + 256*(tt&1)} {ldf}", ("T", step))
    def trread(step, t, j):
        st = step // 2; kp = step % 2; slot = st % R
        base = "v11" if slot < 2 else "v12"
        off = (slot % 2) * STB + (t & 1) * MATB + (32 * kp + 8 * j) * 224 + 32 * (t >> 1)
        e(f"ds_read_b64_tr_b16 {afr(t, j, step)}, {base} offset:{off}")
    def ptok(t):
        for tt in range(4): tok1(t, tt, "s20", (t % 2) * 2048)
    for i in range(7): dma(i, 0, "s21", ("D", 0))
    e(srd(4, 46, 0x400000))
    for t in range(2): ptok(t)
    if timing: stamp(e, 1)
    dnext(); tnext()
    for i in range(7): dma(i, 1, "s21", ("D", 1))
    dnext()
    e("s_lshl_b32 s27, s35, 11")
    vq = []
    def hsl(tt): e.vmem(f"buffer_load_dwordx4 v[{16+4*tt}:{19+4*tt}], v{2+(tt>>1)}, s[4:7], s27 offen offset:{256*(tt&1)} {ldf}", ("HS", 0))
    for t in range(2, P):
        vq += [("T", t, tt) for tt in range(4)]
        if t % 2 == 1 and (t + 1) // 2 < R: vq += [("D", (t + 1) // 2, i) for i in range(7)]
    for st in range(2, R):
        if ("D", st, 0) not in vq: vq += [("D", st, i) for i in range(7)]
    vq += [("HS", tt) for tt in range(4)]
    def vop(f):
        if f[0] == "T":
            tok1(f[1], f[2], "s20", (f[1] % 2) * 2048)
            if f[1] % 2 == 1 and f[2] == 3: tnext()
        elif f[0] == "D":
            if not noload1 or f[1] < R: dma(f[2], f[1] % R, "s21", ("D", f[1]))
            if f[2] == 6: dnext()
        elif f[0] == "HS": hsl(f[1])
    if not pro:
        for f in vq: vop(f)
        vq = []
    e(f"""
    v_lshrrev_b32 v13, 5, v0
    v_lshlrev_b32 v13, 4, v13
    v_bfe_u32 v14, v0, 2, 3
    v_add_u32 v13, v13, v14
    v_mul_u32_u24 v13, 224, v13
    v_and_b32 v14, 3, v0
    v_lshlrev_b32 v14, 3, v14
    v_add_u32 v11, v13, v14
    v_add_u32 v12, {2*STB}, v11
    s_add_u32 s12, s46, {WS_HHF}
    s_addc_u32 s13, s47, 0
    s_and_b32 s13, s13, 0xffff
    s_mov_b32 s14, {2048*3584*2}
    s_mov_b32 s15, 0x00020000
    {srd(16, 46, WS_SIZE)}
    {srd(48, 44, 256)}
    {srd(52, 92, 3584*2048)}
    {srd(88, 94, 2048*2048)}
    {W2A[w2x]}
    v_lshlrev_b32 v1, 4, v0
    """)
    e(f"""
    v_bfe_u32 v13, v0, 2, 2
    v_lshrrev_b32 v14, 4, v0
    v_cmp_eq_u32 vcc, v13, v14
    v_and_b32 v13, 1, v0
    v_lshlrev_b32 v13, 4, v13
    v_mov_b32 v14, 0x3f80
    v_lshlrev_b32 v13, v13, v14
    v_cndmask_b32 v13, 0, v13, vcc
    v_and_b32 v14, 2, v0
    v_cmp_eq_u32 vcc, 0, v14
    v_accvgpr_write_b32 a{A_SEL+2}, 0
    v_accvgpr_write_b32 a{A_SEL+3}, 0
    v_cndmask_b32 v14, 0, v13, vcc
    v_cndmask_b32 v15, v13, 0, vcc
    v_accvgpr_write_b32 a{A_SEL+4}, 0
    v_accvgpr_write_b32 a{A_SEL+5}, 0
    v_accvgpr_write_b32 a{A_SEL}, v14
    v_accvgpr_write_b32 a{A_SEL+1}, v15
    v_accvgpr_write_b32 a{A_SEL+6}, v14
    v_accvgpr_write_b32 a{A_SEL+7}, v15
    """)
    e(f"s_mul_i32 s59, s34, {4*ROWB}")
    ex = []
    ex.append((hse, lambda: e(f"s_waitcnt vmcnt({e.need([('HS',0)])})")))
    ex.append((1, "v_mov_b32 v15, 0x3f803f80"))
    for tt in range(4):
        x = 16 + 4*tt
        ex.append((1, f"v_dot2_f32_bf16 v14, v{x}, v{x}, 0"))
        for d in range(1, 4): ex.append((1, f"v_dot2_f32_bf16 v14, v{x+d}, v{x+d}, v14"))
        ex.append((1, f"v_dot2_f32_bf16 v13, v{x}, v15, 0"))
        for d in range(1, 4): ex.append((1, f"v_dot2_f32_bf16 v13, v{x+d}, v15, v13"))
        ex.append((1, f"s_nop 1\nv_mov_b32 v{x+1}, v14"))
        ex.append((1, f"s_nop 1\nv_mov_b32 v{x}, v13\ns_nop 1"))
    for o in (0, 1):
        ex.append((1, f"v_permlane32_swap_b32 v{16+o}, v{24+o}"))
        ex.append((1, f"v_permlane32_swap_b32 v{20+o}, v{28+o}"))
    for o in (0, 1):
        ex.append((1, f"v_add_f32 v{16+o}, v{16+o}, v{24+o}"))
        ex.append((1, f"v_add_f32 v{20+o}, v{20+o}, v{28+o}"))
    ex.append((1, f"s_lshl_b32 s41, s36, 7\ns_add_u32 s41, s41, {WS_ST2}\nv_lshlrev_b32 v14, 2, v0"))
    ex.append((1, "s_add_u32 s42, s41, 8192"))
    for o in (0, 1): ex.append((1, f"v_permlane16_swap_b32 v{16+o}, v{20+o}"))
    for o in (0, 1): ex.append((1, f"v_add_f32 v{16+o}, v{16+o}, v{20+o}"))
    ex.append((1, lambda: e.vmem("buffer_atomic_add_f32 v16, v14, s[16:19], s41 offen", ("AT", 0))))
    ex.append((1, lambda: e.vmem("buffer_atomic_add_f32 v17, v14, s[16:19], s42 offen", ("AT", 0))))
    ex.append((13, f"""
    s_lshl_b32 s57, s3, 11
    s_add_u32 s57, s57, {CS_LDS}
    v_lshl_add_u32 v13, v0, 5, s57
    ds_write_b128 v13, a[{A_CSA}:{A_CSA+3}]
    ds_write_b128 v13, a[{A_CSA+4}:{A_CSA+7}] offset:16
    v_lshl_add_u32 v13, v0, 2, s57
    """))
    for i in range(8): ex.append((13, f"ds_read_b32 v{18+i}, v13 offset:{(i >> 1)*448 + (i & 1)*224}"))
    ex.append((15, f"""
    s_lshr_b32 s56, s3, 1
    s_mul_i32 s56, s56, {3584*4}
    s_mul_i32 s57, s35, 448
    s_add_u32 s56, s56, s57
    s_add_u32 s56, s56, {WS_CS}
    v_lshlrev_b32 v13, 2, v0
    """))
    ex.append((15, "v_pk_add_f32 v[18:19], v[18:19], v[20:21]"))
    ex.append((15, "v_pk_add_f32 v[22:23], v[22:23], v[24:25]"))
    ex.append((15, "v_pk_add_f32 v[18:19], v[18:19], v[22:23]"))
    def csat(i):
        def f():
            e("s_mov_b32 exec_hi, 0xffffff")
            e.vmem(f"buffer_atomic_add_f32 v{18+i}, v13, s[16:19], s56 offen offset:{224*i}", ("AT", 0))
            e("s_mov_b32 exec_hi, -1")
        return f
    for i in range(2): ex.append((15, csat(i)))
    ex.append((15, f"""
    s_lshl_b32 s43, s34, 7
    s_add_u32 s43, s43, s35
    s_lshl_b32 s43, s43, 7
    s_add_u32 s43, s43, {WS_FL + 32}
    s_lshl_b32 s56, s34, 7
    v_add_u32 v15, s56, v0
    v_and_b32 v13, 7, v0
    v_lshlrev_b32 v13, 7, v13
    v_add_u32 v13, s35, v13
    v_cmp_gt_u32 vcc, 32, v0
    v_and_b32 v14, 15, v0
    v_lshlrev_b32 v14, 2, v14
    v_cndmask_b32 v15, v13, v15, vcc
    v_lshlrev_b32 v15, 7, v15
    v_add_u32 v15, {WS_FL + 32}, v15
    v_mov_b32 v16, 0
    v_mov_b32 v17, 1
    """))
    ex.append((24, lambda: e.vmem("buffer_load_dword v16, v15, s[16:19], 0 offen sc1", ("PL", 0))))
    ex.append((24, f"""
    s_and_b32 s96, s32, 1
    s_bfe_u32 s97, s32, 0x10001
    s_lshl_b32 s97, s97, 3
    s_and_b32 s98, s33, 7
    s_add_u32 s97, s97, s98
    s_lshr_b32 s98, s32, 2
    s_lshl_b32 s98, s98, 2
    s_lshr_b32 s99, s33, 3
    s_add_u32 s98, s98, s99
    s_lshl_b32 s99, s97, 2
    s_add_u32 s99, s99, s3
    """))
    ex.append((24, f"""
    v_lshrrev_b32 v{VD1}, 4, v0
    v_lshlrev_b32 v30, 1, v{VD1}
    v_and_b32 v31, 15, v0
    v_xor_b32 v31, v30, v31
    v_lshlrev_b32 v31, 4, v31
    v_lshlrev_b32 v{VD1}, 11, v{VD1}
    s_and_b32 s100, s3, 1
    s_lshl_b32 s100, s100, 14
    s_lshl_b32 s101, s98, 8
    s_add_u32 s100, s100, s101
    v_add3_u32 v{VD0}, v{VD1}, v31, s100
    v_xor_b32 v{VD1}, 0x80, v{VD0}
    v_add_u32 v{VD1}, {4*2048 - 1024}, v{VD1}
    s_lshr_b32 s101, s3, 1
    s_mul_i32 s100, s96, 112
    s_add_u32 s100, s100, s101
    s_lshl_b32 s100, s100, 15
    s_mul_i32 s101, s101, {6*32768}
    s_lshl_b32 s26, s3, 11
    """))
    def chk():
        e(f"""
        s_waitcnt vmcnt({e.need([('PL',0)])})
        s_mov_b32 s57, 0
        L_g1_poll:
        v_cmp_eq_u32 vcc, 1, v16
        s_cmp_eq_u64 vcc, -1
        s_cbranch_scc1 L_g1_polled
        s_add_u32 s57, s57, 1
        s_cmp_gt_u32 s57, {POLL_MAX}
        s_cbranch_scc1 L_g1_polled
        s_sleep 1
        buffer_load_dword v16, v15, s[16:19], 0 offen sc1
        s_waitcnt vmcnt(0)
        s_branch L_g1_poll
        L_g1_polled:
        v_cmp_gt_u32 vcc, 28, v0
        v_mov_b32 v13, {WS_CS + 3584*4 - 448}
        v_mov_b32 v15, {WS_CS}
        s_mul_i32 s56, s35, 448
        v_cndmask_b32 v13, v13, v15, vcc
        s_lshl_b32 s57, s3, 11
        s_add_u32 m0, s57, {CS_LDS}
        v_add3_u32 v13, v13, v1, s56
        """)
        e.vmem("buffer_load_dwordx4 v13, s[16:19], 0 offen sc1 lds", ("S", 0))
        for tt in range(4):
            e.vmem(f"buffer_load_dword v{16+2*tt}, v14, s[16:19], s41 offen offset:{64*tt} sc1", ("S", 0))
            e.vmem(f"buffer_load_dword v{17+2*tt}, v14, s[16:19], s42 offen offset:{64*tt} sc1", ("S", 0))
    ex.append((27, chk))
    def pf2():
        e.vmem(f"buffer_load_dword a192, v1, s[52:55], s58 offen", ("W2", 0))
        e(f"s_add_u32 s58, s58, {2048 if w2x else 1024}")
    cs_order = []
    for i in range(8): cs_order += [8 + i, i]
    def csload(n):
        e(f"s_add_u32 s56, s24, {cs_order[n]}\ns_and_b32 s56, s56, 15\ns_mul_i32 s56, s56, {64*ROWB}\ns_add_u32 s56, s56, s59")
        b = A_CSR + 4 * (n % 8)
        e.vmem(f"buffer_load_dwordx4 a[{b}:{b+3}], v4, s[8:11], s56 offen", ("CS", n))
    def csmfma(n):
        b = A_CSR + 4 * (n % 8)
        e(f"s_waitcnt vmcnt({e.need([('CS', n)])})")
        for h_ in range(2):
            d = f"a[{A_CSA+4*h_}:{A_CSA+4*h_+3}]"
            e(f"v_mfma_f32_16x16x32_bf16 {d}, a[{A_SEL+4*h_}:{A_SEL+4*h_+3}], a[{b}:{b+3}], {'0' if n == 0 else d}")
    d2state = {"k": 0}
    def dma2(step):
        st = step // SK2; kp = step % SK2; slot = st % R2
        ka = k2_blocks(step)[0]
        if step > 0:
            dk = ka - d2state["k"]
            e(f"s_add_u32 s100, s100, {dk*32768}" if dk >= 0 else f"s_sub_u32 s100, s100, {-dk*32768}")
            if step == 48: e("s_add_u32 s100, s100, s101")
        d2state["k"] = ka
        e(f"s_add_u32 m0, s26, {slot*STB2 + kp*8192}")
        e("s_nop 0")
        e.vmem(f"buffer_load_dwordx4 v{VD0}, s[52:55], s100 offen lds", ("D2", st))
        e.vmem(f"buffer_load_dwordx4 v{VD1}, s[52:55], s100 offen offset:1024 lds", ("D2", st))
    e(f"s_waitcnt vmcnt({e.need([('D',0)])})\ns_barrier")
    for t in range(14):
        for j in range(2): trread(0, t, j)
    if timing: stamp(e, 2)
    pend_dma = []
    d2pend = []
    if noex: ex = [x for x in ex if x[0] == 24 and not callable(x[1])]
    if nohs: ex = [x for x in ex if x[0] > hse or (not callable(x[1]) and "s41" in x[1])]
    if nochk: ex = [x for x in ex if x[0] != 27]
    if split:
        ex2 = []
        for (st_, x) in ex:
            if callable(x) or "s_nop" in x: ex2.append((st_, x)); continue
            ls = [l.strip() for l in x.strip().split("\n") if l.strip()]
            for i_ in range(0, len(ls), 2): ex2.append((st_, "\n".join(ls[i_:i_+2])))
        ex = ex2
    segs = []
    for step in range(NSTEP):
        if step % 8 == 0:
            if segs: segs[-1][1] = e.mark()
            segs.append([e.mark(), None])
        st = step // 2; kp = step % 2
        assert noload1 or e.vm.count(("T", step)) == 4
        n = e.need([("T", step)])
        e(f"s_waitcnt vmcnt({n}) lgkmcnt(" + ("0" if step == 0 or ab == 2 else "12") + ")")
        fill = [[] for _ in range(56)]
        if kp == 1 and st + R < 16: pend_dma += [(st + R, i) for i in range(7)]
        if step == 29: d2pend += list(range(8))
        if ab == 1: pT, pD, pD2 = [5, 9, 13, 17], [21, 25, 29, 33], [21, 29, 37]
        else: pT, pD, pD2 = [4, 8, 12, 16], [20, 24, 28, 32], [20, 28, 36]
        if step + 1 < NSTEP:
            for t in range(14):
                if ab == 1:
                    fill[4*t + 3].append(("R", step + 1, t, 0))
                    fill[min(4*t + 4, 55)].append(("R", step + 1, t, 1))
                else:
                    k_ = 2*t
                    fill[3 + (k_*3)//2].append(("R", step + 1, t, 0)); fill[3 + ((k_+1)*3)//2].append(("R", step + 1, t, 1))
        def free_from(p):
            while p < 55 and fill[p]: p += 1
            return p
        if step + P < NSTEP and not noload1: vq += [("T", step + P, tt) for tt in range(4)]
        vq += [("D",) + x for x in pend_dma]; pend_dma = []
        nv = min(len(vq), vrate if len(vq) > 11 else 8)
        sp = 52 // vrate if nv > 8 else 6
        for q in range(nv): fill[min(free_from(4 + q * sp), 55)].append(("V", vq.pop(0)))
        for q in range(3):
            if d2pend: fill[free_from(pD2[q])].append(("D2", d2pend.pop(0)))
        if 1 + csd <= step <= 8 + csd and not (noex or nocs):
            fill[free_from(37)].append(("CSL", 2*(step-1-csd))); fill[free_from(45)].append(("CSL", 2*(step-1-csd)+1))
        if 5 + csd - (1 if csd else 0) <= step <= 12 + csd - (1 if csd else 0) and not (noex or nocs):
            q_ = step - 5 - csd + (1 if csd else 0)
            fill[1].append(("CSM", 2*q_)); fill[2].append(("CSM", 2*q_+1))
        if w2pf and not noex and ((w2s <= step < w2s + 14) if w2x else (9 <= step <= 21 and step % 2 == 1)): fill[free_from(45)].append(("PF2",))
        for i in range(56):
            t, tt = (i // 4, i % 4) if ab == 1 else (i % 14, i // 14)
            if ab == 1 and kp == 0 and step > 0 and i in (24, 48): e("s_waitcnt lgkmcnt(12)")
            c = "0" if step == 0 else acc(tt, t)
            e(f"v_mfma_f32_16x16x32_bf16 {acc(tt,t)}, {afr(t, None, step)}, {bfr(step%RB,tt)}, {c}")
            if kp == 1 and i == 2:
                assert noload1 or st + 1 >= 16 or e.vm.count(("D", st + 1)) == 7
                n = 63 if st + 1 >= 16 else e.need([("D", st + 1)] + ([("AT", 0)] if st == 9 else []))
                e(f"s_waitcnt vmcnt({n}) lgkmcnt(0)\ns_barrier" if st + 1 < 16 else "s_waitcnt lgkmcnt(0)\ns_barrier")
                if st == 9 and not noex:
                    assert not [x for x in ex if x[0] <= 15]
                    e("s_cmp_eq_u32 s3, 0\ns_cselect_b32 s56, s43, 0x80000000\ns_mov_b64 exec, 1")
                    e.vmem("buffer_store_dword v17, v16, s[16:19], s56 offen sc1", ("SG", 0))
                    e("s_mov_b64 exec, -1")
            for f in fill[i]:
                if f[0] == "R": trread(f[1], f[2], f[3])
                elif f[0] == "V": vop(f[1])
                elif f[0] == "D2": dma2(f[1])
                elif f[0] == "CSL": csload(f[1])
                elif f[0] == "CSM": csmfma(f[1])
                elif f[0] == "PF2": pf2()
            if not fill[i] and i >= 4 and ex and ex[0][0] <= step:
                x = ex.pop(0)[1]
                if callable(x): x()
                else: e(x)
    assert not ex and not d2pend
    segs[-1][1] = e.mark()
    if timing: stamp(e, 3)
    e(f"""
    s_waitcnt vmcnt({e.need([('S',0)])})
    v_lshrrev_b32 v13, 4, v0
    s_lshl_b32 s57, s3, 11
    s_add_u32 s57, s57, {CS_LDS}
    v_lshl_add_u32 v1, v13, 4, s57
    v_and_b32 v14, 1, v13
    v_lshlrev_b32 v14, 9, v14
    v_lshrrev_b32 v13, 1, v13
    v_lshlrev_b32 v13, 8, v13
    v_and_b32 v15, 15, v0
    v_lshlrev_b32 v15, 4, v15
    v_add3_u32 v2, v13, v14, v15
    s_mul_i32 s41, s36, {224*1024}
    s_mul_i32 s42, s35, {7*1024}
    s_add_u32 s41, s41, s42
    v_add_u32 v2, s41, v2
    v_add_u32 v3, {224*1024}, v2
    s_mov_b32 s43, 0xbfb8aa3b
    s_mov_b32 s44, 4096
    s_lshl_b32 s47, s34, 2
    s_add_u32 s47, s47, s3
    s_lshl_b32 s47, s47, 5
    s_add_u32 s47, s47, s35
    s_lshl_b32 s47, s47, 7
    s_add_u32 s47, s47, {WS_FL}
    v_mov_b32 v30, 0
    v_mov_b32 v24, v16
    v_mov_b32 v25, v17
    v_mov_b32 v26, v18
    v_mov_b32 v27, v19
    s_mov_b32 s45, 0xba800000
    s_mov_b32 s46, 0x3a800000
    """)
    src = {0: (24, 25), 1: (26, 27), 2: (20, 21), 3: (22, 23)}
    for tt in range(4):
        m, r = src[tt]; b = 4 + 4 * tt
        e(f"""
        v_mul_f32 v{b}, s45, v{m}
        v_mul_f32 v{b+2}, s46, v{r}
        v_fma_f32 v{b+2}, -v{b}, v{b}, v{b+2}
        v_max_f32 v{b+2}, 0, v{b+2}
        v_add_f32 v{b+2}, 0x3727c5ac, v{b+2}
        v_rsq_f32 v{b+1}, v{b+2}
        s_nop 0
        v_mul_f32 v{b+1}, s43, v{b+1}
        """)
    def cread(u): e(f"ds_read_b128 v[20:23], v1 offset:{u*64}\nds_read_b128 v[24:27], v1 offset:{448+u*64}")
    def hhflag(val, tags):
        e(f"s_waitcnt vmcnt({e.need(tags)})\nv_mov_b32 v31, {val}\ns_mov_b64 exec, 1")
        e.vmem("buffer_store_dword v31, v30, s[16:19], s47 offen sc1", ("HF", val))
        e("s_mov_b64 exec, -1")
    if w2l: e(W2A[1] + "\nv_lshlrev_b32 v31, 4, v0\nv_accvgpr_write_b32 a254, v31")
    def pf2l():
        e("v_accvgpr_read_b32 v31, a254")
        for _ in range(2):
            e.vmem(f"buffer_load_dword a255, v31, s[52:55], s58 offen", ("W2", 1))
            e("s_add_u32 s58, s58, 2048")
    cread(0)
    d2pend = list(range(8, 16))
    for u in range(7):
        e("s_waitcnt lgkmcnt(0)")
        G = [accb(tt, 2*u) for tt in range(4)]; U = [accb(tt, 2*u+1) for tt in range(4)]
        for tt in range(4):
            b = 4 + 4 * tt
            for p in range(2):
                g = G[tt] + 2*p; up = U[tt] + 2*p
                e(f"v_pk_fma_f32 v[{g}:{g+1}], v[{b}:{b+1}], v[{20+2*p}:{21+2*p}], v[{g}:{g+1}] op_sel_hi:[0,1,1]")
                e(f"v_pk_fma_f32 v[{up}:{up+1}], v[{b}:{b+1}], v[{24+2*p}:{25+2*p}], v[{up}:{up+1}] op_sel_hi:[0,1,1]")
        if u < 6: cread(u + 1)
        for tt in range(4):
            b = 4 + 4 * tt
            for p in range(2):
                g = G[tt] + 2*p; up = U[tt] + 2*p
                e(f"v_pk_mul_f32 v[{up}:{up+1}], v[{g}:{g+1}], v[{up}:{up+1}]")
                e(f"v_pk_mul_f32 v[{g}:{g+1}], v[{g}:{g+1}], v[{b}:{b+1}] op_sel:[0,1] op_sel_hi:[1,1]")
        for tt in range(4):
            for p in range(4): e(f"v_exp_f32 v{G[tt]+p}, v{G[tt]+p}")
        if d2pend and u < 4:
            dma2(d2pend.pop(0)); dma2(d2pend.pop(0))
        if w2l: pf2l()
        for tt in range(4):
            b = 4 + 4 * tt
            for p in range(2):
                g = G[tt] + 2*p
                e(f"v_pk_fma_f32 v[{g}:{g+1}], v[{g}:{g+1}], v[{b+2}:{b+3}], v[{b+2}:{b+3}] op_sel_hi:[1,0,0]")
        for tt in range(4):
            for p in range(4): e(f"v_rcp_f32 v{G[tt]+p}, v{G[tt]+p}")
        for tt in range(4):
            for p in range(2):
                g = G[tt] + 2*p; up = U[tt] + 2*p
                e(f"v_pk_mul_f32 v[{up}:{up+1}], v[{g}:{g+1}], v[{up}:{up+1}]")
        for i in range(2):
            d = G[2*i]
            e(f"v_cvt_pk_bf16_f32 v{d}, v{U[2*i]}, v{U[2*i]+1}")
            e(f"v_cvt_pk_bf16_f32 v{d+1}, v{U[2*i]+2}, v{U[2*i]+3}")
            e(f"v_cvt_pk_bf16_f32 v{d+2}, v{U[2*i+1]}, v{U[2*i+1]+1}")
            e(f"v_cvt_pk_bf16_f32 v{d+3}, v{U[2*i+1]+2}, v{U[2*i+1]+3}")
        e("s_nop 0")
        for i in range(2):
            d = G[2*i]
            e(f"v_permlane32_swap_b32 v{d}, v{d+2}\nv_permlane32_swap_b32 v{d+1}, v{d+3}")
        for i in range(2):
            d = G[2*i]
            so = "0" if u < 4 else "s44"
            e.vmem(f"buffer_store_dwordx4 v[{d}:{d+3}], v{2+i}, s[12:15], {so} offen offset:{(u%4)*1024} sc1", ("HH", u))
        if u == 4: hhflag(1, [("HH", 1)])
        if u == 6: hhflag(2, [("HH", 3)])
    if timing: stamp(e, 4)
    e(f"""
    s_lshr_b32 s41, s99, 1
    s_lshl_b32 s41, s41, 5
    s_lshl_b32 s42, s96, 4
    s_add_u32 s41, s41, s42
    s_lshl_b32 s41, s41, 7
    s_add_u32 s41, s41, {WS_FL}
    v_and_b32 v9, 15, v0
    v_lshlrev_b32 v9, 7, v9
    v_add_u32 v9, s41, v9
    """)
    e.vmem("buffer_load_dword v10, v9, s[16:19], 0 offen sc1", ("PL2", 1))
    e(f"""
    s_mul_i32 s37, s99, {224*1024}
    s_mul_i32 s38, s96, {112*1024}
    s_add_u32 s37, s37, s38
    v_bfe_u32 v14, v0, 4, 1
    v_lshlrev_b32 v14, 9, v14
    v_and_b32 v15, 15, v0
    v_lshlrev_b32 v15, 4, v15
    v_add3_u32 v4, v14, v15, s37
    v_lshrrev_b32 v13, 5, v0
    v_lshl_add_u32 v2, v13, 10, v4
    v_mul_u32_u24 v5, 7168, v13
    v_add_u32 v3, v4, v5
    v_lshlrev_b32 v5, 3, v13
    v_add3_u32 v5, v5, v14, v15
    s_lshl_b32 s41, s99, 16
    s_lshl_b32 s42, s98, 13
    s_add_u32 s41, s41, s42
    s_lshl_b32 s42, s96, 12
    s_add_u32 s41, s41, s42
    """)
    for tt in range(2):
        for t in range(4):
            b = RES + (tt * 4 + t) * 2
            e.vmem(f"buffer_load_dwordx2 v[{b}:{b+1}], v5, s[4:7], s41 offen offset:{t*1024 + tt*256} {ldf}", ("H", 0))
    e(f"""
    v_lshlrev_b32 v13, 4, v13
    v_bfe_u32 v14, v0, 2, 3
    v_add_u32 v13, v13, v14
    v_lshlrev_b32 v13, 8, v13
    v_and_b32 v15, 3, v0
    v_lshlrev_b32 v15, 3, v15
    v_add_u32 v13, v13, v15
    s_lshl_b32 s40, s96, 2
    v_xor_b32 v14, s40, v14
    v_lshl_add_u32 v13, v14, 5, v13
    """)
    for t in range(8):
        e(f"v_xor_b32 v{TB+t}, {t*32}, v13\nv_add_u32 v{TB+8+t}, {2*STB2}, v{TB+t}")
    l2q = []
    npoll = [0]
    def poll2(val):
        k = npoll[0]; npoll[0] += 1
        e(f"""
        s_waitcnt vmcnt({e.need([('PL2', val)])})
        s_mov_b32 s57, 0
        L_g2_pollA{k}:
        v_cmp_le_u32 vcc, {val}, v10
        s_cmp_eq_u64 vcc, -1
        s_cbranch_scc1 L_g2_polledA{k}
        s_add_u32 s57, s57, 1
        s_cmp_gt_u32 s57, {POLL_MAX}
        s_cbranch_scc1 L_g2_polledA{k}
        buffer_load_dword v10, v9, s[16:19], 0 offen sc1
        s_waitcnt vmcnt(0)
        s_branch L_g2_pollA{k}
        L_g2_polledA{k}:
        """)
    t2state = {"k": 0}
    def toks2(step):
        ka = k2_blocks(step)[0]
        if step == 0: e("s_mov_b32 s20, 0")
        else:
            dk = ka - t2state["k"]
            e(f"s_add_u32 s20, s20, {dk*1024}" if dk >= 0 else f"s_sub_u32 s20, s20, {-dk*1024}")
        t2state["k"] = ka
        for tt in range(2):
            e.vmem(f"buffer_load_dwordx4 {bfr2(step % RB2, tt)}, {'v2' if step < 48 else 'v3'}, s[12:15], s20 offen offset:{256*tt} {t2f}", ("T2", step))
    def trread2(step, t, j):
        st = step // SK2; kp = step % SK2; slot = st % R2
        base = f"v{TB+t}" if slot < 2 else f"v{TB+8+t}"
        off = (slot % 2) * STB2 + kp * 8192 + j * 2048
        e(f"ds_read_b64_tr_b16 {afr2(step % 2, t, j)}, {base} offset:{off}"); l2q.append((step, t))
    def lw2(tag):
        idx = [i_ for i_, x in enumerate(l2q) if x == tag]
        if idx:
            n_ = len(l2q) - 1 - max(idx)
            e(f"s_waitcnt lgkmcnt({min(n_, 15)})")
            keep = min(n_, 15)
            del l2q[:len(l2q) - keep]
    e(f"s_waitcnt vmcnt({e.need([('D2',0)])})\ns_barrier")
    for t in range(8):
        for j in range(2): trread2(0, t, j)
    poll2(1)
    for t in range(P2): toks2(t)
    e(f"s_waitcnt vmcnt({e.need([('H',0)])})")
    for tt in range(2):
        for t in range(4):
            b = RES + (tt * 4 + t) * 2; a = accb2(tt, t)
            e(f"v_lshlrev_b32 v{a}, 16, v{b}\nv_and_b32 v{a+1}, 0xffff0000, v{b}\nv_lshlrev_b32 v{a+2}, 16, v{b+1}\nv_and_b32 v{a+3}, 0xffff0000, v{b+1}")
    e(f"""
    v_lshlrev_b32 v6, 4, v0
    s_lshl_b32 s43, s2, 2
    s_add_u32 s43, s43, s3
    s_xor_b32 s44, s43, 4
    s_lshl_b32 s45, s43, 7
    s_lshl_b32 s46, s44, 7
    s_add_u32 s45, s45, {WS_FL + 64}
    s_add_u32 s46, s46, {WS_FL + 64}
    s_lshl_b32 s43, s43, 13
    s_lshl_b32 s44, s44, 13
    s_add_u32 s43, s43, {WS_XB}
    s_add_u32 s44, s44, {WS_XB}
    s_add_u32 s58, s43, 4096
    s_add_u32 s59, s44, 4096
    """)
    if timing: stamp(e, 5)
    pend = []
    def toks2_ops(step):
        ka = k2_blocks(step)[0]; dk = ka - t2state["k"]; t2state["k"] = ka
        ops = [lambda: e(f"s_add_u32 s20, s20, {dk*1024}" if dk >= 0 else f"s_sub_u32 s20, s20, {-dk*1024}")]
        for tt in range(2):
            ops.append(lambda tt=tt: e.vmem(f"buffer_load_dwordx4 {bfr2(step % RB2, tt)}, {'v2' if step < 48 else 'v3'}, s[12:15], s20 offen offset:{256*tt} {t2f}", ("T2", step)))
        return ops
    def dma2_ops(step):
        st = step // SK2; kp = step % SK2; slot = st % R2
        ka = k2_blocks(step)[0]; dk = ka - d2state["k"]; d2state["k"] = ka
        ops = [lambda: e((f"s_add_u32 s100, s100, {dk*32768}" if dk >= 0 else f"s_sub_u32 s100, s100, {-dk*32768}") + ("\ns_add_u32 s100, s100, s101" if step == 48 else ""))]
        ops.append(lambda: e(f"s_add_u32 m0, s26, {slot*STB2 + kp*8192}"))
        ops.append(lambda: e.vmem(f"buffer_load_dwordx4 v{VD0}, s[52:55], s100 offen lds", ("D2", st)))
        ops.append(lambda: e.vmem(f"buffer_load_dwordx4 v{VD1}, s[52:55], s100 offen offset:1024 lds", ("D2", st)))
        return ops
    BP = 7
    for step in range(NSTEP2):
        st = step // SK2; kp = step % SK2
        bar = kp == SK2 - 1 and st + 1 < NST2
        e(f"s_waitcnt vmcnt({e.need([('T2', step)])})")
        fill = [[] for _ in range(16)]
        if step + 1 < NSTEP2 and not noR2:
            for k in range(16):
                fill[k if not bar else BP + 1 + k // 2].append(lambda k=k: trread2(step + 1, k // 2, k % 2))
        misc = []
        if step == 0: misc.append(lambda: hhflag(3, [("HH", 6)]))
        if step in (4, 18): misc.append(lambda: e.vmem("buffer_load_dword v10, v9, s[16:19], 0 offen sc1", ("PL2", 2 if step == 4 else 3)))
        if step + P2 in (16, 32): misc.append(lambda: poll2(2 if step + P2 == 16 else 3))
        if step + P2 < NSTEP2 and not (noload2 or noT2): misc += toks2_ops(step + P2)
        if pend and not (noload2 or noD2): misc += dma2_ops(pend.pop(0))
        pos = list(range(0, BP + 1)) if bar else [1, 3, 5, 7, 9, 11, 13, 15, 14]
        for p_, m_ in zip(pos, misc): fill[p_].append(m_)
        assert len(misc) <= len(pos)
        if bar and st + R2 < NST2: pend += [(st + R2) * SK2 + i for i in range(SK2)]
        for i in range(16):
            tt, t = i % 2, i // 2
            if tt == 0 and t % 2 == 0: lw2((step, t + 1))
            c = "0" if (step == 0 and t >= 4) else acc2(tt, t)
            if not nomfma2: e(f"v_mfma_f32_16x16x32_bf16 {acc2(tt,t)}, {afr2(step%2,t)}, {bfr2(step%RB2,tt)}, {c}")
            for f in fill[i]: f()
            if bar and i == BP:
                e(f"s_waitcnt vmcnt({e.need([('D2', st + 1)])}) lgkmcnt(0)\ns_barrier"); l2q.clear()
    if timing: stamp(e, 6)
    e(f"""
    v_and_b32 v15, 15, v0
    v_lshlrev_b32 v15, 11, v15
    v_bfe_u32 v14, v0, 4, 1
    v_lshlrev_b32 v14, 5, v14
    v_lshrrev_b32 v13, 5, v0
    v_lshlrev_b32 v13, 4, v13
    v_add3_u32 v3, v13, v14, v15
    s_lshl_b32 s41, s99, 16
    s_lshl_b32 s42, s98, 8
    s_add_u32 s41, s41, s42
    s_lshl_b32 s42, s96, 7
    s_add_u32 s41, s41, s42
    s_add_u32 s42, s41, 32768
    v_mov_b32 v7, 0
    v_mov_b32 v8, 1
    """)
    if xb16:
        for tt in range(2):
            for tp in range(2):
                a0 = accb2(tt, 4+2*tp); a1 = a0 + 4
                e(f"v_cvt_pk_bf16_f32 v{a0}, v{a0}, v{a0+1}\nv_cvt_pk_bf16_f32 v{a0+1}, v{a0+2}, v{a0+3}\nv_cvt_pk_bf16_f32 v{a0+2}, v{a1}, v{a1+1}\nv_cvt_pk_bf16_f32 v{a0+3}, v{a1+2}, v{a1+3}")
                e(f"buffer_store_dwordx4 v[{a0}:{a0+3}], v6, s[16:19], s43 offen offset:{(tt*2+tp)*1024} sc1")
    else:
        for tt in range(2):
            for t in range(4):
                e(f"buffer_store_dwordx4 {acc2(tt, 4+t)}, v6, s[16:19], {'s43' if tt == 0 else 's58'} offen offset:{t*1024} sc1")
    e(f"""
    s_waitcnt vmcnt(0)
    s_mov_b64 exec, 1
    buffer_store_dword v8, v7, s[16:19], s45 offen sc1
    s_mov_b64 exec, -1
    s_mov_b32 s57, 0
    L_g2_poll:
    buffer_load_dword v9, v7, s[16:19], s46 offen sc1
    s_waitcnt vmcnt(0)
    v_readfirstlane_b32 s56, v9
    s_cmp_eq_u32 s56, 1
    s_cbranch_scc1 L_g2_polled
    s_add_u32 s57, s57, 1
    s_cmp_gt_u32 s57, {POLL_MAX}
    s_cbranch_scc1 L_g2_polled
    s_branch L_g2_poll
    L_g2_polled:
    """)
    if xb16:
        for q in range(4): e(f"buffer_load_dwordx4 v[{RES+4*q}:{RES+4*q+3}], v6, s[16:19], s44 offen offset:{q*1024} sc1")
    else:
        for tt in range(2):
            for t in range(4):
                b = RES + (tt * 4 + t) * 4
                e(f"buffer_load_dwordx4 v[{b}:{b+3}], v6, s[16:19], {'s44' if tt == 0 else 's59'} offen offset:{t*1024} sc1")
    for tt in range(2):
        for tp in range(2):
            q = tt*2+tp
            a0 = accb2(tt, 2*tp); a1 = accb2(tt, 2*tp+1); d = 16 + q*4
            if xb16:
                e("s_waitcnt vmcnt(3)")
                for w_ in range(4):
                    a = a0 + 2*w_; r = RES + 4*q + w_; t_ = RES + 16 + 2*w_
                    e(f"v_lshlrev_b32 v{t_}, 16, v{r}\nv_and_b32 v{t_+1}, 0xffff0000, v{r}\nv_pk_add_f32 v[{a}:{a+1}], v[{a}:{a+1}], v[{t_}:{t_+1}]")
            else:
                e(f"s_waitcnt vmcnt({6 - q})")
                r0 = RES + (tt*4 + 2*tp)*4; r1 = r0 + 4
                for (a, r) in ((a0, r0), (a1, r1)):
                    e(f"v_pk_add_f32 v[{a}:{a+1}], v[{a}:{a+1}], v[{r}:{r+1}]\nv_pk_add_f32 v[{a+2}:{a+3}], v[{a+2}:{a+3}], v[{r+2}:{r+3}]")
            e(f"v_cvt_pk_bf16_f32 v{d}, v{a0}, v{a0+1}\nv_cvt_pk_bf16_f32 v{d+1}, v{a0+2}, v{a0+3}\nv_cvt_pk_bf16_f32 v{d+2}, v{a1}, v{a1+1}\nv_cvt_pk_bf16_f32 v{d+3}, v{a1+2}, v{a1+3}")
            e("s_nop 1")
            e(f"v_permlane16_swap_b32 v{d}, v{d+2}\nv_permlane16_swap_b32 v{d+1}, v{d+3}")
            e(f"buffer_store_dwordx4 v[{d}:{d+3}], v3, s[88:91], {'s41' if tt==0 else 's42'} offen offset:{tp*64}")
    if timing:
        e("s_waitcnt vmcnt(0)")
        stamp(e, 7, 4)
        e("s_waitcnt lgkmcnt(0)\ns_mov_b32 s88, s32\ns_mov_b32 s90, s34")
        timing_store(e, "s[16:19]", 8, 60, 1)
        e(f"""
        s_cmp_lg_u32 s2, {dw}
        s_cbranch_scc1 L_g12_end
        s_cmp_lg_u32 s3, 0
        s_cbranch_scc1 L_g12_end
        s_waitcnt vmcnt(0)
        v_lshlrev_b32 v4, 10, v0
        v_add_u32 v4, {WS_TM + 4*dw}, v4
        buffer_load_dword v5, v4, s[16:19], 0 offen sc1
        v_add_u32 v4, 0x10000, v4
        buffer_load_dword v6, v4, s[16:19], 0 offen sc1
        s_waitcnt vmcnt(0)
        v_readlane_b32 s41, v5, 10
        v_readlane_b32 s42, v6, 14
        s_sub_u32 s41, s42, s41
        v_lshlrev_b32 v7, 2, v0
        v_subrev_u32 v8, 16, v7
        v_cmp_le_u32 vcc, 4, v0
        v_mov_b32 v9, 0x1000
        s_nop 1
        v_cndmask_b32 v8, v9, v8, vcc
        v_cmp_gt_u32 vcc, 10, v0
        s_nop 1
        v_cndmask_b32 v8, v9, v8, vcc
        buffer_store_dword v5, v8, s[48:51], 0 offen
        v_add_u32 v8, 4, v7
        v_cmp_le_u32 vcc, 6, v0
        s_nop 1
        v_cndmask_b32 v8, v9, v8, vcc
        v_cmp_gt_u32 vcc, 14, v0
        s_nop 1
        v_cndmask_b32 v8, v9, v8, vcc
        buffer_store_dword v6, v8, s[48:51], 0 offen
        v_mov_b32 v5, s41
        v_mov_b32 v8, 24
        buffer_store_dword v5, v8, s[48:51], 0 offen
        """)
    e("L_g12_end:\ns_endpgm")
    if rollx:
        mid, nl = roll(e, segs, "L_g1_loop")
        print("; g1 loops", nl)
        txt = e.text(0, segs[0][0]) + mid + e.text(segs[-1][1])
    else: txt = e.text()
    return kstart(name) + txt, kdesc(name, 512, 102, 256), f"; @launch kernel={name} grid=(256,1,1) block=(256,1,1) lds={LDS_G12}\n"
```

```python
from common import *
CPS = 4160
XR = 8 * CPS
CH = XR + 4608 + 64
CSL = 4 * CH
CNT = CSL + 8192
LDS_K1 = CNT + 64
VK = 16
VV = 38
VX = 54
VS = 70
VU = 86
VKV = 130
VC = 162
VW = 86
VCA = 226
VSEL = 234
VT = 242
VF = 130
FR = 8
FD = 6
ACC = 86
def gfr(q, r): b = 4 * (q * 8 + r); return f"a[{b}:{b+3}]"
def ffr(m): b = VF + 4 * (m % FR); return f"v[{b}:{b+3}]"
def acc(j): b = ACC + 4 * j; return f"v[{b}:{b+3}]"

class Col:
    def __init__(self): self.l = []
    def __call__(self, t):
        for l in t.strip("\n").split("\n"):
            if l.strip(): self.l.append(l.strip())

def body(e, timing=False, st_flags="", nox=False, wpf=1, cpf=1, code_end='L_g12_end', xl="", x0=4, xd=14, TS=64, fl1=30, slp=0, st0=240, kwd=0, xpf=0, xe=4, rot=1):
    nocs = True
    VWT = 162
    VW = 186
    e(f"""
    s_load_dwordx8 s[24:31], s[0:1], 0
    s_load_dwordx4 s[32:35], s[0:1], 32
    s_load_dwordx4 s[36:39], s[0:1], {KA['w1']}
    s_load_dwordx4 s[44:47], s[0:1], {KA['dbg']}
    """)
    if timing: stamp(e, 0, TS)
    e(f"""
    v_lshrrev_b32 v1, 6, v0
    v_and_b32 v0, 63, v0
    s_and_b32 s40, s2, 7
    v_readfirstlane_b32 s3, v1
    s_lshl_b32 s40, s40, 5
    s_lshr_b32 s41, s2, 3
    s_add_u32 s40, s40, s41
    s_lshl_b32 s41, s40, 3
    s_lshr_b32 s50, s40, 4
    s_and_b32 s51, s40, 15
    s_lshl_b32 s52, s51, 2
    s_add_u32 s52, s52, s3
    s_lshl_b32 s52, s52, 16
    s_lshl_b32 s53, s50, 7
    s_add_u32 s52, s52, s53
    v_lshrrev_b32 v5, 4, v0
    v_and_b32 v6, 15, v0
    v_lshlrev_b32 v2, 14, v5
    v_lshl_add_u32 v2, v6, 3, v2
    v_add_u32 v2, s52, v2
    v_subrev_u32 v3, {3*2048}, v2
    v_cmp_gt_u32 vcc, 2048, v2
    v_mov_b32 v8, 0x80000000
    s_lshl_b32 s53, s50, 9
    v_cndmask_b32 v3, v3, v8, vcc
    v_lshl_add_u32 v7, v6, 5, s53
    v_lshlrev_b32 v4, 4, v0
    v_mov_b32 v{VT}, 0
    v_mov_b32 v{VT+1}, 0
    v_mov_b32 v{VT+2}, 0
    v_mov_b32 v{VT+3}, 0
    s_mul_i32 s62, s3, {CH}
    s_mov_b32 s48, 4096
    s_mov_b32 s49, 8192
    s_mov_b32 s60, 12288
    s_lshl_b32 s43, s2, 9
    s_lshl_b32 s63, s3, 7
    s_add_u32 s43, s43, s63
    s_add_u32 s43, s43, {WS_FL}
    s_waitcnt lgkmcnt(0)
    s_add_u32 s100, s46, {WS_EP}
    s_addc_u32 s101, s47, 0
    s_load_dword s42, s[100:101], 0
    {srd(20, 46, WS_SIZE)}
    {srd(8, 26, 4194304)}
    s_mov_b64 exec, 0xff
    """)
    e.vmem(f"buffer_store_dwordx4 v[{VT}:{VT+3}], v4, s[20:23], s43 offen sc1", "Z")
    e("s_mov_b64 exec, -1")
    so = ["0", "s48", "s49", "s60"]
    for j in range(3): e.vmem(f"buffer_load_dwordx2 v[{VK+2*j}:{VK+1+2*j}], v3, s[8:11], {so[j//2]} offen offset:{(j%2)*2048}", "K")
    for j in range(8): e.vmem(f"buffer_load_dwordx2 v[{VK+6+2*j}:{VK+7+2*j}], v2, s[8:11], {so[j//2]} offen offset:{(j%2)*2048}", "K")
    e(srd(4, 30, 8192))
    for i in range(2): e.vmem(f"buffer_load_dwordx4 v[{VWT+4*i}:{VWT+4*i+3}], v7, s[4:7], 0 offen offset:{16*i}", "K")
    e(srd(12, 28, 4194304))
    for j in range(8): e.vmem(f"buffer_load_dwordx2 v[{VV+2*j}:{VV+1+2*j}], v2, s[12:15], {so[j//2]} offen offset:{(j%2)*2048}", "V")
    e(srd(4, 24, 4194304))
    if xpf:
        e("v_lshrrev_b32 v9, 3, v0\nv_and_b32 v10, 7, v0\nv_lshlrev_b32 v9, 11, v9\nv_lshl_add_u32 v9, v10, 4, v9")
        for i in range(4):
            e(f"s_add_u32 s53, s52, {i*16384}")
            e.vmem(f"buffer_load_dword v255, v9, s[4:7], s53 offen", "XPF")
    e(f"""
    {srd(16, 32, 4194304)}
    s_lshl_b32 s61, s40, 2
    s_add_u32 s61, s61, s3
    s_lshl_b32 s61, s61, 12
    v_add_u32 v6, s61, v4
    v_subrev_u32 v7, 16, v6
    v_cmp_eq_u32 vcc, 0, v0
    s_add_u32 s34, s34, s41
    s_addc_u32 s35, s35, 0
    v_cndmask_b32 v8, v7, v8, vcc
    s_load_dwordx2 s[54:55], s[34:35], 0
    """)
    def kwl(a_, b_, c_):
        for c in range(4):
            e.vmem(f"buffer_load_dwordx4 v[{VW+8*c}:{VW+8*c+3}], {a_ if c == 0 else b_}, s[16:19], 0 offen offset:{1024*c}", ("KW", c))
            e.vmem(f"buffer_load_dwordx4 v[{VW+8*c+4}:{VW+8*c+7}], {c_}, s[16:19], 0 offen offset:{1024*c}", ("KW", c))
    if not kwd: kwl("v8", "v7", "v6")
    else: e("v_mov_b32 v252, v8\nv_mov_b32 v253, v7\nv_mov_b32 v254, v6")
    if cpf: e(f"""
    s_cmp_ge_u32 s2, 24
    s_cbranch_scc1 L_k1_nocpf
    s_getpc_b64 s[52:53]
    L_k1_pc:
    s_lshr_b32 s56, s2, 3
    s_lshl_b32 s56, s56, 2
    s_add_u32 s56, s56, s3
    s_lshl_b32 s56, s56, 13
    v_lshlrev_b32 v250, 7, v0
    v_add_u32 v250, s56, v250
    v_min_u32 v250, {code_end} - L_k1_pc, v250
    v_mov_b32 v251, s53
    v_add_co_u32 v250, vcc, s52, v250
    v_addc_co_u32 v251, vcc, 0, v251, vcc
    global_load_dword v255, v[250:251], off
    L_k1_nocpf:
    """)
    e(f"""
    v_add_u32 v9, s62, v4
    v_mul_u32_u24 v10, {CPS}, v0
    v_add_u32 v10, s62, v10
    s_mov_b32 exec_hi, 0
    ds_write_b128 v9, v[{VT}:{VT+3}] offset:{XR+4096}
    s_mov_b32 exec_lo, 0xff
    ds_write_b128 v10, v[{VT}:{VT+3}]
    s_lshl_b32 s52, s2, 7
    s_add_u32 s52, s52, {WS_CS}
    s_cmp_eq_u32 s3, 1
    s_cselect_b32 s52, s52, 0x80000000
    """)
    e.vmem(f"buffer_store_dwordx4 v[{VT}:{VT+3}], v4, s[20:23], s52 offen sc1", "Z2")
    e(f"""
    s_mov_b32 exec_lo, 15
    s_lshl_b32 s52, s2, 6
    s_add_u32 s52, s52, {WS_ST2}
    s_cmp_eq_u32 s3, 0
    s_cselect_b32 s52, s52, 0x80000000
    """)
    e.vmem(f"buffer_store_dwordx4 v[{VT}:{VT+3}], v4, s[20:23], s52 offen sc1", "Z2")
    e(f"""
    s_mov_b64 exec, -1
    """)
    e(f"""
    s_mov_b32 s56, s36
    s_mov_b32 s57, s37
    s_mov_b32 s58, s38
    s_mov_b32 s59, s39
    s_waitcnt lgkmcnt(0)
    s_mul_i32 s44, s42, 0x9E3779B1
    s_add_u32 s44, s44, 0x7F4A7C15
    s_or_b32 s44, s44, 1
    s_add_u32 s45, s42, 1
    v_mov_b32 v14, s44
    v_mov_b32 v15, 0
    s_cmp_ge_u32 s3, 2
    s_cselect_b32 s48, s55, s54
    s_bitcmp1_b32 s3, 0
    s_cselect_b32 s49, 0, 16
    s_lshl_b32 s48, s48, s49
    s_and_b32 s48, s48, 0xffff0000
    """)
    e(f"""
    v_and_b32 v6, 15, v0
    v_lshrrev_b32 v7, 2, v6
    v_mul_u32_u24 v8, {CH}, v7
    v_and_b32 v7, 3, v6
    v_lshl_add_u32 v8, v7, 10, v8
    s_lshl_b32 s49, s3, 2
    s_sub_u32 s49, 15, s49
    v_sub_u32 v5, s49, v5
    v_xor_b32 v5, v5, v7
    v_lshl_add_u32 v8, v5, 4, v8
    v_add_u32 v8, {XR}, v8
    v_lshrrev_b32 v5, 4, v0
    v_lshlrev_b32 v7, 8, v5
    v_lshl_add_u32 v7, v6, 4, v7
    s_add_u32 s49, s62, {XR}
    v_add_u32 v7, s49, v7
    v_lshlrev_b32 v5, 12, v5
    v_lshl_add_u32 v5, v6, 4, v5
    s_lshl_b32 s49, s50, 2
    s_add_u32 s49, s49, s3
    s_lshl_b32 s49, s49, 16
    s_sub_u32 s53, 15, s51
    s_lshl_b32 s53, s53, 8
    s_add_u32 s49, s49, s53
    s_add_u32 s49, s49, {WS_KVT}
    """)
    e(f"s_waitcnt vmcnt({e.need(['K'])})")
    if timing: stamp(e, 1, TS)
    if kwd: kwl("v252", "v253", "v254")
    WV = VWT + 8
    for j in range(4):
        for c in range(4):
            src = VWT + 2*c + (j >> 1); d = WV + 4*j + c
            e(f"v_lshlrev_b32 v{d}, 16, v{src}" if j % 2 == 0 else f"v_and_b32 v{d}, 0xffff0000, v{src}")
    for r in range(11):
        for d in range(2):
            e(f"v_lshlrev_b32 v{VU+4*r+2*d}, 16, v{VK+2*r+d}\nv_and_b32 v{VU+4*r+2*d+1}, 0xffff0000, v{VK+2*r+d}")
    for i in range(8):
        for j in range(4):
            for cp in range(2):
                o = VKV + 4*i + 2*cp
                kr = VU + 4*(i + 3 - j) + 2*cp
                w = WV + 4*j + 2*cp
                if j == 0: e(f"v_pk_mul_f32 v[{o}:{o+1}], v[{kr}:{kr+1}], v[{w}:{w+1}]")
                else: e(f"v_pk_fma_f32 v[{o}:{o+1}], v[{kr}:{kr+1}], v[{w}:{w+1}], v[{o}:{o+1}]")
    e(f"s_waitcnt vmcnt({e.need(['V'])})")
    for i in range(8):
        for cp in range(2):
            o = VKV + 4*i + 2*cp; sv = VV + 2*i + cp; t = VK + 2*((2*i+cp) % 8)
            e(f"v_lshlrev_b32 v{t}, 16, v{sv}\nv_and_b32 v{t+1}, 0xffff0000, v{sv}\nv_pk_mul_f32 v[{o}:{o+1}], v[{o}:{o+1}], v[{t}:{t+1}]")
    for c in range(4):
        b = VV + 4*c
        for d in range(4):
            e(f"v_cvt_pk_bf16_f32 v{b+d}, v{VKV+4*(7-2*d)+c}, v{VKV+4*(6-2*d)+c}")
        e(f"ds_write_b128 v8, v[{b}:{b+3}] offset:{c*256}")
    for i in range(1, 4): e(f"v_xor_b32 v{10+i}, {16*i}, v7")
    e(f"s_waitcnt lgkmcnt(0)\ns_barrier")
    for i in range(4): e(f"ds_read_b128 v[{VV+4*i}:{VV+4*i+3}], v{7 if i == 0 else 10+i} offset:{1024*i}")
    for i in range(4):
        e(f"s_waitcnt lgkmcnt({3-i})")
        e.vmem(f"buffer_store_dwordx4 v[{VV+4*i}:{VV+4*i+3}], v5, s[20:23], s49 offen sc1", "KS")
        if i < 3: e("s_add_u32 s49, s49, 16384")
    if timing: stamp(e, 2, TS)
    e(f"""
    s_lshl_b32 s53, s2, 14
    s_lshl_b32 s49, s3, 12
    s_add_u32 s53, s53, s49
    v_add_u32 v5, s53, v4
    """)
    for i in range(4):
        e.vmem(f"buffer_load_dwordx4 v[{VS+4*i}:{VS+4*i+3}], v5, s[4:7], 0 offen offset:{i*1024}", "SL")
    c_ = Col()
    nt = 0
    for c in range(4):
        W = VW + 8*c
        c_(f"@W{c}")
        for s in range(8):
            sh = s + 1
            off = s*CPS + 16 + 1024*c
            if sh % 4 == 0:
                b = W + sh // 2
                c_(f"ds_write_b128 v9, v[{b}:{b+3}] offset:{off}")
            else:
                t = VW + 32 + 4 * (nt % 6); nt += 1
                for d in range(4):
                    if sh % 2 == 0: c_(f"v_mov_b32 v{t+d}, v{W + sh//2 + d}")
                    else: c_(f"v_alignbit_b32 v{t+d}, v{W + sh//2 + d + 1}, v{W + sh//2 + d}, 16")
                c_(f"ds_write_b128 v9, v[{t}:{t+3}] offset:{off}")
    for n_, l in enumerate(c_.l):
        if n_ == fl1:
            e(f"s_waitcnt vmcnt({e.need(['KS', 'Z2'])})\ns_mov_b64 exec, 1")
            e.vmem("buffer_store_dword v14, v15, s[20:23], s43 offen offset:96 sc1", "KF")
            e("s_mov_b64 exec, -1")
            if timing: stamp(e, 3, TS)
            e(f"""
            v_xor_b32 v3, 15, v0
            v_lshlrev_b32 v3, 11, v3
            s_lshl_b32 s42, s3, 20
            s_add_u32 s42, s42, s41
            v_add_u32 v3, s42, v3
            s_mov_b32 s42, 0
            """)
            xq = list(range(xe)) if not nox else []
        if n_ > fl1 and (n_ - fl1) % 20 == 1 and xq:
            i = xq.pop(0)
            e.vmem(f"buffer_load_dwordx2 v[{VX+2*i}:{VX+2*i+1}], v3, s[4:7], s42 offen {xl}", "X")
            e(f"s_add_u32 s42, s42, {64*2048}")
        if l.startswith("@W"): e(f"s_waitcnt vmcnt({e.need([('KW', int(l[2:]))])})")
        else: e(l)
    e(f"""
    s_lshl_b32 s53, s50, 4
    v_and_b32 v10, 15, v0
    v_add_u32 v10, s53, v10
    v_and_b32 v11, 31, v10
    v_lshrrev_b32 v10, 5, v10
    v_lshl_add_u32 v10, v11, 3, v10
    v_lshlrev_b32 v10, 9, v10
    s_lshr_b32 s53, s51, 2
    s_lshl_b32 s53, s53, 7
    s_add_u32 s53, s53, {WS_FL + 96}
    s_mov_b32 s49, 0
    buffer_load_dword v13, v10, s[20:23], s53 offen sc1
    """)
    if timing: stamp(e, 4, TS)
    T = VT
    e(f"s_waitcnt vmcnt({e.need(['SL']) + 1})\ns_mov_b32 s63, 0x3f803f80\nv_mov_b32 v{T}, 0\nv_mov_b32 v{T+1}, 0\nv_mov_b32 v{T+2}, 0\nv_mov_b32 v{T+3}, 0\nv_mov_b32 v{T+4}, s63")
    for i in range(8):
        for r in range(2):
            x = VS + 8*r + i
            e(f"v_dot2_f32_bf16 v{T+2*r}, v{x}, v{T+4}, v{T+2*r}\nv_dot2_f32_bf16 v{T+1+2*r}, v{x}, v{x}, v{T+1+2*r}")
    e(f"""
    s_add_u32 m0, s62, {XR}
    s_add_u32 s61, s61, {WS_KVT}
    s_branch L_k1_p2c
    L_k1_p2:
    {f"s_sleep {slp}" if slp else ""}
    buffer_load_dword v13, v10, s[20:23], s53 offen sc1
    L_k1_p2c:
    s_waitcnt vmcnt(0)
    v_cmp_eq_u32 vcc, s44, v13
    s_cmp_eq_u64 vcc, -1
    s_cbranch_scc1 L_k1_p3
    s_add_u32 s49, s49, 1
    s_cmp_gt_u32 s49, {POLL_MAX}
    s_cbranch_scc0 L_k1_p2
    L_k1_p3:
    """)
    if timing: stamp(e, 5, TS)
    e.vm = []
    for i in range(4): e.vmem(f"buffer_load_dwordx4 v4, s[20:23], s61 offen offset:{1024*i} sc1 lds", "KD")
    for op in ["row_shr:1", "row_shr:2", "row_shr:4", "row_shr:8"]:
        for r in range(4): e(f"v_add_f32_dpp v{T+r}, v{T+r}, v{T+r} {op} row_mask:0xf bank_mask:0xf bound_ctrl:0")
    for op, m in [("row_bcast:15", "0xa"), ("row_bcast:31", "0xc")]:
        for r in range(4): e(f"v_add_f32_dpp v{T+r}, v{T+r}, v{T+r} {op} row_mask:{m} bank_mask:0xf")
    e(f"""
    s_mov_b32 s63, 0x3a800000
    v_mul_f32 v{T}, s63, v{T}
    v_mul_f32 v{T+2}, s63, v{T+2}
    v_mul_f32 v{T+1}, s63, v{T+1}
    v_mul_f32 v{T+3}, s63, v{T+3}
    v_fma_f32 v{T+1}, -v{T}, v{T}, v{T+1}
    v_fma_f32 v{T+3}, -v{T+2}, v{T+2}, v{T+3}
    v_max_f32 v{T+1}, 0, v{T+1}
    v_max_f32 v{T+3}, 0, v{T+3}
    v_add_f32 v{T+1}, 0x3727c5ac, v{T+1}
    v_add_f32 v{T+3}, 0x3727c5ac, v{T+3}
    v_rsq_f32 v{T+1}, v{T+1}
    v_rsq_f32 v{T+3}, v{T+3}
    s_lshl_b32 s63, s2, 7
    s_lshl_b32 s49, s3, 5
    s_add_u32 s63, s63, s49
    s_add_u32 s63, s63, {WS_ST1}
    v_mov_b32 v{T+4}, v{T+2}
    v_mov_b32 v{T+5}, v{T+3}
    v_mov_b32 v{T+2}, s44
    v_mov_b32 v{T+6}, s44
    s_mov_b32 exec_lo, 0
    s_mov_b32 exec_hi, 0x80000000
    """)
    e.vmem(f"buffer_store_dwordx4 v[{T}:{T+3}], v15, s[20:23], s63 offen sc1", "SS")
    e.vmem(f"buffer_store_dwordx4 v[{T+4}:{T+7}], v15, s[20:23], s63 offen offset:16 sc1", "SS")
    e(f"""
    s_mov_b64 exec, -1
    s_lshr_b32 s49, s2, 3
    s_cmp_ge_u32 s49, 16
    s_cselect_b32 s16, s58, s56
    s_cselect_b32 s17, s59, s57
    s_and_b32 s17, s17, 0xffff
    s_mov_b32 s18, {1024*7168}
    s_mov_b32 s19, 0x00020000
    v_cmp_gt_u32 vcc, 56, v0
    v_mov_b32 v9, 0x80000000
    v_mul_u32_u24 v252, 9363, v0
    v_lshrrev_b32 v252, 16, v252
    v_mul_u32_u24 v252, {7168 - 896}, v252
    v_lshl_add_u32 v254, v0, 7, v252
    v_cndmask_b32 v254, v9, v254, vcc
    s_and_b32 s49, s49, 15
    s_lshl_b32 s49, s49, 2
    s_add_u32 s49, s49, s3
    s_and_b32 s52, s2, 7
    s_lshl_b32 s52, s52, {4 if rot else 30}
    s_add_u32 s49, s49, s52
    s_and_b32 s49, s49, 127
    s_mul_i32 s61, s49, {8*7168}
    s_and_b32 s49, s2, 7
    s_mul_i32 s49, s49, 896
    s_add_u32 s61, s61, s49
    v_and_b32 v12, 7, v0
    v_mul_u32_u24 v10, {CPS}, v12
    v_bfe_u32 v12, v0, 3, 1
    v_lshrrev_b32 v13, 4, v0
    v_add_u32 v12, v12, v13
    v_lshl_add_u32 v10, v12, 4, v10
    v_add_u32 v10, s62, v10
    v_and_b32 v12, 15, v0
    v_lshlrev_b32 v12, 5, v12
    v_lshlrev_b32 v13, 4, v13
    v_sub_u32 v11, v13, v12
    s_add_u32 s52, s62, {XR + 4064 - 3584}
    v_add_u32 v11, s52, v11
    v_lshrrev_b32 v13, 1, v13
    v_add_u32 v12, v12, v13
    s_add_u32 s52, s62, {XR + 4088 - 3584}
    v_sub_u32 v12, s52, v12
    """)
    e(f"s_waitcnt vmcnt({e.need(['KD'])}) lgkmcnt(0)")
    if timing: stamp(e, 6, TS)
    lds = []
    def fread(m): e(f"ds_read_b128 {ffr(m)}, v10 offset:{64*m}"); lds.append(f"F{m}")
    def gread(q, r): e(f"ds_read_b128 {gfr(q,r)}, v11 offset:{512*(7-q) + 64*r}"); lds.append(f"G{r}")
    def lwait(tags):
        nonlocal lds
        need_ = [i_ for i_, t_ in enumerate(lds) if t_ in tags]
        if need_:
            e(f"s_waitcnt lgkmcnt({min(len(lds) - 1 - max(need_), 15)})")
            lds = lds[max(need_)+1:]
    fread(0)
    for q in range(8): gread(q, 0)
    fread(1)
    e(f"""
    s_mov_b32 s49, s42
    v_xor_b32 v5, 15, v0
    v_lshlrev_b32 v5, 4, v5
    s_lshl_b32 s50, s3, 13
    s_add_u32 s50, s50, {WS_ST1}
    s_add_u32 s51, s50, 4096
    """)
    VR = 162
    def stl(i): return f"buffer_load_dwordx3 v[{VR+4*i}:{VR+4*i+2}], v5, s[20:23], {'s50' if i < 4 else 's51'} offen offset:{1024*(i%4)} sc1"
    nextF = 2
    sched = {}
    if not nox:
        for n in range(4*xe, 32): sched.setdefault(x0 + xd*(n - 4*xe), []).append(("X", n))
    if wpf: sched.setdefault(100, []).append(("WPF",))
    for i in range(8): sched.setdefault(st0 + 3*i, []).append(("ST", i))
    ep1 = []
    def ep1_ops(j):
        a = ACC + 4*j; kk = VK + 2*j; t = VV + 4*(j % 4)
        ops = [lambda: lwait([f"Y{j}"])]
        ops += [f"v_and_b32 v{t}, 0xffff0000, v{kk+1}", f"v_lshlrev_b32 v{t+1}, 16, v{kk+1}", f"v_and_b32 v{t+2}, 0xffff0000, v{kk}", f"v_lshlrev_b32 v{t+3}, 16, v{kk}"]
        ops += [f"v_fma_f32 v{a+i}, s48, v{t+i}, v{a+i}" for i in range(4)]
        ops += [f"v_cvt_pk_bf16_f32 v{kk}, v{a+3}, v{a+2}", f"v_cvt_pk_bf16_f32 v{kk+1}, v{a+1}, v{a}"]
        def wr(): e(f"ds_write_b64 v12, v[{kk}:{kk+1}] offset:{512*(7-j)}"); lds.append("W")
        ops.append(wr)
        return ops
    nm = 0
    xi = 0
    for m in range(64):
        p, r = m // 8, m % 8
        lwait([f"F{m}", f"G{m}"])
        fills = []
        if p == 0 and r < 7: fills += [("G", q, r + 1) for q in range(8)]
        lim = m + 2 if p == 0 and r < 6 else m + FD
        while nextF <= lim and nextF < 64 and len([f for f in fills if f[0] == "F"]) < 2:
            fills.append(("F", nextF)); nextF += 1
        if p == 1: fills.append(("Y", r))
        if r == 3 and p >= 2: ep1 += ep1_ops(p - 2)
        if m == 62: ep1 += ep1_ops(6)
        nq = 8 - p
        for q in range(nq):
            j = p + q
            c = "0" if m == 0 else acc(j)
            e(f"v_mfma_f32_16x16x32_bf16 {acc(j)}, {ffr(m)}, {gfr(q,r)}, {c}")
            nm += 1
            take = fills[:2] if p == 0 else fills[:1]
            if q == nq - 1: take = fills
            fills = fills[len(take):]
            for f in take:
                if f[0] == "G": gread(f[1], f[2])
                elif f[0] == "F": fread(f[1])
                else:
                    e(f"ds_read_b64 v[{VK+2*f[1]}:{VK+2*f[1]+1}], v12 offset:{512*(7-f[1])}"); lds.append(f"Y{f[1]}")
            for s_ in sched.get(nm, []):
                if s_[0] == "X":
                    n = s_[1]; i = n >> 2
                    e(f"s_cmp_lg_u32 s3, {n & 3}\ns_cbranch_scc1 L_k1_x{n}")
                    l = f"buffer_load_dwordx2 v[{VX+2*i}:{VX+2*i+1}], v3, s[4:7], s49 offen {xl}"
                    if n & 3 == 0: e.vmem(l, "X")
                    else: e(l)
                    e(f"L_k1_x{n}:")
                    if n & 3 == 3: e(f"s_add_u32 s49, s49, {64*2048}")
                elif s_[0] == "WPF": e.vmem(f"buffer_load_dword v255, v254, s[16:19], s61 offen", "WPF")
                elif s_[0] == "ST":
                    i = s_[1]
                    e.vmem(stl(i), "ST")
            for _ in range(1 if p < 6 else 2):
                if ep1 and not take:
                    x = ep1.pop(0)
                    if callable(x): x()
                    else: e(x)
    if timing: stamp(e, 7, TS)
    e(f"""
    v_bfe_u32 v14, v0, 2, 2
    v_mul_u32_u24 v14, {CH}, v14
    v_lshrrev_b32 v15, 4, v0
    v_lshlrev_b32 v15, 5, v15
    v_sub_u32 v14, v14, v15
    v_and_b32 v15, 3, v0
    v_lshl_add_u32 v14, v15, 3, v14
    s_lshl_b32 s52, s3, 10
    s_sub_u32 s52, {XR + 4064 - 896}, s52
    v_add_u32 v14, s52, v14
    v_lshrrev_b32 v15, 5, v0
    v_lshlrev_b32 v15, 16, v15
    v_xor_b32 v9, 15, v0
    v_and_b32 v9, 31, v9
    v_lshl_add_u32 v15, v9, 4, v15
    """)
    if not nocs:
        e(f"""
        s_lshl_b32 s53, s3, 11
        s_add_u32 s53, s53, {CSL}
        v_lshlrev_b32 v9, 5, v0
        v_add_u32 v9, s53, v9
        ds_write_b128 v9, v[{VCA}:{VCA+3}]
        ds_write_b128 v9, v[{VCA+4}:{VCA+7}] offset:16
        """)
        lds += ["W", "W"]
    for x in ep1 + ep1_ops(7):
        if callable(x): x()
        else: e(x)
    e(f"""
    s_lshl_b32 s52, s3, 20
    s_lshr_b32 s53, s40, 2
    s_lshl_b32 s53, s53, 10
    s_add_u32 s52, s52, s53
    s_and_b32 s53, s40, 1
    s_lshl_b32 s53, s53, 9
    s_add_u32 s52, s52, s53
    s_and_b32 s53, s40, 2
    s_lshl_b32 s53, s53, 2
    s_add_u32 s52, s52, s53
    s_lshl_b32 s53, s3, 9
    v_lshlrev_b32 v9, 3, v0
    v_add_u32 v9, s53, v9
    v_add_u32 v8, {CSL}, v9
    s_waitcnt lgkmcnt(0)
    s_barrier
    """)
    for i in range(8): e(f"ds_read_b64_tr_b16 v[{VK+2*i}:{VK+2*i+1}], v14 offset:{128*(7-i)}")
    if not nocs:
        for i in range(4): e(f"ds_read_b64 v[{VC+2*i}:{VC+2*i+1}], v8 offset:{2048*i}")
    e("s_mov_b32 s53, 0\nL_k1_stc:\ns_waitcnt vmcnt(0)")
    e(f"v_xor_b32 v13, s44, v{VR+2}")
    for i in range(1, 8): e(f"v_xor_b32 v12, s44, v{VR+4*i+2}\nv_or_b32 v13, v13, v12")
    e(f"""
    v_cmp_eq_u32 vcc, 0, v13
    s_cmp_eq_u64 vcc, -1
    s_cbranch_scc1 L_k1_stok
    s_add_u32 s53, s53, 1
    s_cmp_gt_u32 s53, {POLL_MAX}
    s_cbranch_scc1 L_k1_stok
    """)
    for i in range(8): e(stl(i))
    e(f"""
    s_branch L_k1_stc
    L_k1_stok:
    s_waitcnt lgkmcnt(0)
    """)
    for i in range(8):
        x = VX + 2*i; y = VK + 2*i; st = VR + 4*i; t = VU + 12*(i % 2)
        e(f"""
        v_lshlrev_b32 v{t}, 16, v{x}
        v_and_b32 v{t+1}, 0xffff0000, v{x}
        v_lshlrev_b32 v{t+2}, 16, v{x+1}
        v_and_b32 v{t+3}, 0xffff0000, v{x+1}
        v_mul_f32 v{st}, v{st}, v{st+1}
        v_lshlrev_b32 v{t+4}, 16, v{y}
        v_and_b32 v{t+5}, 0xffff0000, v{y}
        v_lshlrev_b32 v{t+6}, 16, v{y+1}
        v_and_b32 v{t+7}, 0xffff0000, v{y+1}
        v_pk_fma_f32 v[{t+8}:{t+9}], v[{t}:{t+1}], v[{st}:{st+1}], v[{st}:{st+1}] op_sel:[0,1,0] op_sel_hi:[1,1,0] neg_lo:[0,0,1] neg_hi:[0,0,1]
        v_pk_fma_f32 v[{t+10}:{t+11}], v[{t+2}:{t+3}], v[{st}:{st+1}], v[{st}:{st+1}] op_sel:[0,1,0] op_sel_hi:[1,1,0] neg_lo:[0,0,1] neg_hi:[0,0,1]
        v_pk_fma_f32 v[{t}:{t+1}], v[{t+8}:{t+9}], v[{t+4}:{t+5}], v[{t}:{t+1}]
        v_pk_fma_f32 v[{t+2}:{t+3}], v[{t+10}:{t+11}], v[{t+6}:{t+7}], v[{t+2}:{t+3}]
        v_cvt_pk_bf16_f32 v{x}, v{t}, v{t+1}
        v_cvt_pk_bf16_f32 v{x+1}, v{t+2}, v{t+3}
        buffer_store_dwordx2 v[{x}:{x+1}], v15, s[20:23], s52 offen {st_flags}
        s_add_u32 s52, s52, {2*65536}
        """)
    e(f"""
    s_cmp_lg_u32 s2, 0
    s_cbranch_scc1 L_k1_nobump
    s_barrier
    s_cmp_lg_u32 s3, 0
    s_cbranch_scc1 L_k1_nobump
    v_mov_b32 v12, s45
    v_mov_b32 v13, {WS_EP}
    s_mov_b64 exec, 1
    buffer_store_dword v12, v13, s[20:23], 0 offen sc1
    s_mov_b64 exec, -1
    L_k1_nobump:
    """)
    if not nocs: e(f"""
    s_waitcnt lgkmcnt(0)
    v_pk_add_f32 v[{VC}:{VC+1}], v[{VC}:{VC+1}], v[{VC+2}:{VC+3}]
    v_pk_add_f32 v[{VC+4}:{VC+5}], v[{VC+4}:{VC+5}], v[{VC+6}:{VC+7}]
    v_cmp_gt_u32 vcc, 1792, v9
    v_mov_b32 v8, 0x80000000
    v_pk_add_f32 v[{VC}:{VC+1}], v[{VC}:{VC+1}], v[{VC+4}:{VC+5}]
    v_cndmask_b32 v9, v8, v9, vcc
    s_lshr_b32 s52, s2, 3
    s_and_b32 s53, s52, 15
    s_mul_i32 s53, s53, {7168*4}
    s_lshr_b32 s52, s52, 4
    s_mul_i32 s52, s52, {3584*4}
    s_add_u32 s52, s52, s53
    s_and_b32 s53, s2, 7
    s_mul_i32 s53, s53, 1792
    s_add_u32 s52, s52, s53
    s_add_u32 s52, s52, {WS_CSP}
    buffer_store_dwordx2 v[{VC}:{VC+1}], v9, s[20:23], s52 offen {st_flags}
    """)

def gen(name="k1_kernel", timing=False, **kw):
    e = Em()
    e("s_cmp_ge_u32 s2, 256\ns_cbranch_scc1 L_k1_end")
    body(e, timing, **kw)
    if timing:
        e("s_waitcnt vmcnt(0)")
        stamp(e, 8, 64)
        timing_store(e, "s[20:23]", 9, 64)
    e("L_k1_end:\ns_endpgm")
    return kstart(name) + e.text(), kdesc(name, 512, 102, 256), f"; @launch kernel={name} grid=(256,1,1) block=(256,1,1) lds={LDS_K1}\n"

if __name__ == "__main__":
    import sys
    kw = dict(a.split("=") for a in sys.argv[2:])
    kw = {k: (v if k in ("st_flags","pfl","csl","xl","sll","xpfl") else int(v)) for k, v in kw.items()}
    code, desc, launch = gen(**kw)
    open(sys.argv[1], "w").write(launch + HEADER + code + RODATA + desc)
```
